```python
import torch

def _softmax(x, axis=-1):
    return torch.softmax(x, dim=axis)
def _gelu(x):
    return torch.nn.functional.gelu(x, approximate="tanh")
def _silu(x):
    return torch.nn.functional.silu(x)
def _sigmoid(x):
    return torch.sigmoid(x)
def _layernorm(x, axis=-1, eps=1e-5):
    m = x.mean(dim=axis, keepdim=True)
    v = x.var(dim=axis, keepdim=True, unbiased=False)
    return (x - m) / torch.sqrt(v + eps)
def _scatter_add(tgt, idx, src, axis=0):
    return tgt.clone().index_add_(axis, idx, src)
def _segment_sum(src, seg, n):
    out = torch.zeros((n,) + src.shape[1:], dtype=src.dtype)
    return out.index_add_(0, seg, src)
def _pad(x, pw):
    flat = tuple(v for pair in reversed(pw) for v in pair)
    return torch.nn.functional.pad(x, flat)

kernel_name = 'standalone__deep_cross_wide_deep__recsys'

def setup_inputs():

    _w = (lambda a: (lambda t: t.to(torch.bfloat16) if t.is_floating_point() else t)(torch.as_tensor(a)))
    B, F, D = 4096, 100, 64
    V, Nd = min(100000, 100000), 13
    Din = F * D
    H = 4 * D
    return {
        "idx": _w((lambda lo, hi, *s: torch.randint(lo, hi, s))(0, V, B, F).to(torch.int64)),
        "table": _w((lambda *s: torch.randn(*s, dtype=torch.bfloat16) * 1.6)(V, D) * 0.05),
        "x_wide": _w((lambda *s: torch.randn(*s, dtype=torch.bfloat16) * 1.6)(B, Nd)),
        "w_wide": _w((lambda *s: torch.randn(*s, dtype=torch.bfloat16) * 1.6)(Nd) * 0.05),
        "b_wide": _w((lambda *s: torch.randn(*s, dtype=torch.bfloat16) * 1.6)(1) * 0.01),
        "W1": _w((lambda *s: torch.randn(*s, dtype=torch.bfloat16) * 1.6)(Din, H) * (2.0 / Din) ** 0.5),
        "b1": _w((lambda *s: torch.randn(*s, dtype=torch.bfloat16) * 1.6)(H) * 0.01),
        "W2": _w((lambda *s: torch.randn(*s, dtype=torch.bfloat16) * 1.6)(H) * (1.0 / H) ** 0.5),
        "b2": _w((lambda *s: torch.randn(*s, dtype=torch.bfloat16) * 1.6)(1) * 0.01),
    }

def reference(idx, table, x_wide, w_wide, b_wide, W1, b1, W2, b2):
    emb = table[idx]
    deep_in = emb.reshape(emb.shape[0], -1)
    h = deep_in @ W1 + b1
    h = h * (lambda x, dt: x.to(dt))(h > 0, h.dtype)
    deep_logit = h @ W2 + b2
    wide_logit = x_wide @ w_wide + b_wide
    return _sigmoid(wide_logit + deep_logit)
```

```python
import sys

P = dict(CFG='C8', XFMT='f32', TS=0, RA=3, RW=6)
for a in sys.argv[2:]:
    k, v = a.split('=')
    P[k] = int(v) if v.lstrip('-').isdigit() else v
CFG, XFMT, TS = P['CFG'], P['XFMT'], P['TS']
C8 = CFG == 'C8'
BF = XFMT == 'bf16'
NT = 4 if C8 else 2
KK = 1 if C8 else 2
RA, RW = P['RA'], P['RW']
if not C8 and 'RA' not in [a.split('=')[0] for a in sys.argv[2:]]:
    RA, RW = 5, 4
NSTEP = 25
NACH = 13 if C8 else 25
ABASE = 0
WBASE = RA * 16384
LDS_BYTES = (RA + RW) * 16384
NST = (NT // 2) if BF else NT
PIECE = NST * 4096
FLG = 48 << 20
TSOFF = 56 << 20
WS_BYTES = 64 << 20

out = []
def E(s=''):
    out.append('    ' + s if s and not s.endswith(':') else s)
def L(s):
    out.append(s + ':')

sKA = 0
sWG = 2
R_TAB, R_W1, R_IDX, R_WS, R_T0, R_T1 = 28, 32, 36, 40, 44, 48
sW, sMT, sME, sMH, sQ, sWOFF, sWso, sWsoH, sT0, sT1, sT2, sT3, sCNT, sPREV, sB, sNH, sMASK, sGRP, sSPIN = range(52, 71)
sTS = 72
vL = 1
vT0, vT1, vT2, vT3 = 2, 3, 4, 5
vWd = [6, 7]
NIDX = 12 if C8 else 24
vIDX = [8, 8 + NIDX + 4]
vNEXT = vIDX[1] + NIDX + 4
vB0, vB1, vBh = vNEXT, vNEXT + 1, vNEXT + 2
vWa = [vNEXT + 4 + i for i in range(NT)]
vWb = [vNEXT + 8 + i for i in range(NT)]
vBb0, vBb1 = vNEXT + 12, vNEXT + 13
vNEXT += 16
vB1v = vNEXT
vW2v = vNEXT + 4
vXW = vNEXT + 8
vWW = vNEXT + 12
vRDY = vNEXT + 16
vSC = vNEXT + 18
vXo = vNEXT + 20
vXc = vNEXT + 21
vFo = vNEXT + 22
vONE = vNEXT + 23
vNEXT += 24
vNEXT = (vNEXT + 3) & ~3
vACC = vNEXT
NACC = 4 * NT * 4
vFR = vACC + NACC
FRSZ = (4 * KK + NT * KK) * 4
vEND = vFR + 2 * FRSZ
def acc(sb, nt): return vACC + (sb * NT + nt) * 4
def frB(p, sb, kk): return vFR + p * FRSZ + (kk * 4 + sb) * 4
def frW(p, nt, kk): return vFR + p * FRSZ + 16 * KK + (kk * NT + nt) * 4
def vr(b, n=4): return 'v[%d:%d]' % (b, b + n - 1)
def sr(b, n=4): return 's[%d:%d]' % (b, b + n - 1)
vRX = vFR

def ts(i):
    if TS:
        E('s_memrealtime s[%d:%d]' % (sTS + 2 * i, sTS + 2 * i + 1))

def srd(r, p, nbytes):
    E('s_mov_b32 s%d, s%d' % (r, p))
    E('s_and_b32 s%d, s%d, 0xffff' % (r + 1, p + 1))
    E('s_mov_b32 s%d, 0x%x' % (r + 2, nbytes))
    E('s_mov_b32 s%d, 0x00020000' % (r + 3))

vmq = []
def vm(tag): vmq.append(tag)
def wait_for(tags):
    last = -1
    for i, t in enumerate(vmq):
        if t in tags: last = i
    if last < 0: return None
    return len(vmq) - 1 - last

hdr = open('standalone__deep_cross_wide_deep__recsys.s.ref').read().split('\n')
for line in hdr:
    if line.startswith('; @launch'):
        out.append('; @launch grid=(256,1,1) block=(512,1,1) lds=%d' % LDS_BYTES)
    elif line.startswith(';'):
        out.append(line)
    else:
        break
out.append('; generated: ' + ' '.join('%s=%s' % kv for kv in sorted(P.items())))
out.append('.amdgcn_target "amdgcn-amd-amdhsa--gfx950"')
out.append('.text')
KN = 'standalone__deep_cross_wide_deep__recsys_kernel'
out.append('.globl ' + KN)
out.append('.p2align 8')
out.append('.type %s,@function' % KN)
L(KN)
E('s_cmp_ge_u32 s2, 256')
E('s_cbranch_scc1 L_end')
E('s_load_dwordx16 s[4:19], s[0:1], 0')
E('s_load_dwordx8 s[20:27], s[0:1], 64')
ts(0)
E('v_lshrrev_b32 v%d, 6, v0' % vT0)
E('v_and_b32 v%d, 63, v0' % vL)
E('v_readfirstlane_b32 s%d, v%d' % (sW, vT0))
if C8:
    E('s_and_b32 s%d, s2, 7' % sME)
    E('s_lshr_b32 s%d, s2, 3' % sMT)
    E('s_mov_b32 s%d, 0' % sNH)
else:
    E('s_lshr_b32 s%d, s2, 3' % sT0)
    E('s_and_b32 s%d, s%d, 1' % (sNH, sT0))
    E('s_lshr_b32 s%d, s%d, 1' % (sMT, sT0))
    E('s_bfe_u32 s%d, s2, 0x10002' % sT1)
    E('s_lshl_b32 s%d, s%d, 4' % (sT1, sT1))
    E('s_add_u32 s%d, s%d, s%d' % (sMT, sMT, sT1))
    E('s_and_b32 s%d, s2, 3' % sT2)
    E('s_lshl_b32 s%d, s%d, 2' % (sME, sNH))
    E('s_add_u32 s%d, s%d, s%d' % (sME, sME, sT2))
E('s_and_b32 s%d, s%d, 3' % (sB, sME))
E('s_lshr_b32 s%d, s%d, 2' % (sMH, sW))
E('s_and_b32 s%d, s%d, 3' % (sQ, sW))
E('s_lshl_b32 s%d, s%d, 11' % (sWOFF, sW))
E('s_lshl_b32 s%d, s%d, 3' % (sGRP, sMT))
if C8:
    E('s_mul_i32 s%d, s%d, 800' % (sT0, sME))
    E('s_and_b32 s%d, s%d, 1' % (sT1, sME))
    E('s_lshl_b32 s%d, s%d, 5' % (sT2, sT1))
    E('s_add_u32 s%d, s%d, s%d' % (sT2, sT2, sT0))
    E('s_lshl_b32 s%d, s%d, 9' % (sWso, sT2))
    E('s_cmp_eq_u32 s%d, 0' % sT1)
    E('s_cselect_b32 s%d, 768, 0' % sT3)
    E('s_add_u32 s%d, s%d, s%d' % (sT3, sT3, sT0))
    E('s_lshl_b32 s%d, s%d, 9' % (sWsoH, sT3))
    E('s_lshr_b32 s%d, s%d, 6' % (sT2, sT2))
    E('s_lshr_b32 s%d, s%d, 6' % (sT3, sT3))
    E('s_lshl_b32 s%d, s%d, 2' % (sT2, sT2))
    E('s_lshl_b32 s%d, s%d, 2' % (sT3, sT3))
else:
    E('s_mul_i32 s%d, s%d, 25' % (sT2, sB))
    E('s_lshl_b32 s%d, s%d, 15' % (sWso, sT2))
    E('s_lshl_b32 s%d, s%d, 2' % (sT2, sT2))
    E('s_add_u32 s%d, s%d, 96' % (sT3, sT2))
    E('s_mov_b32 s%d, 0' % sT1)
E('v_lshrrev_b32 v%d, 3, v%d' % (vT0, vL))
E('s_lshl_b32 s%d, s%d, 7' % (sT0, sMT))
E('s_lshl_b32 s%d, s%d, 4' % (sCNT, sW))
E('s_add_u32 s%d, s%d, s%d' % (sT0, sT0, sCNT))
E('v_add_u32 v%d, s%d, v%d' % (vT0, sT0, vT0))
E('v_mul_u32_u24 v%d, 400, v%d' % (vT0, vT0))
if C8:
    E('v_lshrrev_b32 v%d, 5, v%d' % (vT1, vL))
    E('s_bfe_u32 s%d, s%d, 0x10001' % (sCNT, sW))
    E('s_lshl_b32 s%d, s%d, 3' % (sCNT, sCNT))
    E('v_lshlrev_b32 v%d, 1, v%d' % (vT2, vT1))
    E('v_or_b32 v%d, s%d, v%d' % (vT2, sCNT, vT2))
    E('v_and_b32 v%d, 31, v%d' % (vT3, vL))
    E('v_xor_b32 v%d, v%d, v%d' % (vT2, vT2, vT3))
    E('v_lshlrev_b32 v%d, 9, v%d' % (vT1, vT1))
    E('v_add_u32 v%d, s%d, v%d' % (vT1, sWOFF, vT1))
    E('v_lshl_add_u32 v%d, v%d, 4, v%d' % (vWd[0], vT2, vT1))
    E('v_xor_b32 v%d, 4, v%d' % (vT2, vT2))
    E('v_lshl_add_u32 v%d, v%d, 4, v%d' % (vWd[1], vT2, vT1))
    E('v_add_u32 v%d, 1024, v%d' % (vWd[1], vWd[1]))
else:
    E('v_lshrrev_b32 v%d, 4, v%d' % (vT1, vL))
    E('s_and_b32 s%d, s%d, 1' % (sCNT, sW))
    E('s_lshl_b32 s%d, s%d, 3' % (sCNT, sCNT))
    E('v_lshlrev_b32 v%d, 1, v%d' % (vT2, vT1))
    E('v_or_b32 v%d, s%d, v%d' % (vT2, sCNT, vT2))
    E('v_and_b32 v%d, 15, v%d' % (vT3, vL))
    E('v_xor_b32 v%d, v%d, v%d' % (vT2, vT2, vT3))
    E('v_lshlrev_b32 v%d, 9, v%d' % (vT1, vT1))
    E('s_lshl_b32 s%d, s%d, 12' % (sCNT, sW))
    E('s_lshl_b32 s%d, s%d, 8' % (sPREV, sNH))
    E('s_add_u32 s%d, s%d, s%d' % (sCNT, sCNT, sPREV))
    E('v_add_u32 v%d, s%d, v%d' % (vT1, sCNT, vT1))
    E('v_lshl_add_u32 v%d, v%d, 4, v%d' % (vWd[0], vT2, vT1))
    E('v_add_u32 v%d, 2048, v%d' % (vWd[1], vWd[0]))
E('s_waitcnt lgkmcnt(0)')
srd(R_IDX, 4, 4096 * 400)
srd(R_W1, 14, 6400 * 512)
for i in range(2):
    for c in range(NIDX // 4):
        E('buffer_load_dwordx4 %s, v%d, %s, s%d offen offset:%d' % (vr(vIDX[i] + 4 * c), vT0, sr(R_IDX), sT2, i * 3200 + c * 16))
        vm('idx')
    E('buffer_load_dword v%d, v%d, %s, s%d offen offset:%d' % (vIDX[i] + NIDX, vT0, sr(R_IDX), sT3, i * 3200))
    vm('idx')

def wslot(u): return WBASE + (u % RW) * 16384
def aslot(c): return ABASE + (c % RA) * 16384
WSTEP = 16384 if C8 else 32768
def dmaW(u, i):
    E('s_add_u32 m0, s%d, 0x%x' % (sWOFF, wslot(u) + i * 1024))
    so = sWsoH if (C8 and u == 24) else sWso
    if i == 0:
        E('s_nop 0')
    else:
        E('s_nop 0')
    E('buffer_load_dwordx4 v%d, %s, s%d offen lds' % (vWd[i], sr(R_W1), so))
    vm(('W', u))
    if i == 1:
        E('s_add_u32 s%d, s%d, 0x%x' % (sWso, sWso, WSTEP))
def dmaA(c, i):
    E('s_add_u32 m0, s%d, 0x%x' % (sWOFF, aslot(c) + i * 1024))
    E('s_nop 0')
    E('buffer_load_dwordx4 v%d, %s, 0 offen lds' % (vIDX[i] + c, sr(R_TAB)))
    vm(('A', c))

NW0 = 2 if C8 else 2
for u in range(NW0):
    dmaW(u, 0); dmaW(u, 1)
srd(R_TAB, 6, 100000 * 128)
srd(R_WS, 26, WS_BYTES)
E('s_add_u32 s%d, s%d, s%d' % (sT0, sGRP, sME))
E('s_lshl_b32 s%d, s%d, 7' % (sCNT, sT0))
E('s_add_u32 s%d, s%d, 0x%x' % (sCNT, sCNT, FLG))
E('s_lshl_b32 s%d, s%d, 4' % (sPREV, sW))
E('s_add_u32 s%d, s%d, s%d' % (sPREV, sPREV, sCNT))
E('v_mov_b32 v%d, 0' % vT1)
E('v_lshlrev_b32 v%d, 2, v%d' % (vT2, vL))
E('s_mov_b64 exec, 15')
E('buffer_store_dword v%d, v%d, %s, s%d offen sc1' % (vT1, vT2, sr(R_WS), sPREV))
vm('clr')
E('s_mov_b64 exec, -1')
E('v_and_b32 v%d, 7, v%d' % (vFo, vL))
E('v_lshlrev_b32 v%d, 4, v%d' % (vFo, vFo))
E('s_lshl_b32 s%d, s%d, 2' % (sPREV, sQ))
E('s_add_u32 s%d, s%d, s%d' % (sPREV, sPREV, sCNT))
E('v_add_u32 v%d, s%d, v%d' % (vFo, sPREV, vFo))
E('v_and_b32 v%d, 15, v%d' % (vT1, vL))
E('v_lshrrev_b32 v%d, 4, v%d' % (vT2, vL))
E('v_lshrrev_b32 v%d, 1, v%d' % (vT3, vT1))
E('v_xor_b32 v%d, v%d, v%d' % (vT3, vT3, vT2))
E('v_lshlrev_b32 v%d, 4, v%d' % (vT3, vT3))
E('v_lshl_add_u32 v%d, v%d, 7, v%d' % (vB0, vT1, vT3))
E('s_lshl_b32 s%d, s%d, 13' % (sCNT, sMH))
E('v_add_u32 v%d, s%d, v%d' % (vB0, sCNT, vB0))
E('v_xor_b32 v%d, 64, v%d' % (vB1, vB0))
E('s_lshl_b32 s%d, s%d, 6' % (sCNT, sT1))
E('v_xor_b32 v%d, s%d, v%d' % (vBh, sCNT, vB0))
E('v_add_u32 v%d, 0x10000, v%d' % (vBb0, vB0))
E('v_add_u32 v%d, 0x10000, v%d' % (vBb1, vB1))
ROWB = 512 if C8 else 256
E('v_bfe_u32 v%d, v%d, 2, 2' % (vT1, vL))
E('v_and_b32 v%d, 1, v%d' % (vT3, vT2))
E('v_lshl_or_b32 v%d, v%d, 2, v%d' % (vT3, vT3, vT1))
E('v_lshl_add_u32 v%d, v%d, 3, v%d' % (vT1, vT2, vT1))
E('v_lshlrev_b32 v%d, %d, v%d' % (vT1, 9 if C8 else 8, vT1))
E('v_and_b32 v%d, 3, v%d' % (vT2, vL))
E('v_lshl_add_u32 v%d, v%d, 3, v%d' % (vT1, vT2, vT1))
E('v_add_u32 v%d, 0x%x, v%d' % (vT1, WBASE, vT1))
E('s_mul_i32 s%d, s%d, %d' % (sCNT, sQ, NT))
for nt in range(NT):
    E('s_add_u32 s%d, s%d, %d' % (sPREV, sCNT, nt))
    E('v_xor_b32 v%d, s%d, v%d' % (vT2, sPREV, vT3))
    E('v_lshl_add_u32 v%d, v%d, 5, v%d' % (vWa[nt], vT2, vT1))
    E('v_add_u32 v%d, 0x10000, v%d' % (vWb[nt], vWa[nt]))
E('v_lshrrev_b32 v%d, 4, v%d' % (vT1, vL))
E('v_and_b32 v%d, 7, v%d' % (vT2, vL))
E('v_xor_b32 v%d, v%d, v%d' % (vT1, vT1, vT2))
E('v_lshlrev_b32 v%d, 4, v%d' % (vT1, vT1))
E('v_xor_b32 v%d, 64, v%d' % (vT2, vT1))
for r in range(NACC):
    E('v_mov_b32 v%d, 0' % (vACC + r))
E('s_waitcnt vmcnt(%d)' % wait_for(['idx']))
ts(1)
for i in range(2):
    for c in range(NIDX + 1):
        E('v_lshl_or_b32 v%d, v%d, 7, v%d' % (vIDX[i] + c, vIDX[i] + c, vT1 if i == 0 else vT2))
NA0 = RA
for c in range(NA0):
    dmaA(c, 0); dmaA(c, 1)
    if c == 0:
        pass
for u in range(NW0, RW):
    dmaW(u, 0); dmaW(u, 1)
srd(R_T0, 16, 512)
srd(R_T1, 18, 512)
if C8:
    E('s_lshl_b32 s%d, s%d, 7' % (sCNT, sQ))
    E('s_lshl_b32 s%d, s%d, 6' % (sPREV, sMH))
else:
    E('s_lshl_b32 s%d, s%d, 6' % (sCNT, sQ))
    E('s_lshl_b32 s%d, s%d, 8' % (sPREV, sMH))
E('s_add_u32 s%d, s%d, s%d' % (sCNT, sCNT, sPREV))
E('v_lshrrev_b32 v%d, 4, v%d' % (vT0, vL))
E('v_lshlrev_b32 v%d, 3, v%d' % (vT0, vT0))
for t in range(2):
    E('buffer_load_dwordx2 %s, v%d, %s, s%d offen offset:%d' % (vr(vB1v + 2 * t, 2), vT0, sr(R_T0), sCNT, 32 * t)); vm('ep')
    E('buffer_load_dwordx2 %s, v%d, %s, s%d offen offset:%d' % (vr(vW2v + 2 * t, 2), vT0, sr(R_T1), sCNT, 32 * t)); vm('ep')
E('s_nop 0')
srd(R_T0, 8, 4096 * 26 + 64)
srd(R_T1, 10, 64)
E('v_and_b32 v%d, 15, v%d' % (vT1, vL))
E('s_lshl_b32 s%d, s%d, 4' % (sCNT, sT0))
E('v_add_u32 v%d, s%d, v%d' % (vT1, sCNT, vT1))
E('v_mul_u32_u24 v%d, 26, v%d' % (vT1, vT1))
E('v_lshrrev_b32 v%d, 2, v%d' % (vT0, vT0))
E('v_add_u32 v%d, v%d, v%d' % (vT1, vT1, vT0))
for m in range(4):
    if m == 3:
        E('v_mov_b32 v%d, 0' % (vXW + 3))
        E('v_mov_b32 v%d, 0' % (vWW + 3))
        E('s_mov_b64 exec, 0xffff')
    E('buffer_load_ushort v%d, v%d, %s, 0 offen offset:%d' % (vXW + m, vT1, sr(R_T0), 8 * m)); vm('ep')
    E('buffer_load_ushort v%d, v%d, %s, 0 offen offset:%d' % (vWW + m, vT0, sr(R_T1), 8 * m)); vm('ep')
E('s_mov_b64 exec, -1')
E('s_nop 0')
srd(R_T0, 12, 64)
srd(R_T1, 20, 64)
E('v_mov_b32 v%d, 0' % vT2)
E('buffer_load_ushort v%d, v%d, %s, 0 offen' % (vSC, vT2, sr(R_T0))); vm('ep')
E('buffer_load_ushort v%d, v%d, %s, 0 offen' % (vSC + 1, vT2, sr(R_T1))); vm('ep')
E('s_nop 0')
srd(R_T0, 24, 512)
srd(R_T1, 22, 16384)
E('v_lshlrev_b32 v%d, 4, v%d' % (vXo, vL))
E('s_mul_i32 s%d, s%d, %d' % (sCNT, sQ, PIECE // 4))
E('v_add_u32 v%d, s%d, v%d' % (vXo, sCNT, vXo))
if C8:
    E('s_mul_i32 s%d, s%d, %d' % (sCNT, sMH, PIECE // 8))
    E('v_add_u32 v%d, s%d, v%d' % (vXc, sCNT, vXo))
else:
    E('v_mov_b32 v%d, v%d' % (vXc, vXo))
E('v_mov_b32 v%d, 1' % vONE)

def achunk(u): return (u >> 1) if C8 else u
def frag_reads(u):
    p = u & 1
    l = []
    c = achunk(u)
    for kk in range(KK):
        for nt in range(NT):
            s = u % RW
            base = vWa[nt] if s < 4 else vWb[nt]
            so = (s % 4) * 16384
            for h in range(2):
                off = so + h * 4 * ROWB + kk * 32 * ROWB
                l.append('ds_read_b64_tr_b16 %s, v%d offset:%d' % (vr(frW(p, nt, kk) + 2 * h, 2), base, off))
        for sb in range(4):
            s = c % RA
            if C8:
                base = vBh if u == 24 else (vB1 if (u & 1) else vB0)
                assert s < 4
            else:
                base = ([vB0, vB1] if s < 4 else [vBb0, vBb1])[kk]
            l.append('ds_read_b128 %s, v%d offset:%d' % (vr(frB(p, sb, kk)), base, (s % 4) * 16384 + sb * 2048))
    return l

def need(u): return [('W', u), ('A', achunk(u))]

E('s_waitcnt vmcnt(%d)' % wait_for(need(0)))
E('s_barrier')
ts(2)
for s in frag_reads(0): E(s)

for u in range(NSTEP):
    p = u & 1
    E('; ---- step %d' % u)
    if u + 1 < NSTEP:
        n = wait_for(need(u + 1))
        E('s_waitcnt vmcnt(%d) lgkmcnt(0)' % n)
        E('s_barrier')
    else:
        E('s_waitcnt lgkmcnt(0)')
        E('s_barrier')
    reads = frag_reads(u + 1) if u + 1 < NSTEP else []
    dmas = []
    if u + RW < NSTEP:
        dmas += [('W', u + RW, 0), ('W', u + RW, 1)]
    if C8:
        if u >= 1:
            c = (u - 1) >> 1
            if c + RA < NACH:
                dmas.insert(0, ('A', c + RA, (u - 1) & 1))
    else:
        if u + RA < NACH:
            dmas = [('A', u + RA, 0), ('A', u + RA, 1)] + dmas
    mf = []
    for kk in range(KK):
        for sb in range(4):
            for nt in range(NT):
                mf.append('v_mfma_f32_16x16x32_bf16 %s, %s, %s, %s' % (vr(acc(sb, nt)), vr(frW(p, nt, kk)), vr(frB(p, sb, kk)), vr(acc(sb, nt))))
    dpos = {}
    if dmas:
        for k, d in enumerate(dmas):
            dpos[1 + k * (15 // len(dmas))] = d
    ri = 0
    for m in range(16):
        E(mf[m])
        if m in dpos:
            d = dpos[m]
            (dmaW if d[0] == 'W' else dmaA)(d[1], d[2])
        if ri < len(reads):
            E(reads[ri]); ri += 1
    while ri < len(reads):
        E(reads[ri]); ri += 1
    if u == 3:
        assert wait_for(['clr']) > 0
        E('s_cmp_lg_u32 s%d, 0' % sW)
        E('s_cbranch_scc1 L_nordy')
        E('v_mov_b32 v%d, s%d' % (vT0, sT0))
        E('s_mov_b64 exec, 1')
        E('buffer_store_byte v%d, v%d, %s, 0 offen sc1' % (vONE, vT0, sr(R_T0)))
        E('s_mov_b64 exec, -1')
        L('L_nordy')
    if u == 21:
        E('v_mov_b32 v%d, s%d' % (vT0, sGRP))
        E('buffer_load_dwordx2 %s, v%d, %s, 0 offen sc1' % (vr(vRDY, 2), vT0, sr(R_T0))); vm('rdy')
ts(3)
E('s_mov_b32 s%d, 0' % sSPIN)
E('s_waitcnt vmcnt(0)')
L('L_rdychk')
E('v_and_b32 v%d, v%d, v%d' % (vT1, vRDY, vRDY + 1))
E('s_nop 0')
E('v_readfirstlane_b32 s%d, v%d' % (sT2, vT1))
E('s_cmp_eq_u32 s%d, 0x01010101' % sT2)
E('s_cbranch_scc1 L_rdyok')
E('s_add_u32 s%d, s%d, 1' % (sSPIN, sSPIN))
E('s_cmp_gt_u32 s%d, 0x8000' % sSPIN)
E('s_cbranch_scc1 L_rdyok')
E('s_sleep 2')
E('buffer_load_dwordx2 %s, v%d, %s, 0 offen sc1' % (vr(vRDY, 2), vT0, sr(R_T0)))
E('s_waitcnt vmcnt(0)')
E('s_branch L_rdychk')
L('L_rdyok')
E('s_mov_b32 s%d, 0' % sCNT)
E('s_lshl_b32 s%d, s%d, 2' % (sT1, sMH))
E('s_add_u32 s%d, s%d, s%d' % (sT1, sT1, sGRP))
E('s_lshl_b32 s%d, s%d, 2' % (sT2, sME))
E('s_add_u32 s%d, s%d, s%d' % (sT2, sT2, sQ))
E('s_lshl_b32 s%d, s%d, 2' % (sT2, sT2))
E('v_mov_b32 v%d, s%d' % (vT3, sT2))
E('s_cmp_eq_u32 s%d, 0' % sB)
E('s_cbranch_scc1 L_blk1')
E('s_cmp_eq_u32 s%d, 1' % sB)
E('s_cbranch_scc1 L_blk2')
E('s_cmp_eq_u32 s%d, 2' % sB)
E('s_cbranch_scc1 L_blk3')
def flag_prev():
    E('s_lshl_b32 s%d, s%d, 7' % (sT2, sPREV))
    E('s_add_u32 s%d, s%d, 0x%x' % (sT2, sT2, FLG))
    E('s_mov_b64 exec, 1')
    E('buffer_store_dword v%d, v%d, %s, s%d offen sc1' % (vONE, vT3, sr(R_WS), sT2))
    E('s_mov_b64 exec, -1')
for pos in range(7):
    X = pos & 3
    L('L_blk%d' % pos)
    E('s_add_u32 s%d, s%d, %d' % (sT3, sT1, X))
    E('s_cmp_eq_u32 s%d, s%d' % (sT3, sT0))
    E('s_cbranch_scc1 L_own%d' % X)
    E('s_lshl_b32 s%d, s%d, 3' % (sT2, sT3))
    E('s_add_u32 s%d, s%d, s%d' % (sT2, sT2, sME))
    E('s_mul_i32 s%d, s%d, %d' % (sT2, sT2, PIECE))
    if BF:
        for pr in range(NT // 2):
            d = vRX + 8 * (pos & 1) + 4 * pr
            for t in range(2):
                a = acc(X, 2 * pr + t)
                E('v_cvt_pk_bf16_f32 v%d, v%d, v%d' % (d + 2 * t, a, a + 1))
                E('v_cvt_pk_bf16_f32 v%d, v%d, v%d' % (d + 2 * t + 1, a + 2, a + 3))
            E('buffer_store_dwordx4 %s, v%d, %s, s%d offen offset:%d sc1' % (vr(d), vXo, sr(R_WS), sT2, pr * 1024))
    else:
        for nt in range(NT):
            E('buffer_store_dwordx4 %s, v%d, %s, s%d offen offset:%d sc1' % (vr(acc(X, nt)), vXo, sr(R_WS), sT2, nt * 1024))
    E('s_cmp_eq_u32 s%d, 0' % sCNT)
    E('s_cbranch_scc1 L_nf%d' % pos)
    E('s_waitcnt vmcnt(%d)' % NST)
    flag_prev()
    L('L_nf%d' % pos)
    E('s_mov_b32 s%d, s%d' % (sPREV, sT3))
    E('s_add_u32 s%d, s%d, 1' % (sCNT, sCNT))
    E('s_cmp_eq_u32 s%d, 4' % sCNT)
    E('s_cbranch_scc1 L_stdone')
E('s_branch L_stdone')
for X in range(4):
    L('L_own%d' % X)
    E('v_lshlrev_b32 v%d, 4, v%d' % (vT1, vL))
    E('s_mul_i32 s%d, s%d, %d' % (sT2, sQ, NT * 1024))
    E('v_add_u32 v%d, s%d, v%d' % (vT1, sT2, vT1))
    for nt in range(NT):
        E('ds_write_b128 v%d, %s offset:%d' % (vT1, vr(acc(X, nt)), nt * 1024))
    if X < 3:
        E('s_branch L_stdone')
L('L_stdone')
E('s_waitcnt vmcnt(0) lgkmcnt(0)')
flag_prev()
ts(4)
E('s_barrier')
vS = vACC
E('v_lshlrev_b32 v%d, 4, v%d' % (vT1, vL))
if C8:
    E('s_lshl_b32 s%d, s%d, 12' % (sT2, sQ))
    E('s_lshl_b32 s%d, s%d, 11' % (sT3, sMH))
    E('s_add_u32 s%d, s%d, s%d' % (sT2, sT2, sT3))
    E('v_add_u32 v%d, s%d, v%d' % (vT1, sT2, vT1))
    E('ds_read_b128 %s, v%d' % (vr(vS), vT1))
    E('ds_read_b128 %s, v%d offset:1024' % (vr(vS + 4), vT1))
else:
    E('s_lshl_b32 s%d, s%d, 11' % (sT2, sQ))
    E('v_add_u32 v%d, s%d, v%d' % (vT1, sT2, vT1))
    for r in range(8):
        E('v_mov_b32 v%d, 0' % (vS + r))
    E('s_cmp_lg_u32 s%d, s%d' % (sMH, sNH))
    E('s_cbranch_scc1 L_noown')
    E('ds_read_b128 %s, v%d' % (vr(vS), vT1))
    E('ds_read_b128 %s, v%d offset:1024' % (vr(vS + 4), vT1))
    L('L_noown')
NL = 1 if BF else 2
nsrc = 2 if C8 else 1
for k in range(nsrc):
    for r in range(4 * NL):
        E('v_mov_b32 v%d, 0' % (vRX + ((3 * nsrc + k) * NL) * 4 + r))
E('s_mov_b32 s%d, 0' % sMASK)
E('s_lshl_b32 s%d, s%d, 3' % (sT1, sT0))
for t in range(4):
    for k in range(nsrc):
        E('s_sub_u32 s%d, s%d, %d' % (sT3, sB, t + 1))
        E('s_and_b32 s%d, s%d, 3' % (sT3, sT3))
        if C8:
            if k: E('s_add_u32 s%d, s%d, 4' % (sT3, sT3))
        else:
            E('s_lshl_b32 s%d, s%d, 2' % (sT2, sMH))
            E('s_add_u32 s%d, s%d, s%d' % (sT3, sT3, sT2))
        if t == 3:
            E('s_cmp_eq_u32 s%d, s%d' % (sT3, sME))
            E('s_cbranch_scc1 L_skip%d' % k)
        L('L_poll%d_%d' % (t, k))
        E('s_bitcmp1_b32 s%d, s%d' % (sMASK, sT3))
        E('s_cbranch_scc1 L_got%d_%d' % (t, k))
        E('buffer_load_dword v%d, v%d, %s, 0 offen sc1' % (vT2, vFo, sr(R_WS)))
        E('s_add_u32 s%d, s%d, 1' % (sSPIN, sSPIN))
        E('s_cmp_gt_u32 s%d, 0x8000' % sSPIN)
        E('s_cbranch_scc1 L_got%d_%d' % (t, k))
        E('s_waitcnt vmcnt(0)')
        E('v_cmp_ne_u32 vcc, 0, v%d' % vT2)
        E('s_nop 1')
        E('s_mov_b32 s%d, vcc_lo' % sMASK)
        E('s_branch L_poll%d_%d' % (t, k))
        L('L_got%d_%d' % (t, k))
        E('s_add_u32 s%d, s%d, s%d' % (sT2, sT1, sT3))
        E('s_mul_i32 s%d, s%d, %d' % (sT2, sT2, PIECE))
        for j in range(NL):
            E('buffer_load_dwordx4 %s, v%d, %s, s%d offen offset:%d sc1' % (vr(vRX + ((t * nsrc + k) * NL + j) * 4), vXc, sr(R_WS), sT2, j * 1024))
        if t == 3:
            L('L_skip%d' % k)
for m in range(4):
    E('v_lshlrev_b32 v%d, 16, v%d' % (vXW + m, vXW + m))
    E('v_lshlrev_b32 v%d, 16, v%d' % (vWW + m, vWW + m))
E('v_mul_f32 v%d, v%d, v%d' % (vT0, vXW, vWW))
for m in range(1, 4):
    E('v_fmac_f32 v%d, v%d, v%d' % (vT0, vXW + m, vWW + m))
def lane_reduce(v, tmp):
    E('v_mov_b32 v%d, v%d' % (tmp, v))
    E('s_nop 1')
    E('v_permlane32_swap_b32 v%d, v%d' % (v, tmp))
    E('s_nop 1')
    E('v_add_f32 v%d, v%d, v%d' % (v, v, tmp))
    E('v_mov_b32 v%d, v%d' % (tmp, v))
    E('s_nop 1')
    E('v_permlane16_swap_b32 v%d, v%d' % (v, tmp))
    E('s_nop 1')
    E('v_add_f32 v%d, v%d, v%d' % (v, v, tmp))
def rbf(v):
    E('v_cvt_pk_bf16_f32 v%d, v%d, v%d' % (v, v, v))
    E('v_lshlrev_b32 v%d, 16, v%d' % (v, v))
lane_reduce(vT0, vT1)
rbf(vT0)
E('v_lshlrev_b32 v%d, 16, v%d' % (vSC, vSC))
E('v_lshlrev_b32 v%d, 16, v%d' % (vSC + 1, vSC + 1))
E('v_add_f32 v%d, v%d, v%d' % (vT0, vT0, vSC))
rbf(vT0)
vBf, vWf = vACC + 8, vACC + 16
for t in range(2):
    for d in range(2):
        E('v_lshlrev_b32 v%d, 16, v%d' % (vBf + 4 * t + 2 * d, vB1v + 2 * t + d))
        E('v_and_b32 v%d, 0xffff0000, v%d' % (vBf + 4 * t + 2 * d + 1, vB1v + 2 * t + d))
        E('v_lshlrev_b32 v%d, 16, v%d' % (vWf + 4 * t + 2 * d, vW2v + 2 * t + d))
        E('v_and_b32 v%d, 0xffff0000, v%d' % (vWf + 4 * t + 2 * d + 1, vW2v + 2 * t + d))
E('s_waitcnt vmcnt(0) lgkmcnt(0)')
ts(5)
for sidx in range(4 * nsrc):
    if BF:
        b = vRX + sidx * 4
        for d in range(4):
            E('v_lshlrev_b32 v%d, 16, v%d' % (vT1, b + d))
            E('v_and_b32 v%d, 0xffff0000, v%d' % (vT2, b + d))
            E('v_add_f32 v%d, v%d, v%d' % (vS + 2 * d, vS + 2 * d, vT1))
            E('v_add_f32 v%d, v%d, v%d' % (vS + 2 * d + 1, vS + 2 * d + 1, vT2))
    else:
        b = vRX + sidx * 8
        for r in range(8):
            E('v_add_f32 v%d, v%d, v%d' % (vS + r, vS + r, b + r))
E('v_mov_b32 v%d, 0' % vT1)
for r in range(8):
    rbf(vS + r)
    E('v_add_f32 v%d, v%d, v%d' % (vS + r, vS + r, vBf + r))
    rbf(vS + r)
    E('v_cmp_lt_f32 vcc, 0, v%d' % (vS + r))
    E('s_nop 1')
    E('v_cndmask_b32 v%d, 0, 1.0, vcc' % vT2)
    E('v_mul_f32 v%d, v%d, v%d' % (vS + r, vS + r, vT2))
    E('v_fmac_f32 v%d, v%d, v%d' % (vT1, vS + r, vWf + r))
lane_reduce(vT1, vT2)
E('v_and_b32 v%d, 15, v%d' % (vT2, vL))
E('v_lshlrev_b32 v%d, 5, v%d' % (vT2, vT2))
E('s_lshl_b32 s%d, s%d, 2' % (sT2, sW))
E('v_add_u32 v%d, s%d, v%d' % (vT3, sT2, vT2))
E('s_mov_b64 exec, 0xffff')
E('ds_write_b32 v%d, v%d offset:32768' % (vT3, vT1))
E('s_waitcnt lgkmcnt(0)')
E('s_barrier')
E('s_cmp_lg_u32 s%d, 0' % sW)
E('s_cbranch_scc1 L_end')
E('ds_read_b128 %s, v%d offset:32768' % (vr(vS), vT2))
E('ds_read_b128 %s, v%d offset:32784' % (vr(vS + 4), vT2))
E('s_waitcnt lgkmcnt(0)')
for r in range(1, 8):
    E('v_add_f32 v%d, v%d, v%d' % (vS, vS, vS + r))
rbf(vS)
E('v_add_f32 v%d, v%d, v%d' % (vS, vS, vSC + 1))
rbf(vS)
E('v_add_f32 v%d, v%d, v%d' % (vS, vS, vT0))
rbf(vS)
E('v_mul_f32 v%d, 0xbfb8aa3b, v%d' % (vS, vS))
E('v_exp_f32 v%d, v%d' % (vS, vS))
E('s_nop 0')
E('v_add_f32 v%d, 1.0, v%d' % (vS, vS))
E('v_rcp_f32 v%d, v%d' % (vS, vS))
E('s_nop 0')
E('v_cvt_pk_bf16_f32 v%d, v%d, v%d' % (vS, vS, vS))
E('v_lshlrev_b32 v%d, 1, v%d' % (vT2, vL))
E('s_lshl_b32 s%d, s%d, 5' % (sT2, sT0))
E('buffer_store_short v%d, v%d, %s, s%d offen' % (vS, vT2, sr(R_T1), sT2))
if TS:
    ts(6)
    E('s_waitcnt lgkmcnt(0)')
    E('s_mov_b64 exec, 1')
    E('s_lshl_b32 s%d, s2, 6' % sT2)
    E('s_add_u32 s%d, s%d, 0x%x' % (sT2, sT2, TSOFF))
    E('v_mov_b32 v%d, 0' % vT2)
    for i in range(7):
        E('v_mov_b32 v%d, s%d' % (vS, sTS + 2 * i))
        E('v_mov_b32 v%d, s%d' % (vS + 1, sTS + 2 * i + 1))
        E('buffer_store_dwordx2 %s, v%d, %s, s%d offen offset:%d' % (vr(vS, 2), vT2, sr(R_WS), sT2, 8 * i))
        E('s_nop 1')
L('L_end')
E('s_endpgm')
nv = (vEND + 7) & ~7
out.append('.section .rodata,"a"')
out.append('.p2align 6')
out.append('.amdhsa_kernel ' + KN)
out.append('  .amdhsa_next_free_vgpr %d' % nv)
out.append('  .amdhsa_next_free_sgpr 96')
out.append('  .amdhsa_accum_offset %d' % nv)
out.append('  .amdhsa_group_segment_fixed_size 0')
out.append('  .amdhsa_kernarg_size 96')
out.append('  .amdhsa_user_sgpr_count 2')
out.append('  .amdhsa_user_sgpr_kernarg_segment_ptr 1')
out.append('  .amdhsa_system_sgpr_workgroup_id_x 1')
out.append('  .amdhsa_float_denorm_mode_32 3')
out.append('.end_amdhsa_kernel')
open(sys.argv[1], 'w').write('\n'.join(out) + '\n')
print('vgprs', vEND, 'lds', LDS_BYTES, 'lines', len(out))
```

```python
import sys

P = dict(CFG='C8', XFMT='f32', TS=0, RA=3, RW=6, NOMF=0, NODMA=0, NORD=0, DBGTS=0)
for a in sys.argv[2:]:
    k, v = a.split('=')
    P[k] = int(v) if v.lstrip('-').isdigit() else v
CFG, XFMT, TS = P['CFG'], P['XFMT'], P['TS']
C8 = CFG == 'C8'
BF = XFMT == 'bf16'
NT = 4 if C8 else 2
KK = 1 if C8 else 2
RA, RW = P['RA'], P['RW']
if not C8 and 'RA' not in [a.split('=')[0] for a in sys.argv[2:]]:
    RA, RW = 5, 4
NSTEP = 25
NACH = 13 if C8 else 25
ABASE = 0
WBASE = RA * 16384
LDS_BYTES = (RA + RW) * 16384
NST = (NT // 2) if BF else NT
PIECE = NST * 4096
FLG = 48 << 20
TSOFF = 56 << 20
WS_BYTES = 64 << 20

out = []
def E(s=''):
    out.append('    ' + s if s and not s.endswith(':') else s)
def L(s):
    out.append(s + ':')

sKA = 0
sWG = 2
R_TAB, R_W1, R_IDX, R_WS, R_T0, R_T1 = 28, 32, 36, 40, 44, 48
sW, sMT, sME, sMH, sQ, sWOFF, sWso, sWsoH, sT0, sT1, sT2, sT3, sCNT, sPREV, sB, sNH, sMASK, sGRP, sSPIN = range(52, 71)
sTS = 72
vL = 1
vT0, vT1, vT2, vT3 = 2, 3, 4, 5
vWd = [6, 7]
NIDX = 12 if C8 else 24
vIDX = [8, 8 + NIDX + 4]
vNEXT = vIDX[1] + NIDX + 4
vB0, vB1, vBh = vNEXT, vNEXT + 1, vNEXT + 2
vWa = [vNEXT + 4 + i for i in range(NT)]
vWb = [vNEXT + 8 + i for i in range(NT)]
vBb0, vBb1 = vNEXT + 12, vNEXT + 13
vNEXT += 16
vB1v = vNEXT
vW2v = vNEXT + 4
vXW = vNEXT + 8
vWW = vNEXT + 12
vRDY = vNEXT + 16
vSC = vNEXT + 18
vXo = vNEXT + 20
vXc = vNEXT + 21
vFo = vNEXT + 22
vONE = vNEXT + 23
vNEXT += 24
vNEXT = (vNEXT + 3) & ~3
vACC = vNEXT
NACC = 4 * NT * 4
vFR = vACC + NACC
FRSZ = (4 * KK + NT * KK) * 4
vEND = vFR + 2 * FRSZ
def acc(sb, nt): return vACC + (sb * NT + nt) * 4
def frB(p, sb, kk): return vFR + p * FRSZ + (kk * 4 + sb) * 4
def frW(p, nt, kk): return vFR + p * FRSZ + 16 * KK + (kk * NT + nt) * 4
def vr(b, n=4): return 'v[%d:%d]' % (b, b + n - 1)
def sr(b, n=4): return 's[%d:%d]' % (b, b + n - 1)
vRX = vFR

def ts(i):
    if TS:
        E('s_memrealtime s[%d:%d]' % (sTS + 2 * i, sTS + 2 * i + 1))
        if i == 2: E('s_memtime s[88:89]')
        if i == 3: E('s_memtime s[90:91]')

def srd(r, p, nbytes):
    E('s_mov_b32 s%d, s%d' % (r, p))
    E('s_and_b32 s%d, s%d, 0xffff' % (r + 1, p + 1))
    E('s_mov_b32 s%d, 0x%x' % (r + 2, nbytes))
    E('s_mov_b32 s%d, 0x00020000' % (r + 3))

vmq = []
def vm(tag): vmq.append(tag)
def wait_for(tags):
    last = -1
    for i, t in enumerate(vmq):
        if t in tags: last = i
    if last < 0: return None
    return len(vmq) - 1 - last

hdr = open('standalone__deep_cross_wide_deep__recsys.s.ref').read().split('\n')
for line in hdr:
    if line.startswith('; @launch'):
        out.append('; @launch grid=(256,1,1) block=(512,1,1) lds=%d' % LDS_BYTES)
    elif line.startswith(';'):
        out.append(line)
    else:
        break
out.append('; generated: ' + ' '.join('%s=%s' % kv for kv in sorted(P.items())))
out.append('.amdgcn_target "amdgcn-amd-amdhsa--gfx950"')
out.append('.text')
KN = 'standalone__deep_cross_wide_deep__recsys_kernel'
out.append('.globl ' + KN)
out.append('.p2align 8')
out.append('.type %s,@function' % KN)
L(KN)
E('s_cmp_ge_u32 s2, 256')
E('s_cbranch_scc1 L_end')
E('s_load_dwordx16 s[4:19], s[0:1], 0')
E('s_load_dwordx8 s[20:27], s[0:1], 64')
ts(0)
E('v_lshrrev_b32 v%d, 6, v0' % vT0)
E('v_and_b32 v%d, 63, v0' % vL)
E('v_readfirstlane_b32 s%d, v%d' % (sW, vT0))
if C8:
    E('s_and_b32 s%d, s2, 7' % sME)
    E('s_lshr_b32 s%d, s2, 3' % sMT)
    E('s_mov_b32 s%d, 0' % sNH)
else:
    E('s_lshr_b32 s%d, s2, 3' % sT0)
    E('s_and_b32 s%d, s%d, 1' % (sNH, sT0))
    E('s_lshr_b32 s%d, s%d, 1' % (sMT, sT0))
    E('s_bfe_u32 s%d, s2, 0x10002' % sT1)
    E('s_lshl_b32 s%d, s%d, 4' % (sT1, sT1))
    E('s_add_u32 s%d, s%d, s%d' % (sMT, sMT, sT1))
    E('s_and_b32 s%d, s2, 3' % sT2)
    E('s_lshl_b32 s%d, s%d, 2' % (sME, sNH))
    E('s_add_u32 s%d, s%d, s%d' % (sME, sME, sT2))
E('s_and_b32 s%d, s%d, 3' % (sB, sME))
E('s_lshr_b32 s%d, s%d, 2' % (sMH, sW))
E('s_and_b32 s%d, s%d, 3' % (sQ, sW))
E('s_lshl_b32 s%d, s%d, 11' % (sWOFF, sW))
E('s_lshl_b32 s%d, s%d, 3' % (sGRP, sMT))
if C8:
    E('s_mul_i32 s%d, s%d, 800' % (sT0, sME))
    E('s_and_b32 s%d, s%d, 1' % (sT1, sME))
    E('s_lshl_b32 s%d, s%d, 5' % (sT2, sT1))
    E('s_add_u32 s%d, s%d, s%d' % (sT2, sT2, sT0))
    E('s_lshl_b32 s%d, s%d, 9' % (sWso, sT2))
    E('s_cmp_eq_u32 s%d, 0' % sT1)
    E('s_cselect_b32 s%d, 768, 0' % sT3)
    E('s_add_u32 s%d, s%d, s%d' % (sT3, sT3, sT0))
    E('s_lshl_b32 s%d, s%d, 9' % (sWsoH, sT3))
    E('s_lshr_b32 s%d, s%d, 6' % (sT2, sT2))
    E('s_lshr_b32 s%d, s%d, 6' % (sT3, sT3))
    E('s_lshl_b32 s%d, s%d, 2' % (sT2, sT2))
    E('s_lshl_b32 s%d, s%d, 2' % (sT3, sT3))
else:
    E('s_mul_i32 s%d, s%d, 25' % (sT2, sB))
    E('s_lshl_b32 s%d, s%d, 15' % (sWso, sT2))
    E('s_lshl_b32 s%d, s%d, 2' % (sT2, sT2))
    E('s_add_u32 s%d, s%d, 96' % (sT3, sT2))
    E('s_mov_b32 s%d, 0' % sT1)
E('v_lshrrev_b32 v%d, 3, v%d' % (vT0, vL))
E('s_lshl_b32 s%d, s%d, 7' % (sT0, sMT))
E('s_lshl_b32 s%d, s%d, 4' % (sCNT, sW))
E('s_add_u32 s%d, s%d, s%d' % (sT0, sT0, sCNT))
E('v_add_u32 v%d, s%d, v%d' % (vT0, sT0, vT0))
E('v_mul_u32_u24 v%d, 400, v%d' % (vT0, vT0))
if C8:
    E('v_lshrrev_b32 v%d, 5, v%d' % (vT1, vL))
    E('s_bfe_u32 s%d, s%d, 0x10001' % (sCNT, sW))
    E('s_lshl_b32 s%d, s%d, 3' % (sCNT, sCNT))
    E('v_lshlrev_b32 v%d, 1, v%d' % (vT2, vT1))
    E('v_or_b32 v%d, s%d, v%d' % (vT2, sCNT, vT2))
    E('v_and_b32 v%d, 31, v%d' % (vT3, vL))
    E('v_xor_b32 v%d, v%d, v%d' % (vT2, vT2, vT3))
    E('v_lshlrev_b32 v%d, 9, v%d' % (vT1, vT1))
    E('v_add_u32 v%d, s%d, v%d' % (vT1, sWOFF, vT1))
    E('v_lshl_add_u32 v%d, v%d, 4, v%d' % (vWd[0], vT2, vT1))
    E('v_xor_b32 v%d, 4, v%d' % (vT2, vT2))
    E('v_lshl_add_u32 v%d, v%d, 4, v%d' % (vWd[1], vT2, vT1))
    E('v_add_u32 v%d, 1024, v%d' % (vWd[1], vWd[1]))
else:
    E('v_lshrrev_b32 v%d, 4, v%d' % (vT1, vL))
    E('s_and_b32 s%d, s%d, 1' % (sCNT, sW))
    E('s_lshl_b32 s%d, s%d, 3' % (sCNT, sCNT))
    E('v_lshlrev_b32 v%d, 1, v%d' % (vT2, vT1))
    E('v_or_b32 v%d, s%d, v%d' % (vT2, sCNT, vT2))
    E('v_and_b32 v%d, 15, v%d' % (vT3, vL))
    E('v_xor_b32 v%d, v%d, v%d' % (vT2, vT2, vT3))
    E('v_lshlrev_b32 v%d, 9, v%d' % (vT1, vT1))
    E('s_lshl_b32 s%d, s%d, 12' % (sCNT, sW))
    E('s_lshl_b32 s%d, s%d, 8' % (sPREV, sNH))
    E('s_add_u32 s%d, s%d, s%d' % (sCNT, sCNT, sPREV))
    E('v_add_u32 v%d, s%d, v%d' % (vT1, sCNT, vT1))
    E('v_lshl_add_u32 v%d, v%d, 4, v%d' % (vWd[0], vT2, vT1))
    E('v_add_u32 v%d, 2048, v%d' % (vWd[1], vWd[0]))
E('s_waitcnt lgkmcnt(0)')
srd(R_IDX, 4, 4096 * 400)
srd(R_W1, 14, 6400 * 512)
for i in range(2):
    for c in range(NIDX // 4):
        E('buffer_load_dwordx4 %s, v%d, %s, s%d offen offset:%d' % (vr(vIDX[i] + 4 * c), vT0, sr(R_IDX), sT2, i * 3200 + c * 16))
        vm('idx')
    E('buffer_load_dword v%d, v%d, %s, s%d offen offset:%d' % (vIDX[i] + NIDX, vT0, sr(R_IDX), sT3, i * 3200))
    vm('idx')

def wslot(u): return WBASE + (u % RW) * 16384
def aslot(c): return ABASE + (c % RA) * 16384
WSTEP = 16384 if C8 else 32768
def dmaW(u, i):
    E('s_add_u32 m0, s%d, 0x%x' % (sWOFF, wslot(u) + i * 1024))
    so = sWsoH if (C8 and u == 24) else sWso
    if i == 0:
        E('s_nop 0')
    else:
        E('s_nop 0')
    E('buffer_load_dwordx4 v%d, %s, s%d offen lds' % (vWd[i], sr(R_W1), so))
    vm(('W', u))
    if i == 1:
        E('s_add_u32 s%d, s%d, 0x%x' % (sWso, sWso, WSTEP))
def dmaA(c, i):
    E('s_add_u32 m0, s%d, 0x%x' % (sWOFF, aslot(c) + i * 1024))
    E('s_nop 0')
    E('buffer_load_dwordx4 v%d, %s, 0 offen lds' % (vIDX[i] + c, sr(R_TAB)))
    vm(('A', c))

NW0 = 2 if C8 else 2
for u in range(NW0):
    dmaW(u, 0); dmaW(u, 1)
srd(R_TAB, 6, 100000 * 128)
srd(R_WS, 26, WS_BYTES)
E('s_add_u32 s%d, s%d, s%d' % (sT0, sGRP, sME))
E('s_lshl_b32 s%d, s%d, 7' % (sCNT, sT0))
E('s_add_u32 s%d, s%d, 0x%x' % (sCNT, sCNT, FLG))
E('s_lshl_b32 s%d, s%d, 4' % (sPREV, sW))
E('s_add_u32 s%d, s%d, s%d' % (sPREV, sPREV, sCNT))
E('v_mov_b32 v%d, 0' % vT1)
E('v_lshlrev_b32 v%d, 2, v%d' % (vT2, vL))
E('s_mov_b64 exec, 15')
E('buffer_store_dword v%d, v%d, %s, s%d offen sc1' % (vT1, vT2, sr(R_WS), sPREV))
vm('clr')
E('s_mov_b64 exec, -1')
E('v_and_b32 v%d, 7, v%d' % (vFo, vL))
E('v_lshlrev_b32 v%d, 4, v%d' % (vFo, vFo))
E('s_lshl_b32 s%d, s%d, 2' % (sPREV, sQ))
E('s_add_u32 s%d, s%d, s%d' % (sPREV, sPREV, sCNT))
E('v_add_u32 v%d, s%d, v%d' % (vFo, sPREV, vFo))
E('v_and_b32 v%d, 15, v%d' % (vT1, vL))
E('v_lshrrev_b32 v%d, 4, v%d' % (vT2, vL))
E('v_lshrrev_b32 v%d, 1, v%d' % (vT3, vT1))
E('v_xor_b32 v%d, v%d, v%d' % (vT3, vT3, vT2))
E('v_lshlrev_b32 v%d, 4, v%d' % (vT3, vT3))
E('v_lshl_add_u32 v%d, v%d, 7, v%d' % (vB0, vT1, vT3))
E('s_lshl_b32 s%d, s%d, 13' % (sCNT, sMH))
E('v_add_u32 v%d, s%d, v%d' % (vB0, sCNT, vB0))
E('v_xor_b32 v%d, 64, v%d' % (vB1, vB0))
E('s_lshl_b32 s%d, s%d, 6' % (sCNT, sT1))
E('v_xor_b32 v%d, s%d, v%d' % (vBh, sCNT, vB0))
E('v_add_u32 v%d, 0x10000, v%d' % (vBb0, vB0))
E('v_add_u32 v%d, 0x10000, v%d' % (vBb1, vB1))
ROWB = 512 if C8 else 256
E('v_bfe_u32 v%d, v%d, 2, 2' % (vT1, vL))
E('v_and_b32 v%d, 1, v%d' % (vT3, vT2))
E('v_lshl_or_b32 v%d, v%d, 2, v%d' % (vT3, vT3, vT1))
E('v_lshl_add_u32 v%d, v%d, 3, v%d' % (vT1, vT2, vT1))
E('v_lshlrev_b32 v%d, %d, v%d' % (vT1, 9 if C8 else 8, vT1))
E('v_and_b32 v%d, 3, v%d' % (vT2, vL))
E('v_lshl_add_u32 v%d, v%d, 3, v%d' % (vT1, vT2, vT1))
E('v_add_u32 v%d, 0x%x, v%d' % (vT1, WBASE, vT1))
E('s_mul_i32 s%d, s%d, %d' % (sCNT, sQ, NT))
for nt in range(NT):
    E('s_add_u32 s%d, s%d, %d' % (sPREV, sCNT, nt))
    E('v_xor_b32 v%d, s%d, v%d' % (vT2, sPREV, vT3))
    E('v_lshl_add_u32 v%d, v%d, 5, v%d' % (vWa[nt], vT2, vT1))
    E('v_add_u32 v%d, 0x10000, v%d' % (vWb[nt], vWa[nt]))
E('v_lshrrev_b32 v%d, 4, v%d' % (vT1, vL))
E('v_and_b32 v%d, 7, v%d' % (vT2, vL))
E('v_xor_b32 v%d, v%d, v%d' % (vT1, vT1, vT2))
E('v_lshlrev_b32 v%d, 4, v%d' % (vT1, vT1))
E('v_xor_b32 v%d, 64, v%d' % (vT2, vT1))
for r in range(NACC):
    E('v_mov_b32 v%d, 0' % (vACC + r))
E('s_waitcnt vmcnt(%d)' % wait_for(['idx']))
ts(1)
for i in range(2):
    for c in range(NIDX + 1):
        E('v_lshl_or_b32 v%d, v%d, 7, v%d' % (vIDX[i] + c, vIDX[i] + c, vT1 if i == 0 else vT2))
NA0 = RA
for c in range(NA0):
    dmaA(c, 0); dmaA(c, 1)
    if c == 0:
        pass
for u in range(NW0, RW):
    dmaW(u, 0); dmaW(u, 1)
srd(R_T0, 16, 512)
srd(R_T1, 18, 512)
if C8:
    E('s_lshl_b32 s%d, s%d, 7' % (sCNT, sQ))
    E('s_lshl_b32 s%d, s%d, 6' % (sPREV, sMH))
else:
    E('s_lshl_b32 s%d, s%d, 6' % (sCNT, sQ))
    E('s_lshl_b32 s%d, s%d, 8' % (sPREV, sMH))
E('s_add_u32 s%d, s%d, s%d' % (sCNT, sCNT, sPREV))
E('v_lshrrev_b32 v%d, 4, v%d' % (vT0, vL))
E('v_lshlrev_b32 v%d, 3, v%d' % (vT0, vT0))
for t in range(2):
    E('buffer_load_dwordx2 %s, v%d, %s, s%d offen offset:%d' % (vr(vB1v + 2 * t, 2), vT0, sr(R_T0), sCNT, 32 * t)); vm('ep')
    E('buffer_load_dwordx2 %s, v%d, %s, s%d offen offset:%d' % (vr(vW2v + 2 * t, 2), vT0, sr(R_T1), sCNT, 32 * t)); vm('ep')
E('s_nop 0')
srd(R_T0, 8, 4096 * 26 + 64)
srd(R_T1, 10, 64)
E('v_and_b32 v%d, 15, v%d' % (vT1, vL))
E('s_lshl_b32 s%d, s%d, 4' % (sCNT, sT0))
E('v_add_u32 v%d, s%d, v%d' % (vT1, sCNT, vT1))
E('v_mul_u32_u24 v%d, 26, v%d' % (vT1, vT1))
E('v_lshrrev_b32 v%d, 2, v%d' % (vT0, vT0))
E('v_add_u32 v%d, v%d, v%d' % (vT1, vT1, vT0))
for m in range(4):
    if m == 3:
        E('v_mov_b32 v%d, 0' % (vXW + 3))
        E('v_mov_b32 v%d, 0' % (vWW + 3))
        E('s_mov_b64 exec, 0xffff')
    E('buffer_load_ushort v%d, v%d, %s, 0 offen offset:%d' % (vXW + m, vT1, sr(R_T0), 8 * m)); vm('ep')
    E('buffer_load_ushort v%d, v%d, %s, 0 offen offset:%d' % (vWW + m, vT0, sr(R_T1), 8 * m)); vm('ep')
E('s_mov_b64 exec, -1')
E('s_nop 0')
srd(R_T0, 12, 64)
srd(R_T1, 20, 64)
E('v_mov_b32 v%d, 0' % vT2)
E('buffer_load_ushort v%d, v%d, %s, 0 offen' % (vSC, vT2, sr(R_T0))); vm('ep')
E('buffer_load_ushort v%d, v%d, %s, 0 offen' % (vSC + 1, vT2, sr(R_T1))); vm('ep')
E('s_nop 0')
srd(R_T0, 24, 512)
srd(R_T1, 22, 16384)
E('v_lshlrev_b32 v%d, 4, v%d' % (vXo, vL))
E('s_mul_i32 s%d, s%d, %d' % (sCNT, sQ, PIECE // 4))
E('v_add_u32 v%d, s%d, v%d' % (vXo, sCNT, vXo))
if C8:
    E('s_mul_i32 s%d, s%d, %d' % (sCNT, sMH, PIECE // 8))
    E('v_add_u32 v%d, s%d, v%d' % (vXc, sCNT, vXo))
else:
    E('v_mov_b32 v%d, v%d' % (vXc, vXo))
E('v_mov_b32 v%d, 1' % vONE)

def achunk(u): return (u >> 1) if C8 else u
def frag_reads(u):
    p = u & 1
    l = []
    c = achunk(u)
    for kk in range(KK):
        for nt in range(NT):
            s = u % RW
            base = vWa[nt] if s < 4 else vWb[nt]
            so = (s % 4) * 16384
            for h in range(2):
                off = so + h * 4 * ROWB + kk * 32 * ROWB
                l.append('ds_read_b64_tr_b16 %s, v%d offset:%d' % (vr(frW(p, nt, kk) + 2 * h, 2), base, off))
        for sb in range(4):
            s = c % RA
            if C8:
                base = vBh if u == 24 else (vB1 if (u & 1) else vB0)
                assert s < 4
            else:
                base = ([vB0, vB1] if s < 4 else [vBb0, vBb1])[kk]
            l.append('ds_read_b128 %s, v%d offset:%d' % (vr(frB(p, sb, kk)), base, (s % 4) * 16384 + sb * 2048))
    return l

def need(u): return [('W', u), ('A', achunk(u))]

E('s_waitcnt vmcnt(%d)' % wait_for(need(0)))
E('s_barrier')
ts(2)
for s in frag_reads(0): E(s)

for u in range(NSTEP):
    p = u & 1
    E('; ---- step %d' % u)
    if u + 1 < NSTEP:
        n = wait_for(need(u + 1))
        if n is None: n = 63
        E('s_waitcnt vmcnt(%d) lgkmcnt(0)' % n)
        E('s_barrier')
    else:
        E('s_waitcnt lgkmcnt(0)')
        E('s_barrier')
    reads = frag_reads(u + 1) if (u + 1 < NSTEP and not P['NORD']) else []
    dmas = []
    if u + RW < NSTEP:
        dmas += [('W', u + RW, 0), ('W', u + RW, 1)]
    if C8:
        if u >= 1:
            c = (u - 1) >> 1
            if c + RA < NACH:
                dmas.insert(0, ('A', c + RA, (u - 1) & 1))
    else:
        if u + RA < NACH:
            dmas = [('A', u + RA, 0), ('A', u + RA, 1)] + dmas
    mf = []
    for kk in range(KK):
        for sb in range(4):
            for nt in range(NT):
                mf.append('v_mfma_f32_16x16x32_bf16 %s, %s, %s, %s' % (vr(acc(sb, nt)), vr(frW(p, nt, kk)), vr(frB(p, sb, kk)), vr(acc(sb, nt))))
    dpos = {}
    if dmas:
        for k, d in enumerate(dmas):
            dpos[1 + k * (15 // len(dmas))] = d
    ri = 0
    for m in range(16):
        if not P['NOMF']: E(mf[m])
        if m in dpos and not P['NODMA']:
            d = dpos[m]
            (dmaW if d[0] == 'W' else dmaA)(d[1], d[2])
        if ri < len(reads):
            E(reads[ri]); ri += 1
    while ri < len(reads):
        E(reads[ri]); ri += 1
    if u == 3:
        assert wait_for(['clr']) > 0
        E('s_cmp_lg_u32 s%d, 0' % sW)
        E('s_cbranch_scc1 L_nordy')
        if P['DBGTS']:
            E('s_lshl_b32 s%d, s%d, 2' % (sT2, sMT))
            E('s_add_u32 s%d, s%d, 128' % (sT2, sT2))
            E('v_mov_b32 v%d, s%d' % (vT0, sT2))
            E('s_lshl_b32 s%d, 1, s%d' % (sT2, sME))
            E('v_mov_b32 v%d, s%d' % (vT1, sT2))
            E('s_mov_b64 exec, 1')
            E('buffer_atomic_or v%d, v%d, %s, 0 offen sc1' % (vT1, vT0, sr(R_T0)))
            E('s_mov_b64 exec, -1')
        else:
            E('v_mov_b32 v%d, s%d' % (vT0, sT0))
            E('s_mov_b64 exec, 1')
            E('buffer_store_byte v%d, v%d, %s, 0 offen sc1' % (vONE, vT0, sr(R_T0)))
            E('s_mov_b64 exec, -1')
        L('L_nordy')
    if u == 21:
        if P['DBGTS']:
            E('s_lshl_b32 s%d, s%d, 2' % (sT2, sMT))
            E('s_add_u32 s%d, s%d, 128' % (sT2, sT2))
            E('v_mov_b32 v%d, s%d' % (vT0, sT2))
        else:
            E('v_mov_b32 v%d, s%d' % (vT0, sGRP))
        E('buffer_load_dwordx2 %s, v%d, %s, 0 offen sc1' % (vr(vRDY, 2), vT0, sr(R_T0))); vm('rdy')
ts(3)
E('s_mov_b32 s%d, 0' % sSPIN)
E('s_waitcnt vmcnt(0)')
L('L_rdychk')
if P['DBGTS']:
    E('v_mov_b32 v%d, v%d' % (vT1, vRDY))
else:
    E('v_and_b32 v%d, v%d, v%d' % (vT1, vRDY, vRDY + 1))
E('s_nop 0')
E('v_readfirstlane_b32 s%d, v%d' % (sT2, vT1))
E('s_cmp_eq_u32 s%d, %s' % (sT2, '0xff' if P['DBGTS'] else '0x01010101'))
E('s_cbranch_scc1 L_rdyok')
E('s_add_u32 s%d, s%d, 1' % (sSPIN, sSPIN))
E('s_cmp_gt_u32 s%d, 0x8000' % sSPIN)
E('s_cbranch_scc1 L_rdyok')
E('s_sleep 2')
E('buffer_load_dwordx2 %s, v%d, %s, 0 offen sc1' % (vr(vRDY, 2), vT0, sr(R_T0)))
E('s_waitcnt vmcnt(0)')
E('s_branch L_rdychk')
L('L_rdyok')
E('s_mov_b32 s%d, 0' % sCNT)
E('s_lshl_b32 s%d, s%d, 2' % (sT1, sMH))
E('s_add_u32 s%d, s%d, s%d' % (sT1, sT1, sGRP))
E('s_lshl_b32 s%d, s%d, 2' % (sT2, sME))
E('s_add_u32 s%d, s%d, s%d' % (sT2, sT2, sQ))
E('s_lshl_b32 s%d, s%d, 2' % (sT2, sT2))
E('v_mov_b32 v%d, s%d' % (vT3, sT2))
E('s_cmp_eq_u32 s%d, 0' % sB)
E('s_cbranch_scc1 L_blk1')
E('s_cmp_eq_u32 s%d, 1' % sB)
E('s_cbranch_scc1 L_blk2')
E('s_cmp_eq_u32 s%d, 2' % sB)
E('s_cbranch_scc1 L_blk3')
def flag_prev():
    E('s_lshl_b32 s%d, s%d, 7' % (sT2, sPREV))
    E('s_add_u32 s%d, s%d, 0x%x' % (sT2, sT2, FLG))
    E('s_mov_b64 exec, 1')
    E('buffer_store_dword v%d, v%d, %s, s%d offen sc1' % (vONE, vT3, sr(R_WS), sT2))
    E('s_mov_b64 exec, -1')
for pos in range(7):
    X = pos & 3
    L('L_blk%d' % pos)
    E('s_add_u32 s%d, s%d, %d' % (sT3, sT1, X))
    E('s_cmp_eq_u32 s%d, s%d' % (sT3, sT0))
    E('s_cbranch_scc1 L_own%d' % X)
    E('s_lshl_b32 s%d, s%d, 3' % (sT2, sT3))
    E('s_add_u32 s%d, s%d, s%d' % (sT2, sT2, sME))
    E('s_mul_i32 s%d, s%d, %d' % (sT2, sT2, PIECE))
    if BF:
        for pr in range(NT // 2):
            d = vRX + 8 * (pos & 1) + 4 * pr
            for t in range(2):
                a = acc(X, 2 * pr + t)
                E('v_cvt_pk_bf16_f32 v%d, v%d, v%d' % (d + 2 * t, a, a + 1))
                E('v_cvt_pk_bf16_f32 v%d, v%d, v%d' % (d + 2 * t + 1, a + 2, a + 3))
            E('buffer_store_dwordx4 %s, v%d, %s, s%d offen offset:%d sc1' % (vr(d), vXo, sr(R_WS), sT2, pr * 1024))
    else:
        for nt in range(NT):
            E('buffer_store_dwordx4 %s, v%d, %s, s%d offen offset:%d sc1' % (vr(acc(X, nt)), vXo, sr(R_WS), sT2, nt * 1024))
    E('s_cmp_eq_u32 s%d, 0' % sCNT)
    E('s_cbranch_scc1 L_nf%d' % pos)
    E('s_waitcnt vmcnt(%d)' % NST)
    flag_prev()
    L('L_nf%d' % pos)
    E('s_mov_b32 s%d, s%d' % (sPREV, sT3))
    E('s_add_u32 s%d, s%d, 1' % (sCNT, sCNT))
    E('s_cmp_eq_u32 s%d, 4' % sCNT)
    E('s_cbranch_scc1 L_stdone')
E('s_branch L_stdone')
for X in range(4):
    L('L_own%d' % X)
    E('v_lshlrev_b32 v%d, 4, v%d' % (vT1, vL))
    E('s_mul_i32 s%d, s%d, %d' % (sT2, sQ, NT * 1024))
    E('v_add_u32 v%d, s%d, v%d' % (vT1, sT2, vT1))
    for nt in range(NT):
        E('ds_write_b128 v%d, %s offset:%d' % (vT1, vr(acc(X, nt)), nt * 1024))
    if X < 3:
        E('s_branch L_stdone')
L('L_stdone')
E('s_waitcnt vmcnt(0) lgkmcnt(0)')
flag_prev()
ts(4)
E('s_barrier')
vS = vACC
E('v_lshlrev_b32 v%d, 4, v%d' % (vT1, vL))
if C8:
    E('s_lshl_b32 s%d, s%d, 12' % (sT2, sQ))
    E('s_lshl_b32 s%d, s%d, 11' % (sT3, sMH))
    E('s_add_u32 s%d, s%d, s%d' % (sT2, sT2, sT3))
    E('v_add_u32 v%d, s%d, v%d' % (vT1, sT2, vT1))
    E('ds_read_b128 %s, v%d' % (vr(vS), vT1))
    E('ds_read_b128 %s, v%d offset:1024' % (vr(vS + 4), vT1))
else:
    E('s_lshl_b32 s%d, s%d, 11' % (sT2, sQ))
    E('v_add_u32 v%d, s%d, v%d' % (vT1, sT2, vT1))
    for r in range(8):
        E('v_mov_b32 v%d, 0' % (vS + r))
    E('s_cmp_lg_u32 s%d, s%d' % (sMH, sNH))
    E('s_cbranch_scc1 L_noown')
    E('ds_read_b128 %s, v%d' % (vr(vS), vT1))
    E('ds_read_b128 %s, v%d offset:1024' % (vr(vS + 4), vT1))
    L('L_noown')
NL = 1 if BF else 2
nsrc = 2 if C8 else 1
for k in range(nsrc):
    for r in range(4 * NL):
        E('v_mov_b32 v%d, 0' % (vRX + ((3 * nsrc + k) * NL) * 4 + r))
E('s_mov_b32 s%d, 0' % sMASK)
E('s_lshl_b32 s%d, s%d, 3' % (sT1, sT0))
for t in range(4):
    for k in range(nsrc):
        E('s_sub_u32 s%d, s%d, %d' % (sT3, sB, t + 1))
        E('s_and_b32 s%d, s%d, 3' % (sT3, sT3))
        if C8:
            if k: E('s_add_u32 s%d, s%d, 4' % (sT3, sT3))
        else:
            E('s_lshl_b32 s%d, s%d, 2' % (sT2, sMH))
            E('s_add_u32 s%d, s%d, s%d' % (sT3, sT3, sT2))
        if t == 3:
            E('s_cmp_eq_u32 s%d, s%d' % (sT3, sME))
            E('s_cbranch_scc1 L_skip%d' % k)
        L('L_poll%d_%d' % (t, k))
        E('s_bitcmp1_b32 s%d, s%d' % (sMASK, sT3))
        E('s_cbranch_scc1 L_got%d_%d' % (t, k))
        E('buffer_load_dword v%d, v%d, %s, 0 offen sc1' % (vT2, vFo, sr(R_WS)))
        E('s_add_u32 s%d, s%d, 1' % (sSPIN, sSPIN))
        E('s_cmp_gt_u32 s%d, 0x8000' % sSPIN)
        E('s_cbranch_scc1 L_got%d_%d' % (t, k))
        E('s_waitcnt vmcnt(0)')
        E('v_cmp_ne_u32 vcc, 0, v%d' % vT2)
        E('s_nop 1')
        E('s_mov_b32 s%d, vcc_lo' % sMASK)
        E('s_branch L_poll%d_%d' % (t, k))
        L('L_got%d_%d' % (t, k))
        E('s_add_u32 s%d, s%d, s%d' % (sT2, sT1, sT3))
        E('s_mul_i32 s%d, s%d, %d' % (sT2, sT2, PIECE))
        for j in range(NL):
            E('buffer_load_dwordx4 %s, v%d, %s, s%d offen offset:%d sc1' % (vr(vRX + ((t * nsrc + k) * NL + j) * 4), vXc, sr(R_WS), sT2, j * 1024))
        if t == 3:
            L('L_skip%d' % k)
for m in range(4):
    E('v_lshlrev_b32 v%d, 16, v%d' % (vXW + m, vXW + m))
    E('v_lshlrev_b32 v%d, 16, v%d' % (vWW + m, vWW + m))
E('v_mul_f32 v%d, v%d, v%d' % (vT0, vXW, vWW))
for m in range(1, 4):
    E('v_fmac_f32 v%d, v%d, v%d' % (vT0, vXW + m, vWW + m))
def lane_reduce(v, tmp):
    E('v_mov_b32 v%d, v%d' % (tmp, v))
    E('s_nop 1')
    E('v_permlane32_swap_b32 v%d, v%d' % (v, tmp))
    E('s_nop 1')
    E('v_add_f32 v%d, v%d, v%d' % (v, v, tmp))
    E('v_mov_b32 v%d, v%d' % (tmp, v))
    E('s_nop 1')
    E('v_permlane16_swap_b32 v%d, v%d' % (v, tmp))
    E('s_nop 1')
    E('v_add_f32 v%d, v%d, v%d' % (v, v, tmp))
def rbf(v):
    E('v_cvt_pk_bf16_f32 v%d, v%d, v%d' % (v, v, v))
    E('v_lshlrev_b32 v%d, 16, v%d' % (v, v))
lane_reduce(vT0, vT1)
rbf(vT0)
E('v_lshlrev_b32 v%d, 16, v%d' % (vSC, vSC))
E('v_lshlrev_b32 v%d, 16, v%d' % (vSC + 1, vSC + 1))
E('v_add_f32 v%d, v%d, v%d' % (vT0, vT0, vSC))
rbf(vT0)
vBf, vWf = vACC + 8, vACC + 16
for t in range(2):
    for d in range(2):
        E('v_lshlrev_b32 v%d, 16, v%d' % (vBf + 4 * t + 2 * d, vB1v + 2 * t + d))
        E('v_and_b32 v%d, 0xffff0000, v%d' % (vBf + 4 * t + 2 * d + 1, vB1v + 2 * t + d))
        E('v_lshlrev_b32 v%d, 16, v%d' % (vWf + 4 * t + 2 * d, vW2v + 2 * t + d))
        E('v_and_b32 v%d, 0xffff0000, v%d' % (vWf + 4 * t + 2 * d + 1, vW2v + 2 * t + d))
E('s_waitcnt vmcnt(0) lgkmcnt(0)')
ts(5)
for sidx in range(4 * nsrc):
    if BF:
        b = vRX + sidx * 4
        for d in range(4):
            E('v_lshlrev_b32 v%d, 16, v%d' % (vT1, b + d))
            E('v_and_b32 v%d, 0xffff0000, v%d' % (vT2, b + d))
            E('v_add_f32 v%d, v%d, v%d' % (vS + 2 * d, vS + 2 * d, vT1))
            E('v_add_f32 v%d, v%d, v%d' % (vS + 2 * d + 1, vS + 2 * d + 1, vT2))
    else:
        b = vRX + sidx * 8
        for r in range(8):
            E('v_add_f32 v%d, v%d, v%d' % (vS + r, vS + r, b + r))
E('v_mov_b32 v%d, 0' % vT1)
for r in range(8):
    rbf(vS + r)
    E('v_add_f32 v%d, v%d, v%d' % (vS + r, vS + r, vBf + r))
    rbf(vS + r)
    E('v_cmp_lt_f32 vcc, 0, v%d' % (vS + r))
    E('s_nop 1')
    E('v_cndmask_b32 v%d, 0, 1.0, vcc' % vT2)
    E('v_mul_f32 v%d, v%d, v%d' % (vS + r, vS + r, vT2))
    E('v_fmac_f32 v%d, v%d, v%d' % (vT1, vS + r, vWf + r))
lane_reduce(vT1, vT2)
E('v_and_b32 v%d, 15, v%d' % (vT2, vL))
E('v_lshlrev_b32 v%d, 5, v%d' % (vT2, vT2))
E('s_lshl_b32 s%d, s%d, 2' % (sT2, sW))
E('v_add_u32 v%d, s%d, v%d' % (vT3, sT2, vT2))
E('s_mov_b64 exec, 0xffff')
E('ds_write_b32 v%d, v%d offset:32768' % (vT3, vT1))
E('s_waitcnt lgkmcnt(0)')
E('s_barrier')
E('s_cmp_lg_u32 s%d, 0' % sW)
E('s_cbranch_scc1 L_end')
E('ds_read_b128 %s, v%d offset:32768' % (vr(vS), vT2))
E('ds_read_b128 %s, v%d offset:32784' % (vr(vS + 4), vT2))
E('s_waitcnt lgkmcnt(0)')
for r in range(1, 8):
    E('v_add_f32 v%d, v%d, v%d' % (vS, vS, vS + r))
rbf(vS)
E('v_add_f32 v%d, v%d, v%d' % (vS, vS, vSC + 1))
rbf(vS)
E('v_add_f32 v%d, v%d, v%d' % (vS, vS, vT0))
rbf(vS)
E('v_mul_f32 v%d, 0xbfb8aa3b, v%d' % (vS, vS))
E('v_exp_f32 v%d, v%d' % (vS, vS))
E('s_nop 0')
E('v_add_f32 v%d, 1.0, v%d' % (vS, vS))
E('v_rcp_f32 v%d, v%d' % (vS, vS))
E('s_nop 0')
E('v_cvt_pk_bf16_f32 v%d, v%d, v%d' % (vS, vS, vS))
E('v_lshlrev_b32 v%d, 1, v%d' % (vT2, vL))
E('s_lshl_b32 s%d, s%d, 5' % (sT2, sT0))
E('buffer_store_short v%d, v%d, %s, s%d offen' % (vS, vT2, sr(R_T1), sT2))
if TS:
    ts(6)
    E('s_waitcnt lgkmcnt(0)')
    E('s_mov_b64 exec, 1')
    E('s_lshl_b32 s%d, s2, 6' % sT2)
    E('s_add_u32 s%d, s%d, 0x%x' % (sT2, sT2, TSOFF))
    E('v_mov_b32 v%d, 0' % vT2)
    E('s_sub_u32 s86, s90, s88')
    E('s_subb_u32 s87, s91, s89')
    for i in range(8):
        E('v_mov_b32 v%d, s%d' % (vS, sTS + 2 * i))
        E('v_mov_b32 v%d, s%d' % (vS + 1, sTS + 2 * i + 1))
        E('buffer_store_dwordx2 %s, v%d, %s, s%d offen offset:%d' % (vr(vS, 2), vT2, sr(R_WS), sT2, 8 * i))
        E('s_nop 1')
if P['DBGTS']:
    E('s_waitcnt lgkmcnt(0)')
    E('s_mov_b64 exec, 1')
    E('v_mov_b32 v%d, 0' % vT2)
    E('s_not_b32 s%d, s%d' % (sT2, sTS))
    E('v_mov_b32 v%d, s%d' % (vS, sT2))
    E('buffer_atomic_umax v%d, v%d, %s, 0 offen sc1' % (vS, vT2, sr(R_T0)))
    for i in range(0, 7):
        E('v_mov_b32 v%d, s%d' % (vS + 1 + i, sTS + 2 * i))
        E('buffer_atomic_umax v%d, v%d, %s, 0 offen offset:%d sc1' % (vS + 1 + i, vT2, sr(R_T0), 4 * (i + 1)))
    E('s_cmp_lg_u32 s2, 100')
    E('s_cbranch_scc1 L_end')
    for i in range(1, 7):
        E('s_sub_u32 s%d, s%d, s%d' % (sT2, sTS + 2 * i, sTS))
        E('v_mov_b32 v%d, s%d' % (vS + 8 + i, sT2))
        E('buffer_store_dword v%d, v%d, %s, 0 offen offset:%d sc1' % (vS + 8 + i, vT2, sr(R_T0), 4 * (i + 8)))
    E('s_sub_u32 s%d, s90, s88' % sT2)
    E('v_mov_b32 v%d, s%d' % (vS + 8, sT2))
    E('buffer_store_dword v%d, v%d, %s, 0 offen offset:%d sc1' % (vS + 8, vT2, sr(R_T0), 4 * 15))
L('L_end')
E('s_endpgm')
nv = (vEND + 7) & ~7
out.append('.section .rodata,"a"')
out.append('.p2align 6')
out.append('.amdhsa_kernel ' + KN)
out.append('  .amdhsa_next_free_vgpr %d' % nv)
out.append('  .amdhsa_next_free_sgpr 96')
out.append('  .amdhsa_accum_offset %d' % nv)
out.append('  .amdhsa_group_segment_fixed_size 0')
out.append('  .amdhsa_kernarg_size 96')
out.append('  .amdhsa_user_sgpr_count 2')
out.append('  .amdhsa_user_sgpr_kernarg_segment_ptr 1')
out.append('  .amdhsa_system_sgpr_workgroup_id_x 1')
out.append('  .amdhsa_float_denorm_mode_32 3')
out.append('.end_amdhsa_kernel')
open(sys.argv[1], 'w').write('\n'.join(out) + '\n')
print('vgprs', vEND, 'lds', LDS_BYTES, 'lines', len(out))
```

```python
import sys, copy
P = dict(XFMT='f32', TS=0, RA=6, RW=4, PF=1, LPRIO=2, COOP=1, SLP=8, NOMF=0, NORD=0, ORD='AAWW', PH=0, Q=8, Q0=12, FG=2, IDXL=1, PFPOS=0)
for a in sys.argv[2:]:
    k, v = a.split('=')
    P[k] = int(v) if v.lstrip('-').isdigit() else v
BF = P['XFMT'] == 'bf16'
TS = P['TS']
RA, RW = P['RA'], P['RW']
NSTEP = 25
WBASE = 0
ABASE = RW * 16384
LDS_BYTES = (RA + RW) * 16384
NST = 1 if BF else 2
PIECE = NST * 4096
TSOFF = 56 << 20
WS_BYTES = 64 << 20
out = []
INC = [False]
def E(s=''):
    if P['NOMF'] and s.startswith('v_mfma'): return
    if P['NORD'] and INC[0] and s.startswith('ds_read'): return
    out.append('    ' + s)
def L(s): out.append(s + ':')
def vr(b, n=4): return 'v[%d:%d]' % (b, b + n - 1)
def sr(b, n=4): return 's[%d:%d]' % (b, b + n - 1)
R_TAB, R_W1, R_IDX, R_WS, R_T0, R_T1, R_T2 = 28, 32, 36, 40, 44, 48, 96
sW, sMT, sME, sQ, sLOFF, sWp, sWm, sT0, sT1, sT2, sT3, sSELF, sPREV, sMASK, sGRP, sSPIN, sNH, sFB, sKQ, sFLG = range(52, 72)
sTS = 72
sW0 = 94
def ts(i):
    if TS:
        E('s_memrealtime s[%d:%d]' % (sTS + 2 * i, sTS + 2 * i + 1))
        if i == 2: E('s_memtime s[88:89]')
        if i == 3: E('s_memtime s[90:91]')
def srd(r, p, nbytes):
    E('s_mov_b32 s%d, s%d' % (r, p))
    E('s_and_b32 s%d, s%d, 0xffff' % (r + 1, p + 1))
    E('s_mov_b32 s%d, 0x%x' % (r + 2, nbytes))
    E('s_mov_b32 s%d, 0x00020000' % (r + 3))
def ts_store(role):
    E('s_waitcnt lgkmcnt(0)')
    E('s_mov_b64 exec, 1')
    E('s_lshl_b32 s%d, s2, 7' % sT2)
    E('s_add_u32 s%d, s%d, 0x%x' % (sT2, sT2, TSOFF + role * 64))
    E('v_mov_b32 v2, 0')
    E('s_sub_u32 s86, s90, s88')
    E('s_subb_u32 s87, s91, s89')
    for i in range(8):
        E('v_mov_b32 v4, s%d' % (sTS + 2 * i))
        E('v_mov_b32 v5, s%d' % (sTS + 2 * i + 1))
        E('buffer_store_dwordx2 v[4:5], v2, %s, s%d offen offset:%d' % (sr(R_WS), sT2, 8 * i))
        E('s_nop 1')
hdr = open('standalone__deep_cross_wide_deep__recsys.s.ref').read().split('\n')
for line in hdr:
    if line.startswith('; @launch'):
        out.append('; @launch grid=(256,1,1) block=(512,1,1) lds=%d' % LDS_BYTES)
    elif line.startswith(';'):
        out.append(line)
    else:
        break
out.append('; generated v2-style v4: ' + ' '.join('%s=%s' % kv for kv in sorted(P.items())))
out.append('.amdgcn_target "amdgcn-amd-amdhsa--gfx950"')
out.append('.text')
KN = 'standalone__deep_cross_wide_deep__recsys_kernel'
out += ['.globl ' + KN, '.p2align 8', '.type %s,@function' % KN]
L(KN)
E('s_cmp_ge_u32 s2, 256')
E('s_cbranch_scc1 L_end')
E('s_load_dwordx16 s[4:19], s[0:1], 0')
E('s_load_dwordx8 s[20:27], s[0:1], 64')
if TS:
    for i in range(1, 8): E('s_mov_b64 s[%d:%d], 0' % (sTS + 2 * i, sTS + 2 * i + 1))
    E('s_mov_b64 s[88:89], 0'); E('s_mov_b64 s[90:91], 0')
ts(0)
vL = 1
E('v_lshrrev_b32 v2, 6, v0')
E('v_and_b32 v%d, 63, v0' % vL)
E('v_readfirstlane_b32 s%d, v2' % sW)
E('s_lshr_b32 s%d, s2, 3' % sT0)
E('s_and_b32 s%d, s%d, 1' % (sNH, sT0))
E('s_lshr_b32 s%d, s%d, 1' % (sMT, sT0))
E('s_bfe_u32 s%d, s2, 0x10002' % sT1)
E('s_lshl_b32 s%d, s%d, 4' % (sT1, sT1))
E('s_add_u32 s%d, s%d, s%d' % (sMT, sMT, sT1))
E('s_and_b32 s%d, s2, 3' % sKQ)
E('s_lshl_b32 s%d, s%d, 2' % (sME, sNH))
E('s_add_u32 s%d, s%d, s%d' % (sME, sME, sKQ))
E('s_lshl_b32 s%d, s%d, 3' % (sGRP, sMT))
E('s_add_u32 s%d, s%d, s%d' % (sSELF, sGRP, sME))
E('s_and_b32 s%d, s%d, 3' % (sQ, sW))
E('s_cmp_lt_u32 s%d, 4' % sW)
E('s_cbranch_scc1 L_compute')
def wslot(u): return WBASE + (u % RW) * 16384
def aslot(c): return ABASE + (c % RA) * 16384
OWNOFF, SCROFF = 0, 16384
def need_at(b):
    u = b + 1
    return [('W', u), ('A', u)] if u < NSTEP else []

vT0, vT1, vT2, vT3 = 2, 3, 4, 5
vWd = [6, 7, 8, 9]
vIDX = [12 + 28 * i for i in range(4)]
vB1v, vW2v, vXW, vWW, vSC, vFo, vXc, vONE = 124, 132, 140, 144, 148, 150, 151, 152
vS = 156
vRX = 176
vBf, vWf = 12, 28
vmq = []
def vm(t): vmq.append(t)
def wait_for(tags, cnt):
    last = -1
    for t in tags:
        if isinstance(t, tuple): assert vmq.count(t) == cnt, ('needed DMA not issued', t, vmq.count(t))
    for i, t in enumerate(vmq):
        if t in tags: last = i
    return min(len(vmq) - 1 - last, 63)
if P['LPRIO']: E('s_setprio %d' % P['LPRIO'])
E('s_mul_i32 s%d, s%d, 25' % (sFB, sKQ))
E('s_lshl_b32 s%d, s%d, 15' % (sW0, sFB))
E('s_lshl_b32 s%d, s%d, 16' % (sT0, sNH))
if not P['COOP']: E('s_mov_b32 s%d, 0' % sT0)
E('s_add_u32 s%d, s%d, s%d' % (sWp, sW0, sT0))
E('s_sub_u32 s%d, s%d, s%d' % (sWm, sW0, sT0))
E('s_lshl_b32 s%d, s%d, 2' % (sFB, sFB))
E('s_lshl_b32 s%d, s%d, 12' % (sLOFF, sQ))
E('v_lshrrev_b32 v%d, 3, v%d' % (vT2, vL))
for j in range(2):
    E('s_lshl_b32 s%d, s%d, 1' % (sT0, sQ))
    E('s_add_u32 s%d, s%d, s%d' % (sT0, sT0, sME))
    E('s_add_u32 s%d, s%d, %d' % (sT0, sT0, 1 + j))
    E('s_and_b32 s%d, s%d, 7' % (sT0, sT0))
    E('s_add_u32 s%d, s%d, s%d' % (sT0, sT0, sGRP))
    E('s_lshl_b32 s%d, s%d, 4' % (sT0, sT0))
    E('v_add_u32 v%d, s%d, v%d' % (vT0 + j, sT0, vT2))
    E('v_mul_u32_u24 v%d, 400, v%d' % (vT0 + j, vT0 + j))
if P['IDXL']:
    E('v_and_b32 v10, 7, v%d' % vL)
    for j in range(2): E('v_lshl_add_u32 v%d, v10, 4, v%d' % (vT0 + j, vT0 + j))
    E('v_add_u32 v%d, 3200, v%d' % (vS, vT0))
    E('v_add_u32 v%d, 3200, v%d' % (vS + 1, vT1))
E('v_lshrrev_b32 v%d, 4, v%d' % (vT2, vL))
E('v_lshlrev_b32 v%d, 1, v%d' % (vT3, vT2))
E('v_and_b32 v10, 15, v%d' % vL)
E('v_xor_b32 v%d, v%d, v10' % (vT3, vT3))
E('v_lshlrev_b32 v%d, 9, v%d' % (vT2, vT2))
E('s_lshl_b32 s%d, s%d, 13' % (sT0, sQ))
E('s_lshl_b32 s%d, s%d, 8' % (sT1, sNH))
E('s_add_u32 s%d, s%d, s%d' % (sT0, sT0, sT1))
E('v_add_u32 v%d, s%d, v%d' % (vT2, sT0, vT2))
E('v_lshl_add_u32 v%d, v%d, 4, v%d' % (vWd[0], vT3, vT2))
E('v_add_u32 v%d, 2048, v%d' % (vWd[1], vWd[0]))
E('v_xor_b32 v%d, 8, v%d' % (vT3, vT3))
E('v_lshl_add_u32 v%d, v%d, 4, v%d' % (vWd[2], vT3, vT2))
E('v_add_u32 v%d, 4096, v%d' % (vWd[2], vWd[2]))
E('v_add_u32 v%d, 2048, v%d' % (vWd[3], vWd[2]))
E('s_waitcnt lgkmcnt(0)')
srd(R_IDX, 4, 4096 * 400)
srd(R_W1, 14, 6400 * 512)
IDXL_OFF = aslot(RA - 1)
if P['IDXL']:
    for i in range(4):
        E('s_add_u32 m0, s%d, 0x%x' % (sLOFF, IDXL_OFF + i * 1024))
        E('s_nop 0')
        E('buffer_load_dwordx4 v%d, %s, s%d offen lds' % ([vT0, vS, vT1, vS + 1][i], sr(R_IDX), sFB)); vm('idx0')
else:
    for c in range(7):
        for i in range(4):
            if c < 6:
                E('buffer_load_dwordx4 %s, v%d, %s, s%d offen offset:%d' % (vr(vIDX[i] + 4 * c), vT0 + (i >> 1), sr(R_IDX), sFB, (i & 1) * 3200 + c * 16))
            else:
                E('buffer_load_dword v%d, v%d, %s, s%d offen offset:%d' % (vIDX[i] + 24, vT0 + (i >> 1), sr(R_IDX), sFB, (i & 1) * 3200 + 96))
            vm('idx0' if c == 0 else 'idx')
def dmaW(u, i):
    if i == 0:
        base = sW0 if u == 24 else (sWp if ((u >> 1) & 1) == 0 else sWm)
        E('s_add_u32 s%d, s%d, 0x%x' % (sT3, base, u * 32768))
    E('s_add_u32 m0, s%d, 0x%x' % (sLOFF, wslot(u) + i * 1024))
    E('s_nop 0')
    E('buffer_load_dwordx4 v%d, %s, s%d offen lds' % (vWd[i], sr(R_W1), sT3)); vm(('W', u))
def dmaA(c, i):
    E('s_add_u32 m0, s%d, 0x%x' % (sLOFF, aslot(c) + i * 1024))
    E('s_nop 0')
    E('buffer_load_dwordx4 v%d, %s, 0 offen lds' % (vIDX[i] + c, sr(R_TAB))); vm(('A', c))
def chunk(k, c):
    for i in range(4): (dmaW if k == 'W' else dmaA)(c, i)
chunk('W', 0)
def wpf():
    if not P['PF']: return
    E('v_lshlrev_b32 v%d, 4, v%d' % (vT2, vL))
    E('s_lshl_b32 s%d, s%d, 10' % (sT0, sQ))
    E('v_add_u32 v%d, s%d, v%d' % (vT2, sT0, vT2))
    E('s_lshr_b32 s%d, s2, 3' % sT0)
    E('s_mul_i32 s%d, s%d, 25600' % (sT0, sT0))
    E('s_add_u32 s%d, s%d, s%d' % (sT0, sT0, sW0))
    for j in range(7):
        if j == 6:
            E('v_cmp_gt_u32 vcc, 1024, v%d' % vT2)
            E('v_mov_b32 v%d, 0x40000000' % (vS + 2))
            E('s_nop 0')
            E('v_cndmask_b32 v%d, v%d, v%d, vcc' % (vT2, vS + 2, vT2))
        E('buffer_load_dwordx4 %s, v%d, %s, s%d offen' % (vr(vRX + 4 * j), vT2, sr(R_W1), sT0)); vm('pf')
        if j < 6: E('s_add_u32 s%d, s%d, 4096' % (sT0, sT0))
if P['PFPOS'] == 0: wpf()
srd(R_TAB, 6, 100000 * 128)
srd(R_WS, 26, WS_BYTES)
srd(R_T0, 24, 512)
srd(R_T1, 22, 16384)
E('s_lshl_b32 s%d, s%d, 3' % (sFLG, sSELF))
E('s_add_u32 s%d, s%d, s%d' % (sFLG, sFLG, sME))
E('s_mul_i32 s%d, s%d, %d' % (sFLG, sFLG, PIECE))
E('s_lshl_b32 s%d, s%d, 8' % (sT0, sQ))
E('s_add_u32 s%d, s%d, s%d' % (sT0, sT0, sFLG))
E('v_mov_b32 v%d, 0' % vT2)
E('v_lshlrev_b32 v%d, 7, v%d' % (vT3, vL))
E('s_mov_b64 exec, 3')
E('buffer_store_dword v%d, v%d, %s, s%d offen sc1' % (vT2, vT3, sr(R_WS), sT0)); vm('clr')
E('s_mov_b64 exec, -1')
E('v_and_b32 v%d, 7, v%d' % (vFo, vL))
E('v_lshlrev_b32 v%d, 7, v%d' % (vFo, vFo))
E('v_add_u32 v%d, s%d, v%d' % (vFo, sFLG, vFo))
E('v_lshlrev_b32 v%d, 4, v%d' % (vXc, vL))
E('s_mul_i32 s%d, s%d, %d' % (sT0, sQ, PIECE // 4))
E('v_add_u32 v%d, s%d, v%d' % (vXc, sT0, vXc))
E('v_mov_b32 v%d, 1' % vONE)
E('v_lshrrev_b32 v10, 4, v%d' % vL)
E('v_and_b32 v11, 7, v%d' % vL)
E('v_xor_b32 v10, v10, v11')
E('v_lshlrev_b32 v10, 4, v10')
E('v_xor_b32 v11, 64, v10')
def conv(cs, tag):
    if P['COOP']:
        E('s_cmp_eq_u32 s%d, 0' % sNH)
        E('s_cbranch_scc1 L_nosw%s' % tag)
        for i in range(4):
            for c in cs:
                if c % 4 < 2 and c < 24:
                    E('v_swap_b32 v%d, v%d' % (vIDX[i] + c, vIDX[i] + c + 2))
        L('L_nosw%s' % tag)
    for c in cs:
        for i in range(4):
            E('v_lshl_or_b32 v%d, v%d, 7, v%d' % (vIDX[i] + c, vIDX[i] + c, 10 + (i & 1)))
E('s_waitcnt vmcnt(%d)' % wait_for(['idx0'], 0))
ts(1)
if P['IDXL']:
    E('v_lshrrev_b32 v%d, 3, v%d' % (vT2, vL))
    E('v_lshlrev_b32 v%d, 7, v%d' % (vT2, vT2))
    E('v_add_u32 v%d, s%d, v%d' % (vT2, sLOFF, vT2))
    E('v_add_u32 v%d, 0x%x, v%d' % (vT2, IDXL_OFF, vT2))
    for c in range(7):
        for i in range(4):
            if c < 6: E('ds_read_b128 %s, v%d offset:%d' % (vr(vIDX[i] + 4 * c), vT2, i * 1024 + c * 16))
            else: E('ds_read_b32 v%d, v%d offset:%d' % (vIDX[i] + 24, vT2, i * 1024 + 96))
        if c == 0:
            E('s_waitcnt lgkmcnt(0)')
            conv(range(4), 'a')
            chunk('A', 0)
    chunk('A', 1)
    E('s_waitcnt lgkmcnt(0)')
    conv(range(4, 25), 'b')
else:
    conv(range(4), 'a')
    chunk('A', 0); chunk('A', 1)
    E('s_waitcnt vmcnt(%d)' % wait_for(['idx'], 0))
    conv(range(4, 25), 'b')
if P['PFPOS'] == 1: wpf()
def earliest(k, ch):
    R = RW if k == 'W' else RA
    return -1 if ch < R else ch - R
order = []
if P['ORD'] == 'AAWW':
    order = [('W', 1)]
    for p in range(1, 13):
        order += [('A', c) for c in (2 * p, 2 * p + 1) if c < 25] + [('W', c) for c in (2 * p, 2 * p + 1) if c < 25]
elif P['ORD'] == 'A2':
    order = [('W', 1), ('A', 2), ('A', 3)]
    for p in range(1, 13):
        order += [('A', c) for c in (2 * p + 2, 2 * p + 3) if c < 25] + [('W', c) for c in (2 * p, 2 * p + 1) if c < 25]
else:
    order = [('W', 1)]
    for c in range(2, 25): order += [('A', c), ('W', c)]
pend = list(order)
def loader_loop(var):
    for b in range(-1, NSTEP):
        nd = need_at(b)
        while any(vmq.count(t) < 4 for t in nd):
            d = pend[0]
            if earliest(*d) > b - 1:
                d = [x for x in pend if x in nd][0]
                assert earliest(*d) <= b - 1
            pend.remove(d); chunk(*d)
        if nd: E('s_waitcnt vmcnt(%d)' % wait_for(nd, 4))
        E('s_barrier')
        if b == -1: ts(2)
        q = (P['Q0'] if b < 4 else P['Q']) // 4
        n = 0
        while pend and n < q:
            d = pend[0]
            if earliest(*d) > b: break
            if d[0] == 'A' and len(pend) > 1 and pend[1][0] == 'A' and d[1] % 2 == 0 and earliest(*pend[1]) > b: break
            pend.pop(0); chunk(*d); n += 1
        if b == 2:
            E('s_cmp_lg_u32 s%d, 0' % sQ)
            E('s_cbranch_scc1 L_nordy%d' % var)
            E('v_mov_b32 v%d, s%d' % (vT0, sSELF))
            E('s_mov_b64 exec, 1')
            E('buffer_store_byte v%d, v%d, %s, 0 offen sc1' % (vONE, vT0, sr(R_T0)))
            E('s_mov_b64 exec, -1')
            L('L_nordy%d' % var)
        if b == NSTEP - 4: small_loads()
def small_loads():
    srd(R_IDX, 16, 512); srd(R_T2, 18, 512)
    E('s_lshl_b32 s%d, s%d, 6' % (sT0, sQ))
    E('v_lshrrev_b32 v%d, 4, v%d' % (vT0, vL))
    E('v_lshlrev_b32 v%d, 3, v%d' % (vT0, vT0))
    for t in range(4):
        off = 256 * (t >> 1) + 32 * (t & 1)
        E('buffer_load_dwordx2 %s, v%d, %s, s%d offen offset:%d' % (vr(vB1v + 2 * t, 2), vT0, sr(R_IDX), sT0, off)); vm('ep')
        E('buffer_load_dwordx2 %s, v%d, %s, s%d offen offset:%d' % (vr(vW2v + 2 * t, 2), vT0, sr(R_T2), sT0, off)); vm('ep')
    E('s_nop 0')
    srd(R_IDX, 8, 4096 * 26 + 64); srd(R_T2, 10, 64)
    E('v_and_b32 v%d, 15, v%d' % (vT1, vL))
    E('s_lshl_b32 s%d, s%d, 4' % (sT0, sSELF))
    E('v_add_u32 v%d, s%d, v%d' % (vT1, sT0, vT1))
    E('v_mul_u32_u24 v%d, 26, v%d' % (vT1, vT1))
    E('v_lshrrev_b32 v%d, 2, v%d' % (vT0, vT0))
    E('v_add_u32 v%d, v%d, v%d' % (vT1, vT1, vT0))
    for m in range(4):
        if m == 3:
            E('v_mov_b32 v%d, 0' % (vXW + 3)); E('v_mov_b32 v%d, 0' % (vWW + 3))
            E('s_mov_b64 exec, 0xffff')
        E('buffer_load_ushort v%d, v%d, %s, 0 offen offset:%d' % (vXW + m, vT1, sr(R_IDX), 8 * m)); vm('ep')
        E('buffer_load_ushort v%d, v%d, %s, 0 offen offset:%d' % (vWW + m, vT0, sr(R_T2), 8 * m)); vm('ep')
    E('s_mov_b64 exec, -1')
    E('s_nop 0')
    srd(R_IDX, 12, 64); srd(R_T2, 20, 64)
    E('v_mov_b32 v%d, 0' % vT2)
    E('buffer_load_ushort v%d, v%d, %s, 0 offen' % (vSC, vT2, sr(R_IDX))); vm('ep')
    E('buffer_load_ushort v%d, v%d, %s, 0 offen' % (vSC + 1, vT2, sr(R_T2))); vm('ep')
loader_loop(0)
assert not pend, pend
ts(3)
def lane_reduce(v, tmp):
    E('v_mov_b32 v%d, v%d' % (tmp, v)); E('s_nop 1')
    E('v_permlane32_swap_b32 v%d, v%d' % (v, tmp)); E('s_nop 1')
    E('v_add_f32 v%d, v%d, v%d' % (v, v, tmp))
    E('v_mov_b32 v%d, v%d' % (tmp, v)); E('s_nop 1')
    E('v_permlane16_swap_b32 v%d, v%d' % (v, tmp)); E('s_nop 1')
    E('v_add_f32 v%d, v%d, v%d' % (v, v, tmp))
def rbf(v):
    E('v_cvt_pk_bf16_f32 v%d, v%d, v%d' % (v, v, v))
    E('v_lshlrev_b32 v%d, 16, v%d' % (v, v))
E('s_waitcnt vmcnt(0)')
for m in range(4):
    E('v_lshlrev_b32 v%d, 16, v%d' % (vXW + m, vXW + m))
    E('v_lshlrev_b32 v%d, 16, v%d' % (vWW + m, vWW + m))
E('v_mul_f32 v%d, v%d, v%d' % (vT0, vXW, vWW))
for m in range(1, 4): E('v_fmac_f32 v%d, v%d, v%d' % (vT0, vXW + m, vWW + m))
lane_reduce(vT0, vT1)
rbf(vT0)
E('v_lshlrev_b32 v%d, 16, v%d' % (vSC, vSC))
E('v_lshlrev_b32 v%d, 16, v%d' % (vSC + 1, vSC + 1))
E('v_add_f32 v%d, v%d, v%d' % (vT0, vT0, vSC))
rbf(vT0)
for t in range(4):
    for d in range(2):
        E('v_lshlrev_b32 v%d, 16, v%d' % (vBf + 4 * t + 2 * d, vB1v + 2 * t + d))
        E('v_and_b32 v%d, 0xffff0000, v%d' % (vBf + 4 * t + 2 * d + 1, vB1v + 2 * t + d))
        E('v_lshlrev_b32 v%d, 16, v%d' % (vWf + 4 * t + 2 * d, vW2v + 2 * t + d))
        E('v_and_b32 v%d, 0xffff0000, v%d' % (vWf + 4 * t + 2 * d + 1, vW2v + 2 * t + d))
for r in range(8 * 4 * NST): E('v_mov_b32 v%d, 0' % (vRX + r))
E('s_mov_b32 s%d, 0' % sSPIN)
E('s_lshl_b32 s%d, 1, s%d' % (sMASK, sME))
E('s_lshl_b32 s%d, s%d, 3' % (sT1, sSELF))
FLDS = SCROFF + 1024
E('v_lshlrev_b32 v%d, 2, v%d' % (vT3, vL))
E('v_add_u32 v%d, 0x%x, v%d' % (vT3, FLDS, vT3))
E('v_mov_b32 v%d, 0' % vT2)
E('ds_write_b32 v%d, v%d' % (vT3, vT2))
E('s_mov_b32 m0, 0x%x' % FLDS)
E('s_waitcnt lgkmcnt(0)')
E('s_barrier')
L('L_rxloop')
E('s_cmp_lg_u32 s%d, 0' % sQ)
E('s_cbranch_scc1 L_nopoll')
E('s_not_b32 s%d, s%d' % (sT2, sMASK))
E('s_and_b32 exec_lo, s%d, 0xff' % sT2)
E('s_mov_b32 exec_hi, 0')
E('buffer_load_dword v%d, %s, 0 offen sc1 lds' % (vFo, sr(R_WS)))
E('s_mov_b64 exec, -1')
L('L_nopoll')
if P['SLP']: E('s_sleep %d' % P['SLP'])
E('ds_read_b32 v%d, v%d' % (vT2, vT3))
E('s_add_u32 s%d, s%d, 1' % (sSPIN, sSPIN))
E('s_cmp_gt_u32 s%d, 0x20000' % sSPIN)
E('s_cbranch_scc1 L_rxdone')
E('s_waitcnt vmcnt(30) lgkmcnt(0)')
E('v_cmp_ne_u32 vcc, 0, v%d' % vT2)
E('s_nop 1')
E('s_andn2_b32 s%d, vcc_lo, s%d' % (sPREV, sMASK))
E('s_cbranch_scc0 L_rxloop')
E('s_or_b32 s%d, s%d, s%d' % (sMASK, sMASK, sPREV))
for s_ in range(8):
    E('s_bitcmp1_b32 s%d, %d' % (sPREV, s_))
    E('s_cbranch_scc0 L_rxs%d' % s_)
    E('s_add_u32 s%d, s%d, %d' % (sT2, sT1, s_))
    E('s_mul_i32 s%d, s%d, %d' % (sT2, sT2, PIECE))
    for j in range(NST):
        E('buffer_load_dwordx4 %s, v%d, %s, s%d offen offset:%d sc1' % (vr(vRX + (s_ * NST + j) * 4), vXc, sr(R_WS), sT2, j * 1024))
    L('L_rxs%d' % s_)
E('s_cmp_lg_u32 s%d, 0xff' % sMASK)
E('s_cbranch_scc1 L_rxloop')
L('L_rxdone')
ts(4)
E('v_lshlrev_b32 v%d, 4, v%d' % (vT1, vL))
E('s_lshl_b32 s%d, s%d, 11' % (sT2, sQ))
E('v_add_u32 v%d, s%d, v%d' % (vT1, sT2, vT1))
for r in range(16): E('v_mov_b32 v%d, 0' % (vS + r))
E('s_cmp_eq_u32 s%d, 0' % sNH)
E('s_cbranch_scc0 L_own1')
for t in range(2): E('ds_read_b128 %s, v%d offset:%d' % (vr(vS + 4 * t), vT1, OWNOFF + t * 1024))
E('s_branch L_ownj')
L('L_own1')
for t in range(2): E('ds_read_b128 %s, v%d offset:%d' % (vr(vS + 8 + 4 * t), vT1, OWNOFF + t * 1024))
L('L_ownj')
E('s_waitcnt vmcnt(0) lgkmcnt(0)')
ts(5)
for s_ in range(8):
    o = vS + 8 * (s_ >> 2)
    if BF:
        b = vRX + s_ * 4
        for d in range(4):
            E('v_lshlrev_b32 v%d, 16, v%d' % (vT2, b + d))
            E('v_and_b32 v%d, 0xffff0000, v%d' % (vT3, b + d))
            E('v_pk_add_f32 %s, %s, %s' % (vr(o + 2 * d, 2), vr(o + 2 * d, 2), vr(vT2, 2)))
    else:
        b = vRX + s_ * 8
        for r in range(0, 8, 2):
            E('v_pk_add_f32 %s, %s, %s' % (vr(o + r, 2), vr(o + r, 2), vr(b + r, 2)))
E('v_mov_b32 v%d, 0' % vT1)
E('v_mov_b32 v%d, 0' % vT3)
for r in range(0, 16, 2):
    a, b = vS + r, vS + r + 1
    E('v_cvt_pk_bf16_f32 v%d, v%d, v%d' % (vT2, a, b))
    E('v_lshlrev_b32 v%d, 16, v%d' % (a, vT2))
    E('v_and_b32 v%d, 0xffff0000, v%d' % (b, vT2))
    E('v_pk_add_f32 %s, %s, %s' % (vr(a, 2), vr(a, 2), vr(vBf + r, 2)))
    E('v_cvt_pk_bf16_f32 v%d, v%d, v%d' % (vT2, a, b))
    E('v_lshlrev_b32 v%d, 16, v%d' % (a, vT2))
    E('v_and_b32 v%d, 0xffff0000, v%d' % (b, vT2))
    E('v_cmp_lt_f32 vcc, 0, v%d' % a)
    E('v_cmp_lt_f32 s[92:93], 0, v%d' % b)
    E('s_nop 0')
    E('v_cndmask_b32 v10, 0, 1.0, vcc')
    E('v_cndmask_b32 v11, 0, 1.0, s[92:93]')
    E('v_mul_f32 v%d, v%d, v10' % (a, a))
    E('v_mul_f32 v%d, v%d, v11' % (b, b))
    E('v_fmac_f32 v%d, v%d, v%d' % (vT1, a, vWf + r))
    E('v_fmac_f32 v%d, v%d, v%d' % (vT3, b, vWf + r + 1))
E('v_add_f32 v%d, v%d, v%d' % (vT1, vT1, vT3))
lane_reduce(vT1, vT2)
E('v_and_b32 v%d, 15, v%d' % (vT2, vL))
E('v_lshlrev_b32 v%d, 4, v%d' % (vT2, vT2))
E('s_lshl_b32 s%d, s%d, 2' % (sT2, sQ))
E('v_add_u32 v%d, s%d, v%d' % (vT3, sT2, vT2))
E('s_mov_b64 exec, 0xffff')
E('ds_write_b32 v%d, v%d offset:%d' % (vT3, vT1, SCROFF))
E('s_waitcnt lgkmcnt(0)')
E('s_barrier')
E('s_cmp_lg_u32 s%d, 0' % sQ)
E('s_cbranch_scc1 L_end')
E('ds_read_b128 %s, v%d offset:%d' % (vr(vS), vT2, SCROFF))
E('s_waitcnt lgkmcnt(0)')
E('v_add_f32 v%d, v%d, v%d' % (vS, vS, vS + 1))
E('v_add_f32 v%d, v%d, v%d' % (vS + 2, vS + 2, vS + 3))
E('v_add_f32 v%d, v%d, v%d' % (vS, vS, vS + 2))
rbf(vS)
E('v_add_f32 v%d, v%d, v%d' % (vS, vS, vSC + 1))
rbf(vS)
E('v_add_f32 v%d, v%d, v%d' % (vS, vS, vT0))
rbf(vS)
E('v_mul_f32 v%d, 0xbfb8aa3b, v%d' % (vS, vS))
E('v_exp_f32 v%d, v%d' % (vS, vS)); E('s_nop 0')
E('v_add_f32 v%d, 1.0, v%d' % (vS, vS))
E('v_rcp_f32 v%d, v%d' % (vS, vS)); E('s_nop 0')
E('v_cvt_pk_bf16_f32 v%d, v%d, v%d' % (vS, vS, vS))
E('v_lshlrev_b32 v%d, 1, v%d' % (vT2, vL))
E('s_lshl_b32 s%d, s%d, 5' % (sT2, sSELF))
E('buffer_store_short v%d, v%d, %s, s%d offen' % (vS, vT2, sr(R_T1), sT2))
if TS:
    ts(6); ts_store(0)
E('s_endpgm')

L('L_compute')
INC[0] = True
cXo, cT0, cT1, cT2, cONE = 2, 3, 4, 5, 6
cB = [[8, 9], [10, 11]]
cW = [12, 13]
cRDY = 14
cFO = 16
cFR = 20
cACC = 180
def acc(X, nt): return cACC + (X * 2 + nt) * 4
def frB(p, X, kk): return cFR + p * 80 + (kk * 8 + X) * 4
def frW(p, nt, kk): return cFR + p * 80 + 64 + (kk * 2 + nt) * 4
E('v_and_b32 v%d, 15, v%d' % (cT0, vL))
E('v_lshrrev_b32 v%d, 4, v%d' % (cT1, vL))
E('v_lshrrev_b32 v%d, 1, v%d' % (cT2, cT0))
E('v_xor_b32 v%d, v%d, v%d' % (cT2, cT2, cT1))
E('v_lshlrev_b32 v%d, 4, v%d' % (cT2, cT2))
E('v_lshl_add_u32 v%d, v%d, 7, v%d' % (cB[0][0], cT0, cT2))
E('v_add_u32 v%d, 0x%x, v%d' % (cB[0][0], ABASE, cB[0][0]))
E('v_xor_b32 v%d, 64, v%d' % (cB[0][1], cB[0][0]))
E('v_add_u32 v%d, 0x10000, v%d' % (cB[1][0], cB[0][0]))
E('v_add_u32 v%d, 0x10000, v%d' % (cB[1][1], cB[0][1]))
E('v_bfe_u32 v%d, v%d, 2, 2' % (cT0, vL))
E('v_and_b32 v%d, 1, v%d' % (cT2, cT1))
E('v_lshl_or_b32 v%d, v%d, 2, v%d' % (cT2, cT2, cT0))
E('v_lshl_add_u32 v%d, v%d, 3, v%d' % (cT0, cT1, cT0))
E('v_lshlrev_b32 v%d, 8, v%d' % (cT0, cT0))
E('v_and_b32 v%d, 3, v%d' % (cT1, vL))
E('v_lshl_add_u32 v%d, v%d, 3, v%d' % (cT0, cT1, cT0))
E('s_lshl_b32 s%d, s%d, 1' % (sT0, sQ))
for nt in range(2):
    E('s_add_u32 s%d, s%d, %d' % (sT1, sT0, nt))
    E('v_xor_b32 v%d, s%d, v%d' % (cT1, sT1, cT2))
    E('v_lshl_add_u32 v%d, v%d, 5, v%d' % (cW[nt], cT1, cT0))
E('v_lshlrev_b32 v%d, 4, v%d' % (cXo, vL))
E('s_mul_i32 s%d, s%d, %d' % (sT0, sQ, PIECE // 4))
E('v_add_u32 v%d, s%d, v%d' % (cXo, sT0, cXo))
E('v_mov_b32 v%d, 1' % cONE)
E('s_add_u32 s%d, s%d, 1' % (sT0, sME))
E('v_add_u32 v%d, s%d, v%d' % (cT0, sT0, vL))
E('v_and_b32 v%d, 7, v%d' % (cT0, cT0))
E('v_mul_u32_u24 v%d, %d, v%d' % (cT0, 9 * PIECE, cT0))
E('s_mul_i32 s%d, s%d, %d' % (sT0, sGRP, 8 * PIECE))
E('s_lshl_b32 s%d, s%d, 7' % (sT1, sME))
E('s_add_u32 s%d, s%d, s%d' % (sT0, sT0, sT1))
E('v_add_u32 v%d, s%d, v%d' % (cFO, sT0, cT0))
for r in range(64): E('v_mov_b32 v%d, 0' % (cACC + r))
E('s_waitcnt lgkmcnt(0)')
srd(R_WS, 26, WS_BYTES)
srd(R_T0, 24, 512)
assert RW <= 4
def reads(u):
    p = u & 1
    l = []
    for kk in range(2):
        for nt in range(2):
            for h in range(2):
                l.append('ds_read_b64_tr_b16 %s, v%d offset:%d' % (vr(frW(p, nt, kk) + 2 * h, 2), cW[nt], (u % RW) * 16384 + kk * 8192 + h * 1024))
        s = u % RA
        for X in range(8):
            l.append('ds_read_b128 %s, v%d offset:%d' % (vr(frB(p, X, kk)), cB[s // 4][kk], (s % 4) * 16384 + X * 2048))
    return l
E('s_barrier')
ts(2)
for x in reads(0): E(x)
for u in range(NSTEP):
    p = u & 1
    E('; ---- step %d' % u)
    E('s_waitcnt lgkmcnt(0)')
    E('s_barrier')
    if u < NSTEP - 1:
        mf = ['v_mfma_f32_16x16x32_bf16 %s, %s, %s, %s' % (vr(acc(X, nt)), vr(frW(p, nt, kk)), vr(frB(p, X, kk)), vr(acc(X, nt)))
              for kk in range(2) for X in range(8) for nt in range(2)]
    else:
        mf = ['v_mfma_f32_16x16x32_bf16 %s, %s, %s, %s' % (vr(acc(X, nt)), vr(frW(p, nt, kk)), vr(frB(p, X, kk)), vr(acc(X, nt)))
              for X in range(8) for kk in range(2) for nt in range(2)]
    rd = reads(u + 1) if u + 1 < NSTEP else []
    for m, x in enumerate(mf):
        E(x)
        if m < len(rd): E(rd[m])
    if u == NSTEP - 5:
        E('v_mov_b32 v%d, s%d' % (cT0, sGRP))
        E('buffer_load_dwordx2 %s, v%d, %s, 0 offen sc1' % (vr(cRDY, 2), cT0, sr(R_T0)))
ts(3)
INC[0] = False
E('s_mov_b32 s%d, 0' % sSPIN)
def stores(X):
    E('s_add_u32 s%d, s%d, %d' % (sT3, sME, X + 1))
    E('s_and_b32 s%d, s%d, 7' % (sT3, sT3))
    E('s_add_u32 s%d, s%d, s%d' % (sT2, sT3, sGRP))
    E('s_lshl_b32 s%d, s%d, 3' % (sT2, sT2))
    E('s_add_u32 s%d, s%d, s%d' % (sT2, sT2, sME))
    E('s_mul_i32 s%d, s%d, %d' % (sT2, sT2, PIECE))
    if BF:
        a0, a1 = acc(X, 0), acc(X, 1)
        E('v_cvt_pk_bf16_f32 v%d, v%d, v%d' % (a0, a0, a0 + 1))
        E('v_cvt_pk_bf16_f32 v%d, v%d, v%d' % (a0 + 1, a0 + 2, a0 + 3))
        E('v_cvt_pk_bf16_f32 v%d, v%d, v%d' % (a0 + 2, a1, a1 + 1))
        E('v_cvt_pk_bf16_f32 v%d, v%d, v%d' % (a0 + 3, a1 + 2, a1 + 3))
        E('buffer_store_dwordx4 %s, v%d, %s, s%d offen sc1' % (vr(a0), cXo, sr(R_WS), sT2))
    else:
        for nt in range(2):
            E('buffer_store_dwordx4 %s, v%d, %s, s%d offen offset:%d sc1' % (vr(acc(X, nt)), cXo, sr(R_WS), sT2, nt * 1024))
for X in range(7): stores(X)
ts(4)
E('v_lshlrev_b32 v%d, 4, v%d' % (cT1, vL))
E('s_lshl_b32 s%d, s%d, 11' % (sT2, sQ))
E('v_add_u32 v%d, s%d, v%d' % (cT1, sT2, cT1))
for nt in range(2): E('ds_write_b128 v%d, %s offset:%d' % (cT1, vr(acc(7, nt)), OWNOFF + nt * 1024))
E('s_waitcnt vmcnt(%d)' % (7 * NST))
L('L_rdychk')
E('v_and_b32 v%d, v%d, v%d' % (cT1, cRDY, cRDY + 1))
E('s_nop 0')
E('v_readfirstlane_b32 s%d, v%d' % (sT2, cT1))
E('s_cmp_eq_u32 s%d, 0x01010101' % sT2)
E('s_cbranch_scc1 L_rdyok')
E('s_add_u32 s%d, s%d, 1' % (sSPIN, sSPIN))
E('s_cmp_gt_u32 s%d, 0x8000' % sSPIN)
E('s_cbranch_scc1 L_rdyok')
E('s_sleep 2')
E('buffer_load_dwordx2 %s, v%d, %s, 0 offen sc1' % (vr(cRDY, 2), cT0, sr(R_T0)))
E('s_waitcnt vmcnt(0)')
E('s_branch L_rdychk')
L('L_rdyok')
E('s_waitcnt vmcnt(0) lgkmcnt(0)')
ts(5)
E('s_barrier')
E('s_cmp_lg_u32 s%d, 0' % sQ)
E('s_cbranch_scc1 L_end')
E('s_mov_b64 exec, 0x7f')
E('buffer_store_dword v%d, v%d, %s, 0 offen sc1' % (cONE, cFO, sr(R_WS)))
E('s_mov_b64 exec, -1')
if TS:
    ts(6)
    E('s_cmp_lg_u32 s%d, 0' % sQ)
    E('s_cbranch_scc1 L_end')
    ts_store(1)
L('L_end')
E('s_endpgm')
out += ['.section .rodata,"a"', '.p2align 6', '.amdhsa_kernel ' + KN, '  .amdhsa_next_free_vgpr 248', '  .amdhsa_next_free_sgpr 100',
        '  .amdhsa_accum_offset 248', '  .amdhsa_group_segment_fixed_size 0', '  .amdhsa_kernarg_size 96', '  .amdhsa_user_sgpr_count 2',
        '  .amdhsa_user_sgpr_kernarg_segment_ptr 1', '  .amdhsa_system_sgpr_workgroup_id_x 1', '  .amdhsa_float_denorm_mode_32 3', '.end_amdhsa_kernel']
open(sys.argv[1], 'w').write('\n'.join(out) + '\n')
print('lds', LDS_BYTES, 'lines', len(out))
```

```python
import sys, copy
P = dict(XFMT='f32', TS=0, RA=6, RW=4, PF=1, LPRIO=2, COOP=1, SLP=8, NOMF=0, NORD=0, ORD='AAWW', PH=0, Q=8, Q0=12, FG=2, IDXL=1, PFPOS=0, CPF=0, DBG=0, DELAY=0, SL0=0, SL1=0, LEAK=0)
for a in sys.argv[2:]:
    k, v = a.split('=')
    P[k] = int(v) if v.lstrip('-').isdigit() else v
BF = P['XFMT'] == 'bf16'
TS = P['TS']
RA, RW = P['RA'], P['RW']
NSTEP = 25
WBASE = 0
ABASE = RW * 16384
LDS_BYTES = (RA + RW) * 16384
NST = 1 if BF else 2
PIECE = NST * 4096
TSOFF = 56 << 20
WS_BYTES = 64 << 20
out = []
INC = [False]
INC2 = [False]
def E(s=''):
    if P['NOMF'] and s.startswith('v_mfma'): return
    if P['NORD'] and INC[0] and s.startswith('ds_read'): return
    out.append('    ' + s)
def L(s): out.append(s + ':')
def vr(b, n=4): return 'v[%d:%d]' % (b, b + n - 1)
def sr(b, n=4): return 's[%d:%d]' % (b, b + n - 1)
R_TAB, R_W1, R_IDX, R_WS, R_T0, R_T1, R_T2 = 28, 32, 36, 40, 44, 48, 96
sW, sMT, sME, sQ, sLOFF, sWp, sWm, sT0, sT1, sT2, sT3, sSELF, sPREV, sMASK, sGRP, sSPIN, sNH, sFB, sKQ, sFLG = range(52, 72)
sTS = 72
sW0 = 94
def ts(i):
    if P['LEAK'] and not INC2[0] and i == P['LEAK']:
        E('s_memrealtime s[74:75]')
    if TS:
        E('s_memrealtime s[%d:%d]' % (sTS + 2 * i, sTS + 2 * i + 1))
        if i == 2: E('s_memtime s[88:89]')
        if i == 3: E('s_memtime s[90:91]')
def srd(r, p, nbytes):
    E('s_mov_b32 s%d, s%d' % (r, p))
    E('s_and_b32 s%d, s%d, 0xffff' % (r + 1, p + 1))
    E('s_mov_b32 s%d, 0x%x' % (r + 2, nbytes))
    E('s_mov_b32 s%d, 0x00020000' % (r + 3))
def ts_store(role):
    if P['DBG']:
        E('s_waitcnt lgkmcnt(0)')
        E('s_mov_b64 exec, 1')
        E('v_mov_b32 v2, 0')
        if role == 0:
            E('s_not_b32 s%d, s%d' % (sT2, sTS))
            E('v_mov_b32 v4, s%d' % sT2)
            E('buffer_atomic_umax v4, v2, %s, 0 offen offset:28 sc1' % sr(R_T0))
            E('v_mov_b32 v5, s%d' % (sTS + 12))
            E('buffer_atomic_umax v5, v2, %s, 0 offen offset:60 sc1' % sr(R_T0))
        E('s_cmp_lg_u32 s2, %d' % P['DBG'])
        E('s_cbranch_scc1 L_end')
        for i in range(7):
            if i == 0: E('s_mov_b32 s%d, s%d' % (sT2, sTS))
            else: E('s_sub_u32 s%d, s%d, s%d' % (sT2, sTS + 2 * i, sTS))
            E('v_mov_b32 v%d, s%d' % (6 + i, sT2))
            E('buffer_store_dword v%d, v2, %s, 0 offen offset:%d sc1' % (6 + i, sr(R_T0), role * 32 + 4 * i))
        return
    E('s_waitcnt lgkmcnt(0)')
    E('s_mov_b64 exec, 1')
    E('s_lshl_b32 s%d, s2, 7' % sT2)
    E('s_add_u32 s%d, s%d, 0x%x' % (sT2, sT2, TSOFF + role * 64))
    E('v_mov_b32 v2, 0')
    E('s_sub_u32 s86, s90, s88')
    E('s_subb_u32 s87, s91, s89')
    for i in range(8):
        E('v_mov_b32 v4, s%d' % (sTS + 2 * i))
        E('v_mov_b32 v5, s%d' % (sTS + 2 * i + 1))
        E('buffer_store_dwordx2 v[4:5], v2, %s, s%d offen offset:%d' % (sr(R_WS), sT2, 8 * i))
        E('s_nop 1')
hdr = open('standalone__deep_cross_wide_deep__recsys.s.ref').read().split('\n')
for line in hdr:
    if line.startswith('; @launch'):
        out.append('; @launch grid=(256,1,1) block=(512,1,1) lds=%d' % LDS_BYTES)
    elif line.startswith(';'):
        out.append(line)
    else:
        break
out.append('; generated v2-style v4: ' + ' '.join('%s=%s' % kv for kv in sorted(P.items())))
out.append('.amdgcn_target "amdgcn-amd-amdhsa--gfx950"')
out.append('.text')
KN = 'standalone__deep_cross_wide_deep__recsys_kernel'
out += ['.globl ' + KN, '.p2align 8', '.type %s,@function' % KN]
L(KN)
E('s_cmp_ge_u32 s2, 256')
E('s_cbranch_scc1 L_end')
E('s_load_dwordx16 s[4:19], s[0:1], 0')
E('s_load_dwordx8 s[20:27], s[0:1], 64')
if TS:
    for i in range(1, 8): E('s_mov_b64 s[%d:%d], 0' % (sTS + 2 * i, sTS + 2 * i + 1))
    E('s_mov_b64 s[88:89], 0'); E('s_mov_b64 s[90:91], 0')
ts(0)
vL = 1
if P['DELAY']:
    E('s_memrealtime s[92:93]')
    E('s_waitcnt lgkmcnt(0)')
    E('s_add_u32 s94, s92, %d' % P['DELAY'])
    L('L_dly')
    E('s_memrealtime s[92:93]')
    E('s_waitcnt lgkmcnt(0)')
    E('s_sub_u32 s95, s92, s94')
    E('s_cmp_lt_i32 s95, 0')
    E('s_cbranch_scc1 L_dly')
for _ in range(P['SL0']): E('s_sleep 127')
E('v_lshrrev_b32 v2, 6, v0')
E('v_and_b32 v%d, 63, v0' % vL)
E('v_readfirstlane_b32 s%d, v2' % sW)
E('s_lshr_b32 s%d, s2, 3' % sT0)
E('s_and_b32 s%d, s%d, 1' % (sNH, sT0))
E('s_lshr_b32 s%d, s%d, 1' % (sMT, sT0))
E('s_bfe_u32 s%d, s2, 0x10002' % sT1)
E('s_lshl_b32 s%d, s%d, 4' % (sT1, sT1))
E('s_add_u32 s%d, s%d, s%d' % (sMT, sMT, sT1))
E('s_and_b32 s%d, s2, 3' % sKQ)
E('s_lshl_b32 s%d, s%d, 2' % (sME, sNH))
E('s_add_u32 s%d, s%d, s%d' % (sME, sME, sKQ))
E('s_lshl_b32 s%d, s%d, 3' % (sGRP, sMT))
E('s_add_u32 s%d, s%d, s%d' % (sSELF, sGRP, sME))
E('s_and_b32 s%d, s%d, 3' % (sQ, sW))
if P['CPF']: E('s_getpc_b64 s[92:93]')
E('s_cmp_lt_u32 s%d, 4' % sW)
E('s_cbranch_scc1 L_compute')
def wslot(u): return WBASE + (u % RW) * 16384
def aslot(c): return ABASE + (c % RA) * 16384
OWNOFF, SCROFF = 0, 16384
def need_at(b):
    u = b + 1
    return [('W', u), ('A', u)] if u < NSTEP else []

vT0, vT1, vT2, vT3 = 2, 3, 4, 5
vWd = [6, 7, 8, 9]
vIDX = [12 + 28 * i for i in range(4)]
vB1v, vW2v, vXW, vWW, vSC, vFo, vXc, vONE = 124, 132, 140, 144, 148, 150, 151, 152
vS = 156
vRX = 176
vBf, vWf = 12, 28
vmq = []
def vm(t): vmq.append(t)
def wait_for(tags, cnt):
    last = -1
    for t in tags:
        if isinstance(t, tuple): assert vmq.count(t) == cnt, ('needed DMA not issued', t, vmq.count(t))
    for i, t in enumerate(vmq):
        if t in tags: last = i
    return min(len(vmq) - 1 - last, 63)
if P['LPRIO']: E('s_setprio %d' % P['LPRIO'])
if P['LEAK']: E('s_memrealtime s[72:73]')
E('s_mul_i32 s%d, s%d, 25' % (sFB, sKQ))
E('s_lshl_b32 s%d, s%d, 15' % (sW0, sFB))
E('s_lshl_b32 s%d, s%d, 16' % (sT0, sNH))
if not P['COOP']: E('s_mov_b32 s%d, 0' % sT0)
E('s_add_u32 s%d, s%d, s%d' % (sWp, sW0, sT0))
E('s_sub_u32 s%d, s%d, s%d' % (sWm, sW0, sT0))
E('s_lshl_b32 s%d, s%d, 2' % (sFB, sFB))
E('s_lshl_b32 s%d, s%d, 12' % (sLOFF, sQ))
E('v_lshrrev_b32 v%d, 3, v%d' % (vT2, vL))
for j in range(2):
    E('s_lshl_b32 s%d, s%d, 1' % (sT0, sQ))
    E('s_add_u32 s%d, s%d, s%d' % (sT0, sT0, sME))
    E('s_add_u32 s%d, s%d, %d' % (sT0, sT0, 1 + j))
    E('s_and_b32 s%d, s%d, 7' % (sT0, sT0))
    E('s_add_u32 s%d, s%d, s%d' % (sT0, sT0, sGRP))
    E('s_lshl_b32 s%d, s%d, 4' % (sT0, sT0))
    E('v_add_u32 v%d, s%d, v%d' % (vT0 + j, sT0, vT2))
    E('v_mul_u32_u24 v%d, 400, v%d' % (vT0 + j, vT0 + j))
if P['IDXL']:
    E('v_and_b32 v10, 7, v%d' % vL)
    for j in range(2): E('v_lshl_add_u32 v%d, v10, 4, v%d' % (vT0 + j, vT0 + j))
    E('v_add_u32 v%d, 3200, v%d' % (vS, vT0))
    E('v_add_u32 v%d, 3200, v%d' % (vS + 1, vT1))
E('v_lshrrev_b32 v%d, 4, v%d' % (vT2, vL))
E('v_lshlrev_b32 v%d, 1, v%d' % (vT3, vT2))
E('v_and_b32 v10, 15, v%d' % vL)
E('v_xor_b32 v%d, v%d, v10' % (vT3, vT3))
E('v_lshlrev_b32 v%d, 9, v%d' % (vT2, vT2))
E('s_lshl_b32 s%d, s%d, 13' % (sT0, sQ))
E('s_lshl_b32 s%d, s%d, 8' % (sT1, sNH))
E('s_add_u32 s%d, s%d, s%d' % (sT0, sT0, sT1))
E('v_add_u32 v%d, s%d, v%d' % (vT2, sT0, vT2))
E('v_lshl_add_u32 v%d, v%d, 4, v%d' % (vWd[0], vT3, vT2))
E('v_add_u32 v%d, 2048, v%d' % (vWd[1], vWd[0]))
E('v_xor_b32 v%d, 8, v%d' % (vT3, vT3))
E('v_lshl_add_u32 v%d, v%d, 4, v%d' % (vWd[2], vT3, vT2))
E('v_add_u32 v%d, 4096, v%d' % (vWd[2], vWd[2]))
E('v_add_u32 v%d, 2048, v%d' % (vWd[3], vWd[2]))
E('s_waitcnt lgkmcnt(0)')
srd(R_IDX, 4, 4096 * 400)
srd(R_W1, 14, 6400 * 512)
IDXL_OFF = aslot(RA - 1)
if P['IDXL']:
    for i in range(4):
        E('s_add_u32 m0, s%d, 0x%x' % (sLOFF, IDXL_OFF + i * 1024))
        E('s_nop 0')
        E('buffer_load_dwordx4 v%d, %s, s%d offen lds' % ([vT0, vS, vT1, vS + 1][i], sr(R_IDX), sFB)); vm('idx0')
else:
    for c in range(7):
        for i in range(4):
            if c < 6:
                E('buffer_load_dwordx4 %s, v%d, %s, s%d offen offset:%d' % (vr(vIDX[i] + 4 * c), vT0 + (i >> 1), sr(R_IDX), sFB, (i & 1) * 3200 + c * 16))
            else:
                E('buffer_load_dword v%d, v%d, %s, s%d offen offset:%d' % (vIDX[i] + 24, vT0 + (i >> 1), sr(R_IDX), sFB, (i & 1) * 3200 + 96))
            vm('idx0' if c == 0 else 'idx')
def dmaW(u, i):
    if i == 0:
        base = sW0 if u == 24 else (sWp if ((u >> 1) & 1) == 0 else sWm)
        E('s_add_u32 s%d, s%d, 0x%x' % (sT3, base, u * 32768))
    E('s_add_u32 m0, s%d, 0x%x' % (sLOFF, wslot(u) + i * 1024))
    E('s_nop 0')
    E('buffer_load_dwordx4 v%d, %s, s%d offen lds' % (vWd[i], sr(R_W1), sT3)); vm(('W', u))
def dmaA(c, i):
    E('s_add_u32 m0, s%d, 0x%x' % (sLOFF, aslot(c) + i * 1024))
    E('s_nop 0')
    E('buffer_load_dwordx4 v%d, %s, 0 offen lds' % (vIDX[i] + c, sr(R_TAB))); vm(('A', c))
def chunk(k, c):
    for i in range(4): (dmaW if k == 'W' else dmaA)(c, i)
chunk('W', 0)
def wpf():
    if not P['PF']: return
    E('v_lshlrev_b32 v%d, 4, v%d' % (vT2, vL))
    E('s_lshl_b32 s%d, s%d, 10' % (sT0, sQ))
    E('v_add_u32 v%d, s%d, v%d' % (vT2, sT0, vT2))
    E('s_lshr_b32 s%d, s2, 3' % sT0)
    E('s_mul_i32 s%d, s%d, 25600' % (sT0, sT0))
    E('s_add_u32 s%d, s%d, s%d' % (sT0, sT0, sW0))
    for j in range(7):
        if j == 6:
            E('v_cmp_gt_u32 vcc, 1024, v%d' % vT2)
            E('v_mov_b32 v%d, 0x40000000' % (vS + 2))
            E('s_nop 0')
            E('v_cndmask_b32 v%d, v%d, v%d, vcc' % (vT2, vS + 2, vT2))
        E('buffer_load_dwordx4 %s, v%d, %s, s%d offen' % (vr(vRX + 4 * j), vT2, sr(R_W1), sT0)); vm('pf')
        if j < 6: E('s_add_u32 s%d, s%d, 4096' % (sT0, sT0))
if P['PFPOS'] == 0: wpf()
srd(R_TAB, 6, 100000 * 128)
srd(R_WS, 26, WS_BYTES)
srd(R_T0, 24, 512)
srd(R_T1, 22, 16384)
E('s_lshl_b32 s%d, s%d, 3' % (sFLG, sSELF))
E('s_add_u32 s%d, s%d, s%d' % (sFLG, sFLG, sME))
E('s_mul_i32 s%d, s%d, %d' % (sFLG, sFLG, PIECE))
E('s_lshl_b32 s%d, s%d, 8' % (sT0, sQ))
E('s_add_u32 s%d, s%d, s%d' % (sT0, sT0, sFLG))
E('v_mov_b32 v%d, 0' % vT2)
E('v_lshlrev_b32 v%d, 7, v%d' % (vT3, vL))
E('s_mov_b64 exec, 3')
E('buffer_store_dword v%d, v%d, %s, s%d offen sc1' % (vT2, vT3, sr(R_WS), sT0)); vm('clr')
E('s_mov_b64 exec, -1')
E('v_and_b32 v%d, 7, v%d' % (vFo, vL))
E('v_lshlrev_b32 v%d, 7, v%d' % (vFo, vFo))
E('v_add_u32 v%d, s%d, v%d' % (vFo, sFLG, vFo))
E('v_lshlrev_b32 v%d, 4, v%d' % (vXc, vL))
E('s_mul_i32 s%d, s%d, %d' % (sT0, sQ, PIECE // 4))
E('v_add_u32 v%d, s%d, v%d' % (vXc, sT0, vXc))
E('v_mov_b32 v%d, 1' % vONE)
E('v_lshrrev_b32 v10, 4, v%d' % vL)
E('v_and_b32 v11, 7, v%d' % vL)
E('v_xor_b32 v10, v10, v11')
E('v_lshlrev_b32 v10, 4, v10')
E('v_xor_b32 v11, 64, v10')
def conv(cs, tag):
    if P['COOP']:
        E('s_cmp_eq_u32 s%d, 0' % sNH)
        E('s_cbranch_scc1 L_nosw%s' % tag)
        for i in range(4):
            for c in cs:
                if c % 4 < 2 and c < 24:
                    E('v_swap_b32 v%d, v%d' % (vIDX[i] + c, vIDX[i] + c + 2))
        L('L_nosw%s' % tag)
    for c in cs:
        for i in range(4):
            E('v_lshl_or_b32 v%d, v%d, 7, v%d' % (vIDX[i] + c, vIDX[i] + c, 10 + (i & 1)))
E('s_waitcnt vmcnt(%d)' % wait_for(['idx0'], 0))
ts(1)
if P['IDXL']:
    E('v_lshrrev_b32 v%d, 3, v%d' % (vT2, vL))
    E('v_lshlrev_b32 v%d, 7, v%d' % (vT2, vT2))
    E('v_add_u32 v%d, s%d, v%d' % (vT2, sLOFF, vT2))
    E('v_add_u32 v%d, 0x%x, v%d' % (vT2, IDXL_OFF, vT2))
    for c in range(7):
        for i in range(4):
            if c < 6: E('ds_read_b128 %s, v%d offset:%d' % (vr(vIDX[i] + 4 * c), vT2, i * 1024 + c * 16))
            else: E('ds_read_b32 v%d, v%d offset:%d' % (vIDX[i] + 24, vT2, i * 1024 + 96))
        if c == 0:
            E('s_waitcnt lgkmcnt(0)')
            conv(range(4), 'a')
            chunk('A', 0)
    chunk('A', 1)
    E('s_waitcnt lgkmcnt(0)')
    conv(range(4, 25), 'b')
else:
    conv(range(4), 'a')
    chunk('A', 0); chunk('A', 1)
    E('s_waitcnt vmcnt(%d)' % wait_for(['idx'], 0))
    conv(range(4, 25), 'b')
if P['PFPOS'] == 1: wpf()
def earliest(k, ch):
    R = RW if k == 'W' else RA
    return -1 if ch < R else ch - R
order = []
if P['ORD'] == 'AAWW':
    order = [('W', 1)]
    for p in range(1, 13):
        order += [('A', c) for c in (2 * p, 2 * p + 1) if c < 25] + [('W', c) for c in (2 * p, 2 * p + 1) if c < 25]
elif P['ORD'] == 'A2':
    order = [('W', 1), ('A', 2), ('A', 3)]
    for p in range(1, 13):
        order += [('A', c) for c in (2 * p + 2, 2 * p + 3) if c < 25] + [('W', c) for c in (2 * p, 2 * p + 1) if c < 25]
else:
    order = [('W', 1)]
    for c in range(2, 25): order += [('A', c), ('W', c)]
pend = list(order)
def loader_loop(var):
    for b in range(-1, NSTEP):
        nd = need_at(b)
        while any(vmq.count(t) < 4 for t in nd):
            d = pend[0]
            if earliest(*d) > b - 1:
                d = [x for x in pend if x in nd][0]
                assert earliest(*d) <= b - 1
            pend.remove(d); chunk(*d)
        if nd: E('s_waitcnt vmcnt(%d)' % wait_for(nd, 4))
        E('s_barrier')
        if b == -1: ts(2)
        q = (P['Q0'] if b < 4 else P['Q']) // 4
        n = 0
        while pend and n < q:
            d = pend[0]
            if earliest(*d) > b: break
            if d[0] == 'A' and len(pend) > 1 and pend[1][0] == 'A' and d[1] % 2 == 0 and earliest(*pend[1]) > b: break
            pend.pop(0); chunk(*d); n += 1
        if b == 2:
            E('s_cmp_lg_u32 s%d, 0' % sQ)
            E('s_cbranch_scc1 L_nordy%d' % var)
            if P['DBG']:
                E('s_lshl_b32 s%d, s%d, 2' % (sT2, sMT))
                E('s_add_u32 s%d, s%d, 128' % (sT2, sT2))
                E('v_mov_b32 v%d, s%d' % (vT0, sT2))
                E('s_lshl_b32 s%d, 1, s%d' % (sT2, sME))
                E('v_mov_b32 v%d, s%d' % (vT1, sT2))
                E('s_mov_b64 exec, 1')
                E('buffer_atomic_or v%d, v%d, %s, 0 offen sc1' % (vT1, vT0, sr(R_T0)))
            else:
                E('v_mov_b32 v%d, s%d' % (vT0, sSELF))
                E('s_mov_b64 exec, 1')
                E('buffer_store_byte v%d, v%d, %s, 0 offen sc1' % (vONE, vT0, sr(R_T0)))
            E('s_mov_b64 exec, -1')
            L('L_nordy%d' % var)
        if b == NSTEP - 4: small_loads()
def small_loads():
    srd(R_IDX, 16, 512); srd(R_T2, 18, 512)
    E('s_lshl_b32 s%d, s%d, 6' % (sT0, sQ))
    E('v_lshrrev_b32 v%d, 4, v%d' % (vT0, vL))
    E('v_lshlrev_b32 v%d, 3, v%d' % (vT0, vT0))
    for t in range(4):
        off = 256 * (t >> 1) + 32 * (t & 1)
        E('buffer_load_dwordx2 %s, v%d, %s, s%d offen offset:%d' % (vr(vB1v + 2 * t, 2), vT0, sr(R_IDX), sT0, off)); vm('ep')
        E('buffer_load_dwordx2 %s, v%d, %s, s%d offen offset:%d' % (vr(vW2v + 2 * t, 2), vT0, sr(R_T2), sT0, off)); vm('ep')
    E('s_nop 0')
    srd(R_IDX, 8, 4096 * 26 + 64); srd(R_T2, 10, 64)
    E('v_and_b32 v%d, 15, v%d' % (vT1, vL))
    E('s_lshl_b32 s%d, s%d, 4' % (sT0, sSELF))
    E('v_add_u32 v%d, s%d, v%d' % (vT1, sT0, vT1))
    E('v_mul_u32_u24 v%d, 26, v%d' % (vT1, vT1))
    E('v_lshrrev_b32 v%d, 2, v%d' % (vT0, vT0))
    E('v_add_u32 v%d, v%d, v%d' % (vT1, vT1, vT0))
    for m in range(4):
        if m == 3:
            E('v_mov_b32 v%d, 0' % (vXW + 3)); E('v_mov_b32 v%d, 0' % (vWW + 3))
            E('s_mov_b64 exec, 0xffff')
        E('buffer_load_ushort v%d, v%d, %s, 0 offen offset:%d' % (vXW + m, vT1, sr(R_IDX), 8 * m)); vm('ep')
        E('buffer_load_ushort v%d, v%d, %s, 0 offen offset:%d' % (vWW + m, vT0, sr(R_T2), 8 * m)); vm('ep')
    E('s_mov_b64 exec, -1')
    E('s_nop 0')
    srd(R_IDX, 12, 64); srd(R_T2, 20, 64)
    E('v_mov_b32 v%d, 0' % vT2)
    E('buffer_load_ushort v%d, v%d, %s, 0 offen' % (vSC, vT2, sr(R_IDX))); vm('ep')
    E('buffer_load_ushort v%d, v%d, %s, 0 offen' % (vSC + 1, vT2, sr(R_T2))); vm('ep')
loader_loop(0)
assert not pend, pend
ts(3)
def lane_reduce(v, tmp):
    E('v_mov_b32 v%d, v%d' % (tmp, v)); E('s_nop 1')
    E('v_permlane32_swap_b32 v%d, v%d' % (v, tmp)); E('s_nop 1')
    E('v_add_f32 v%d, v%d, v%d' % (v, v, tmp))
    E('v_mov_b32 v%d, v%d' % (tmp, v)); E('s_nop 1')
    E('v_permlane16_swap_b32 v%d, v%d' % (v, tmp)); E('s_nop 1')
    E('v_add_f32 v%d, v%d, v%d' % (v, v, tmp))
def rbf(v):
    E('v_cvt_pk_bf16_f32 v%d, v%d, v%d' % (v, v, v))
    E('v_lshlrev_b32 v%d, 16, v%d' % (v, v))
E('s_waitcnt vmcnt(0)')
for m in range(4):
    E('v_lshlrev_b32 v%d, 16, v%d' % (vXW + m, vXW + m))
    E('v_lshlrev_b32 v%d, 16, v%d' % (vWW + m, vWW + m))
E('v_mul_f32 v%d, v%d, v%d' % (vT0, vXW, vWW))
for m in range(1, 4): E('v_fmac_f32 v%d, v%d, v%d' % (vT0, vXW + m, vWW + m))
lane_reduce(vT0, vT1)
rbf(vT0)
E('v_lshlrev_b32 v%d, 16, v%d' % (vSC, vSC))
E('v_lshlrev_b32 v%d, 16, v%d' % (vSC + 1, vSC + 1))
E('v_add_f32 v%d, v%d, v%d' % (vT0, vT0, vSC))
rbf(vT0)
for t in range(4):
    for d in range(2):
        E('v_lshlrev_b32 v%d, 16, v%d' % (vBf + 4 * t + 2 * d, vB1v + 2 * t + d))
        E('v_and_b32 v%d, 0xffff0000, v%d' % (vBf + 4 * t + 2 * d + 1, vB1v + 2 * t + d))
        E('v_lshlrev_b32 v%d, 16, v%d' % (vWf + 4 * t + 2 * d, vW2v + 2 * t + d))
        E('v_and_b32 v%d, 0xffff0000, v%d' % (vWf + 4 * t + 2 * d + 1, vW2v + 2 * t + d))
for r in range(8 * 4 * NST): E('v_mov_b32 v%d, 0' % (vRX + r))
E('s_mov_b32 s%d, 0' % sSPIN)
E('s_lshl_b32 s%d, 1, s%d' % (sMASK, sME))
E('s_lshl_b32 s%d, s%d, 3' % (sT1, sSELF))
FLDS = SCROFF + 1024
E('v_lshlrev_b32 v%d, 2, v%d' % (vT3, vL))
E('v_add_u32 v%d, 0x%x, v%d' % (vT3, FLDS, vT3))
E('v_mov_b32 v%d, 0' % vT2)
E('ds_write_b32 v%d, v%d' % (vT3, vT2))
E('s_mov_b32 m0, 0x%x' % FLDS)
E('s_waitcnt lgkmcnt(0)')
E('s_barrier')
L('L_rxloop')
E('s_cmp_lg_u32 s%d, 0' % sQ)
E('s_cbranch_scc1 L_nopoll')
E('s_not_b32 s%d, s%d' % (sT2, sMASK))
E('s_and_b32 exec_lo, s%d, 0xff' % sT2)
E('s_mov_b32 exec_hi, 0')
E('buffer_load_dword v%d, %s, 0 offen sc1 lds' % (vFo, sr(R_WS)))
E('s_mov_b64 exec, -1')
L('L_nopoll')
if P['SLP']: E('s_sleep %d' % P['SLP'])
E('ds_read_b32 v%d, v%d' % (vT2, vT3))
E('s_add_u32 s%d, s%d, 1' % (sSPIN, sSPIN))
E('s_cmp_gt_u32 s%d, 0x20000' % sSPIN)
E('s_cbranch_scc1 L_rxdone')
E('s_waitcnt vmcnt(30) lgkmcnt(0)')
E('v_cmp_ne_u32 vcc, 0, v%d' % vT2)
E('s_nop 1')
E('s_andn2_b32 s%d, vcc_lo, s%d' % (sPREV, sMASK))
E('s_cbranch_scc0 L_rxloop')
E('s_or_b32 s%d, s%d, s%d' % (sMASK, sMASK, sPREV))
for s_ in range(8):
    E('s_bitcmp1_b32 s%d, %d' % (sPREV, s_))
    E('s_cbranch_scc0 L_rxs%d' % s_)
    E('s_add_u32 s%d, s%d, %d' % (sT2, sT1, s_))
    E('s_mul_i32 s%d, s%d, %d' % (sT2, sT2, PIECE))
    for j in range(NST):
        E('buffer_load_dwordx4 %s, v%d, %s, s%d offen offset:%d sc1' % (vr(vRX + (s_ * NST + j) * 4), vXc, sr(R_WS), sT2, j * 1024))
    L('L_rxs%d' % s_)
E('s_cmp_lg_u32 s%d, 0xff' % sMASK)
E('s_cbranch_scc1 L_rxloop')
L('L_rxdone')
ts(4)
E('v_lshlrev_b32 v%d, 4, v%d' % (vT1, vL))
E('s_lshl_b32 s%d, s%d, 11' % (sT2, sQ))
E('v_add_u32 v%d, s%d, v%d' % (vT1, sT2, vT1))
for r in range(16): E('v_mov_b32 v%d, 0' % (vS + r))
E('s_cmp_eq_u32 s%d, 0' % sNH)
E('s_cbranch_scc0 L_own1')
for t in range(2): E('ds_read_b128 %s, v%d offset:%d' % (vr(vS + 4 * t), vT1, OWNOFF + t * 1024))
E('s_branch L_ownj')
L('L_own1')
for t in range(2): E('ds_read_b128 %s, v%d offset:%d' % (vr(vS + 8 + 4 * t), vT1, OWNOFF + t * 1024))
L('L_ownj')
E('s_waitcnt vmcnt(0) lgkmcnt(0)')
ts(5)
for s_ in range(8):
    o = vS + 8 * (s_ >> 2)
    if BF:
        b = vRX + s_ * 4
        for d in range(4):
            E('v_lshlrev_b32 v%d, 16, v%d' % (vT2, b + d))
            E('v_and_b32 v%d, 0xffff0000, v%d' % (vT3, b + d))
            E('v_pk_add_f32 %s, %s, %s' % (vr(o + 2 * d, 2), vr(o + 2 * d, 2), vr(vT2, 2)))
    else:
        b = vRX + s_ * 8
        for r in range(0, 8, 2):
            E('v_pk_add_f32 %s, %s, %s' % (vr(o + r, 2), vr(o + r, 2), vr(b + r, 2)))
E('v_mov_b32 v%d, 0' % vT1)
E('v_mov_b32 v%d, 0' % vT3)
for r in range(0, 16, 2):
    a, b = vS + r, vS + r + 1
    E('v_cvt_pk_bf16_f32 v%d, v%d, v%d' % (vT2, a, b))
    E('v_lshlrev_b32 v%d, 16, v%d' % (a, vT2))
    E('v_and_b32 v%d, 0xffff0000, v%d' % (b, vT2))
    E('v_pk_add_f32 %s, %s, %s' % (vr(a, 2), vr(a, 2), vr(vBf + r, 2)))
    E('v_cvt_pk_bf16_f32 v%d, v%d, v%d' % (vT2, a, b))
    E('v_lshlrev_b32 v%d, 16, v%d' % (a, vT2))
    E('v_and_b32 v%d, 0xffff0000, v%d' % (b, vT2))
    E('v_cmp_lt_f32 vcc, 0, v%d' % a)
    E('v_cmp_lt_f32 s[92:93], 0, v%d' % b)
    E('s_nop 0')
    E('v_cndmask_b32 v10, 0, 1.0, vcc')
    E('v_cndmask_b32 v11, 0, 1.0, s[92:93]')
    E('v_mul_f32 v%d, v%d, v10' % (a, a))
    E('v_mul_f32 v%d, v%d, v11' % (b, b))
    E('v_fmac_f32 v%d, v%d, v%d' % (vT1, a, vWf + r))
    E('v_fmac_f32 v%d, v%d, v%d' % (vT3, b, vWf + r + 1))
E('v_add_f32 v%d, v%d, v%d' % (vT1, vT1, vT3))
lane_reduce(vT1, vT2)
E('v_and_b32 v%d, 15, v%d' % (vT2, vL))
E('v_lshlrev_b32 v%d, 4, v%d' % (vT2, vT2))
E('s_lshl_b32 s%d, s%d, 2' % (sT2, sQ))
E('v_add_u32 v%d, s%d, v%d' % (vT3, sT2, vT2))
E('s_mov_b64 exec, 0xffff')
E('ds_write_b32 v%d, v%d offset:%d' % (vT3, vT1, SCROFF))
E('s_waitcnt lgkmcnt(0)')
E('s_barrier')
E('s_cmp_lg_u32 s%d, 0' % sQ)
E('s_cbranch_scc1 L_end')
E('ds_read_b128 %s, v%d offset:%d' % (vr(vS), vT2, SCROFF))
E('s_waitcnt lgkmcnt(0)')
E('v_add_f32 v%d, v%d, v%d' % (vS, vS, vS + 1))
E('v_add_f32 v%d, v%d, v%d' % (vS + 2, vS + 2, vS + 3))
E('v_add_f32 v%d, v%d, v%d' % (vS, vS, vS + 2))
rbf(vS)
E('v_add_f32 v%d, v%d, v%d' % (vS, vS, vSC + 1))
rbf(vS)
E('v_add_f32 v%d, v%d, v%d' % (vS, vS, vT0))
rbf(vS)
E('v_mul_f32 v%d, 0xbfb8aa3b, v%d' % (vS, vS))
E('v_exp_f32 v%d, v%d' % (vS, vS)); E('s_nop 0')
E('v_add_f32 v%d, 1.0, v%d' % (vS, vS))
E('v_rcp_f32 v%d, v%d' % (vS, vS)); E('s_nop 0')
E('v_cvt_pk_bf16_f32 v%d, v%d, v%d' % (vS, vS, vS))
E('v_lshlrev_b32 v%d, 1, v%d' % (vT2, vL))
E('s_lshl_b32 s%d, s%d, 5' % (sT2, sSELF))
for _ in range(P['SL1']): E('s_sleep 127')
if P['LEAK']:
    if P['LEAK'] == 6: E('s_memrealtime s[74:75]')
    E('s_memrealtime s[76:77]')
    E('s_waitcnt lgkmcnt(0)')
    E('s_sub_u32 s78, s74, s72')
    if P['LEAK'] == 9: E('s_mov_b32 s78, 0')
    E('s_add_u32 s78, s78, s76')
    L('L_leak')
    E('s_sleep 4')
    E('s_memrealtime s[76:77]')
    E('s_waitcnt lgkmcnt(0)')
    E('s_sub_u32 s79, s76, s78')
    E('s_cmp_lt_i32 s79, 0')
    E('s_cbranch_scc1 L_leak')
E('buffer_store_short v%d, v%d, %s, s%d offen' % (vS, vT2, sr(R_T1), sT2))
if TS:
    ts(6); ts_store(0)
E('s_endpgm')

L('L_compute')
INC[0] = True
INC2[0] = True
if P['CPF']:
    E('v_lshlrev_b32 v2, 6, v0')
    for rnd in range(2):
        E('v_cmp_gt_u32 vcc, 0x%x, v2' % (P['CPF'] * 1024 - rnd * 16384))
        E('s_and_saveexec_b64 s[94:95], vcc')
        E('s_cbranch_execz L_nocpf%d' % rnd)
        if rnd: E('v_add_u32 v2, 0x4000, v2')
        E('global_load_dword v%d, v2, s[92:93]' % (20 + rnd))
        L('L_nocpf%d' % rnd)
        E('s_mov_b64 exec, s[94:95]')
cXo, cT0, cT1, cT2, cONE = 2, 3, 4, 5, 6
cB = [[8, 9], [10, 11]]
cW = [12, 13]
cRDY = 14
cFO = 16
cFR = 20
cACC = 180
def acc(X, nt): return cACC + (X * 2 + nt) * 4
def frB(p, X, kk): return cFR + p * 80 + (kk * 8 + X) * 4
def frW(p, nt, kk): return cFR + p * 80 + 64 + (kk * 2 + nt) * 4
E('v_and_b32 v%d, 15, v%d' % (cT0, vL))
E('v_lshrrev_b32 v%d, 4, v%d' % (cT1, vL))
E('v_lshrrev_b32 v%d, 1, v%d' % (cT2, cT0))
E('v_xor_b32 v%d, v%d, v%d' % (cT2, cT2, cT1))
E('v_lshlrev_b32 v%d, 4, v%d' % (cT2, cT2))
E('v_lshl_add_u32 v%d, v%d, 7, v%d' % (cB[0][0], cT0, cT2))
E('v_add_u32 v%d, 0x%x, v%d' % (cB[0][0], ABASE, cB[0][0]))
E('v_xor_b32 v%d, 64, v%d' % (cB[0][1], cB[0][0]))
E('v_add_u32 v%d, 0x10000, v%d' % (cB[1][0], cB[0][0]))
E('v_add_u32 v%d, 0x10000, v%d' % (cB[1][1], cB[0][1]))
E('v_bfe_u32 v%d, v%d, 2, 2' % (cT0, vL))
E('v_and_b32 v%d, 1, v%d' % (cT2, cT1))
E('v_lshl_or_b32 v%d, v%d, 2, v%d' % (cT2, cT2, cT0))
E('v_lshl_add_u32 v%d, v%d, 3, v%d' % (cT0, cT1, cT0))
E('v_lshlrev_b32 v%d, 8, v%d' % (cT0, cT0))
E('v_and_b32 v%d, 3, v%d' % (cT1, vL))
E('v_lshl_add_u32 v%d, v%d, 3, v%d' % (cT0, cT1, cT0))
E('s_lshl_b32 s%d, s%d, 1' % (sT0, sQ))
for nt in range(2):
    E('s_add_u32 s%d, s%d, %d' % (sT1, sT0, nt))
    E('v_xor_b32 v%d, s%d, v%d' % (cT1, sT1, cT2))
    E('v_lshl_add_u32 v%d, v%d, 5, v%d' % (cW[nt], cT1, cT0))
E('v_lshlrev_b32 v%d, 4, v%d' % (cXo, vL))
E('s_mul_i32 s%d, s%d, %d' % (sT0, sQ, PIECE // 4))
E('v_add_u32 v%d, s%d, v%d' % (cXo, sT0, cXo))
E('v_mov_b32 v%d, 1' % cONE)
E('s_add_u32 s%d, s%d, 1' % (sT0, sME))
E('v_add_u32 v%d, s%d, v%d' % (cT0, sT0, vL))
E('v_and_b32 v%d, 7, v%d' % (cT0, cT0))
E('v_mul_u32_u24 v%d, %d, v%d' % (cT0, 9 * PIECE, cT0))
E('s_mul_i32 s%d, s%d, %d' % (sT0, sGRP, 8 * PIECE))
E('s_lshl_b32 s%d, s%d, 7' % (sT1, sME))
E('s_add_u32 s%d, s%d, s%d' % (sT0, sT0, sT1))
E('v_add_u32 v%d, s%d, v%d' % (cFO, sT0, cT0))
for r in range(64): E('v_mov_b32 v%d, 0' % (cACC + r))
E('s_waitcnt lgkmcnt(0)')
srd(R_WS, 26, WS_BYTES)
srd(R_T0, 24, 512)
assert RW <= 4
def reads(u):
    p = u & 1
    l = []
    for kk in range(2):
        for nt in range(2):
            for h in range(2):
                l.append('ds_read_b64_tr_b16 %s, v%d offset:%d' % (vr(frW(p, nt, kk) + 2 * h, 2), cW[nt], (u % RW) * 16384 + kk * 8192 + h * 1024))
        s = u % RA
        for X in range(8):
            l.append('ds_read_b128 %s, v%d offset:%d' % (vr(frB(p, X, kk)), cB[s // 4][kk], (s % 4) * 16384 + X * 2048))
    return l
if P['CPF']: E('s_waitcnt vmcnt(0)')
E('s_barrier')
ts(2)
for x in reads(0): E(x)
for u in range(NSTEP):
    p = u & 1
    E('; ---- step %d' % u)
    E('s_waitcnt lgkmcnt(0)')
    E('s_barrier')
    if u < NSTEP - 1:
        mf = ['v_mfma_f32_16x16x32_bf16 %s, %s, %s, %s' % (vr(acc(X, nt)), vr(frW(p, nt, kk)), vr(frB(p, X, kk)), vr(acc(X, nt)))
              for kk in range(2) for X in range(8) for nt in range(2)]
    else:
        mf = ['v_mfma_f32_16x16x32_bf16 %s, %s, %s, %s' % (vr(acc(X, nt)), vr(frW(p, nt, kk)), vr(frB(p, X, kk)), vr(acc(X, nt)))
              for X in range(8) for kk in range(2) for nt in range(2)]
    rd = reads(u + 1) if u + 1 < NSTEP else []
    for m, x in enumerate(mf):
        E(x)
        if m < len(rd): E(rd[m])
    if u == NSTEP - 5:
        if P['DBG']:
            E('s_lshl_b32 s%d, s%d, 2' % (sT2, sMT))
            E('s_add_u32 s%d, s%d, 128' % (sT2, sT2))
            E('v_mov_b32 v%d, s%d' % (cT0, sT2))
        else:
            E('v_mov_b32 v%d, s%d' % (cT0, sGRP))
        E('buffer_load_dwordx2 %s, v%d, %s, 0 offen sc1' % (vr(cRDY, 2), cT0, sr(R_T0)))
ts(3)
INC[0] = False
E('s_mov_b32 s%d, 0' % sSPIN)
def stores(X):
    E('s_add_u32 s%d, s%d, %d' % (sT3, sME, X + 1))
    E('s_and_b32 s%d, s%d, 7' % (sT3, sT3))
    E('s_add_u32 s%d, s%d, s%d' % (sT2, sT3, sGRP))
    E('s_lshl_b32 s%d, s%d, 3' % (sT2, sT2))
    E('s_add_u32 s%d, s%d, s%d' % (sT2, sT2, sME))
    E('s_mul_i32 s%d, s%d, %d' % (sT2, sT2, PIECE))
    if BF:
        a0, a1 = acc(X, 0), acc(X, 1)
        E('v_cvt_pk_bf16_f32 v%d, v%d, v%d' % (a0, a0, a0 + 1))
        E('v_cvt_pk_bf16_f32 v%d, v%d, v%d' % (a0 + 1, a0 + 2, a0 + 3))
        E('v_cvt_pk_bf16_f32 v%d, v%d, v%d' % (a0 + 2, a1, a1 + 1))
        E('v_cvt_pk_bf16_f32 v%d, v%d, v%d' % (a0 + 3, a1 + 2, a1 + 3))
        E('buffer_store_dwordx4 %s, v%d, %s, s%d offen sc1' % (vr(a0), cXo, sr(R_WS), sT2))
    else:
        for nt in range(2):
            E('buffer_store_dwordx4 %s, v%d, %s, s%d offen offset:%d sc1' % (vr(acc(X, nt)), cXo, sr(R_WS), sT2, nt * 1024))
for X in range(7): stores(X)
ts(4)
E('v_lshlrev_b32 v%d, 4, v%d' % (cT1, vL))
E('s_lshl_b32 s%d, s%d, 11' % (sT2, sQ))
E('v_add_u32 v%d, s%d, v%d' % (cT1, sT2, cT1))
for nt in range(2): E('ds_write_b128 v%d, %s offset:%d' % (cT1, vr(acc(7, nt)), OWNOFF + nt * 1024))
E('s_waitcnt vmcnt(%d)' % (7 * NST))
L('L_rdychk')
E('v_and_b32 v%d, v%d, v%d' % (cT1, cRDY, cRDY + (0 if P['DBG'] else 1)))
E('s_nop 0')
E('v_readfirstlane_b32 s%d, v%d' % (sT2, cT1))
E('s_cmp_eq_u32 s%d, %s' % (sT2, '0xff' if P['DBG'] else '0x01010101'))
E('s_cbranch_scc1 L_rdyok')
E('s_add_u32 s%d, s%d, 1' % (sSPIN, sSPIN))
E('s_cmp_gt_u32 s%d, 0x8000' % sSPIN)
E('s_cbranch_scc1 L_rdyok')
E('s_sleep 2')
E('buffer_load_dwordx2 %s, v%d, %s, 0 offen sc1' % (vr(cRDY, 2), cT0, sr(R_T0)))
E('s_waitcnt vmcnt(0)')
E('s_branch L_rdychk')
L('L_rdyok')
E('s_waitcnt vmcnt(0) lgkmcnt(0)')
ts(5)
E('s_barrier')
E('s_cmp_lg_u32 s%d, 0' % sQ)
E('s_cbranch_scc1 L_end')
E('s_mov_b64 exec, 0x7f')
E('buffer_store_dword v%d, v%d, %s, 0 offen sc1' % (cONE, cFO, sr(R_WS)))
E('s_mov_b64 exec, -1')
if TS:
    ts(6)
    E('s_cmp_lg_u32 s%d, 0' % sQ)
    E('s_cbranch_scc1 L_end')
    ts_store(1)
L('L_end')
E('s_endpgm')
out += ['.section .rodata,"a"', '.p2align 6', '.amdhsa_kernel ' + KN, '  .amdhsa_next_free_vgpr 248', '  .amdhsa_next_free_sgpr 100',
        '  .amdhsa_accum_offset 248', '  .amdhsa_group_segment_fixed_size 0', '  .amdhsa_kernarg_size 96', '  .amdhsa_user_sgpr_count 2',
        '  .amdhsa_user_sgpr_kernarg_segment_ptr 1', '  .amdhsa_system_sgpr_workgroup_id_x 1', '  .amdhsa_float_denorm_mode_32 3', '.end_amdhsa_kernel']
open(sys.argv[1], 'w').write('\n'.join(out) + '\n')
print('lds', LDS_BYTES, 'lines', len(out))
```

```python
import sys, copy
P = dict(XFMT='f32', TS=0, RA=6, RW=4, PF=1, LPRIO=2, COOP=1, SLP=1, NOMF=0, NORD=0, ORD='AAWW', PH=0, Q=8, Q0=12, FG=2, IDXL=1, PFPOS=0, CPF=0, DBG=0, DELAY=0, SL0=0, SL1=0, LEAK=0, POLL='atom', PSL=0, FAT=0, SL2=0, PACE=0)
for a in sys.argv[2:]:
    k, v = a.split('=')
    P[k] = int(v) if v.lstrip('-').isdigit() else v
BF = P['XFMT'] == 'bf16'
TS = P['TS']
RA, RW = P['RA'], P['RW']
NSTEP = 25
WBASE = 0
ABASE = RW * 16384
LDS_BYTES = (RA + RW) * 16384
NST = 1 if BF else 2
PIECE = NST * 4096
TSOFF = 56 << 20
WS_BYTES = 64 << 20
out = []
INC = [False]
INC2 = [False]
def E(s=''):
    if P['NOMF'] and s.startswith('v_mfma'): return
    if P['NORD'] and INC[0] and s.startswith('ds_read'): return
    out.append('    ' + s)
def L(s): out.append(s + ':')
def vr(b, n=4): return 'v[%d:%d]' % (b, b + n - 1)
def sr(b, n=4): return 's[%d:%d]' % (b, b + n - 1)
R_TAB, R_W1, R_IDX, R_WS, R_T0, R_T1, R_T2 = 28, 32, 36, 40, 44, 48, 96
sW, sMT, sME, sQ, sLOFF, sWp, sWm, sT0, sT1, sT2, sT3, sSELF, sPREV, sMASK, sGRP, sSPIN, sNH, sFB, sKQ, sFLG = range(52, 72)
sTS = 72
sW0 = 94
def ts(i):
    if P['LEAK'] and not INC2[0] and i == P['LEAK']:
        E('s_memrealtime s[74:75]')
    if TS:
        E('s_memrealtime s[%d:%d]' % (sTS + 2 * i, sTS + 2 * i + 1))
        if i == 2: E('s_memtime s[88:89]')
        if i == 3: E('s_memtime s[90:91]')
def srd(r, p, nbytes):
    E('s_mov_b32 s%d, s%d' % (r, p))
    E('s_and_b32 s%d, s%d, 0xffff' % (r + 1, p + 1))
    E('s_mov_b32 s%d, 0x%x' % (r + 2, nbytes))
    E('s_mov_b32 s%d, 0x00020000' % (r + 3))
def ts_store(role):
    if P['DBG']:
        E('s_waitcnt lgkmcnt(0)')
        E('s_mov_b64 exec, 1')
        E('v_mov_b32 v2, 0')
        if role == 0:
            E('s_not_b32 s%d, s%d' % (sT2, sTS))
            E('v_mov_b32 v4, s%d' % sT2)
            E('buffer_atomic_umax v4, v2, %s, 0 offen offset:28 sc1' % sr(R_T0))
            E('v_mov_b32 v5, s%d' % (sTS + 12))
            E('buffer_atomic_umax v5, v2, %s, 0 offen offset:60 sc1' % sr(R_T0))
        E('s_cmp_lg_u32 s2, %d' % P['DBG'])
        E('s_cbranch_scc1 L_end')
        for i in range(7):
            if i == 0: E('s_mov_b32 s%d, s%d' % (sT2, sTS))
            else: E('s_sub_u32 s%d, s%d, s%d' % (sT2, sTS + 2 * i, sTS))
            E('v_mov_b32 v%d, s%d' % (6 + i, sT2))
            E('buffer_store_dword v%d, v2, %s, 0 offen offset:%d sc1' % (6 + i, sr(R_T0), role * 32 + 4 * i))
        return
    E('s_waitcnt lgkmcnt(0)')
    E('s_mov_b64 exec, 1')
    E('s_lshl_b32 s%d, s2, 7' % sT2)
    E('s_add_u32 s%d, s%d, 0x%x' % (sT2, sT2, TSOFF + role * 64))
    E('v_mov_b32 v2, 0')
    E('s_sub_u32 s86, s90, s88')
    E('s_subb_u32 s87, s91, s89')
    for i in range(8):
        E('v_mov_b32 v4, s%d' % (sTS + 2 * i))
        E('v_mov_b32 v5, s%d' % (sTS + 2 * i + 1))
        E('buffer_store_dwordx2 v[4:5], v2, %s, s%d offen offset:%d' % (sr(R_WS), sT2, 8 * i))
        E('s_nop 1')
hdr = open('standalone__deep_cross_wide_deep__recsys.s.ref').read().split('\n')
for line in hdr:
    if line.startswith('; @launch'):
        out.append('; @launch grid=(256,1,1) block=(512,1,1) lds=%d' % LDS_BYTES)
    elif line.startswith(';'):
        out.append(line)
    else:
        break
out.append('; generated v2-style v4: ' + ' '.join('%s=%s' % kv for kv in sorted(P.items())))
out.append('.amdgcn_target "amdgcn-amd-amdhsa--gfx950"')
out.append('.text')
KN = 'standalone__deep_cross_wide_deep__recsys_kernel'
out += ['.globl ' + KN, '.p2align 8', '.type %s,@function' % KN]
L(KN)
E('s_cmp_ge_u32 s2, 256')
E('s_cbranch_scc1 L_end')
E('s_load_dwordx16 s[4:19], s[0:1], 0')
E('s_load_dwordx8 s[20:27], s[0:1], 64')
if TS:
    for i in range(1, 8): E('s_mov_b64 s[%d:%d], 0' % (sTS + 2 * i, sTS + 2 * i + 1))
    E('s_mov_b64 s[88:89], 0'); E('s_mov_b64 s[90:91], 0')
ts(0)
vL = 1
if P['DELAY']:
    E('s_memrealtime s[92:93]')
    E('s_waitcnt lgkmcnt(0)')
    E('s_add_u32 s94, s92, %d' % P['DELAY'])
    L('L_dly')
    E('s_memrealtime s[92:93]')
    E('s_waitcnt lgkmcnt(0)')
    E('s_sub_u32 s95, s92, s94')
    E('s_cmp_lt_i32 s95, 0')
    E('s_cbranch_scc1 L_dly')
for _ in range(P['SL0']): E('s_sleep 127')
E('v_lshrrev_b32 v2, 6, v0')
E('v_and_b32 v%d, 63, v0' % vL)
E('v_readfirstlane_b32 s%d, v2' % sW)
E('s_lshr_b32 s%d, s2, 3' % sT0)
E('s_and_b32 s%d, s%d, 1' % (sNH, sT0))
E('s_lshr_b32 s%d, s%d, 1' % (sMT, sT0))
E('s_bfe_u32 s%d, s2, 0x10002' % sT1)
E('s_lshl_b32 s%d, s%d, 4' % (sT1, sT1))
E('s_add_u32 s%d, s%d, s%d' % (sMT, sMT, sT1))
E('s_and_b32 s%d, s2, 3' % sKQ)
E('s_lshl_b32 s%d, s%d, 2' % (sME, sNH))
E('s_add_u32 s%d, s%d, s%d' % (sME, sME, sKQ))
E('s_lshl_b32 s%d, s%d, 3' % (sGRP, sMT))
E('s_add_u32 s%d, s%d, s%d' % (sSELF, sGRP, sME))
E('s_and_b32 s%d, s%d, 3' % (sQ, sW))
if P['CPF']: E('s_getpc_b64 s[92:93]')
E('s_cmp_lt_u32 s%d, 4' % sW)
E('s_cbranch_scc1 L_compute')
def wslot(u): return WBASE + (u % RW) * 16384
def aslot(c): return ABASE + (c % RA) * 16384
OWNOFF, SCROFF = 0, 16384
def need_at(b):
    u = b + 1
    return [('W', u), ('A', u)] if u < NSTEP else []

vT0, vT1, vT2, vT3 = 2, 3, 4, 5
vWd = [6, 7, 8, 9]
vIDX = [12 + 28 * i for i in range(4)]
vB1v, vW2v, vXW, vWW, vSC, vFo, vXc, vONE = 124, 132, 140, 144, 148, 150, 151, 152
vS = 156
vRX = 176
vBf, vWf = 12, 28
vmq = []
def vm(t): vmq.append(t)
def wait_for(tags, cnt):
    last = -1
    for t in tags:
        if isinstance(t, tuple): assert vmq.count(t) == cnt, ('needed DMA not issued', t, vmq.count(t))
    for i, t in enumerate(vmq):
        if t in tags: last = i
    return min(len(vmq) - 1 - last, 63)
if P['LPRIO']: E('s_setprio %d' % P['LPRIO'])
if P['LEAK']: E('s_memrealtime s[72:73]')
E('s_mul_i32 s%d, s%d, 25' % (sFB, sKQ))
E('s_lshl_b32 s%d, s%d, 15' % (sW0, sFB))
E('s_lshl_b32 s%d, s%d, 16' % (sT0, sNH))
if not P['COOP']: E('s_mov_b32 s%d, 0' % sT0)
E('s_add_u32 s%d, s%d, s%d' % (sWp, sW0, sT0))
E('s_sub_u32 s%d, s%d, s%d' % (sWm, sW0, sT0))
E('s_lshl_b32 s%d, s%d, 2' % (sFB, sFB))
E('s_lshl_b32 s%d, s%d, 12' % (sLOFF, sQ))
E('v_lshrrev_b32 v%d, 3, v%d' % (vT2, vL))
for j in range(2):
    E('s_lshl_b32 s%d, s%d, 1' % (sT0, sQ))
    E('s_add_u32 s%d, s%d, s%d' % (sT0, sT0, sME))
    E('s_add_u32 s%d, s%d, %d' % (sT0, sT0, 1 + j))
    E('s_and_b32 s%d, s%d, 7' % (sT0, sT0))
    E('s_add_u32 s%d, s%d, s%d' % (sT0, sT0, sGRP))
    E('s_lshl_b32 s%d, s%d, 4' % (sT0, sT0))
    E('v_add_u32 v%d, s%d, v%d' % (vT0 + j, sT0, vT2))
    E('v_mul_u32_u24 v%d, 400, v%d' % (vT0 + j, vT0 + j))
if P['IDXL']:
    E('v_and_b32 v10, 7, v%d' % vL)
    for j in range(2): E('v_lshl_add_u32 v%d, v10, 4, v%d' % (vT0 + j, vT0 + j))
    E('v_add_u32 v%d, 3200, v%d' % (vS, vT0))
    E('v_add_u32 v%d, 3200, v%d' % (vS + 1, vT1))
E('v_lshrrev_b32 v%d, 4, v%d' % (vT2, vL))
E('v_lshlrev_b32 v%d, 1, v%d' % (vT3, vT2))
E('v_and_b32 v10, 15, v%d' % vL)
E('v_xor_b32 v%d, v%d, v10' % (vT3, vT3))
E('v_lshlrev_b32 v%d, 9, v%d' % (vT2, vT2))
E('s_lshl_b32 s%d, s%d, 13' % (sT0, sQ))
E('s_lshl_b32 s%d, s%d, 8' % (sT1, sNH))
E('s_add_u32 s%d, s%d, s%d' % (sT0, sT0, sT1))
E('v_add_u32 v%d, s%d, v%d' % (vT2, sT0, vT2))
E('v_lshl_add_u32 v%d, v%d, 4, v%d' % (vWd[0], vT3, vT2))
E('v_add_u32 v%d, 2048, v%d' % (vWd[1], vWd[0]))
E('v_xor_b32 v%d, 8, v%d' % (vT3, vT3))
E('v_lshl_add_u32 v%d, v%d, 4, v%d' % (vWd[2], vT3, vT2))
E('v_add_u32 v%d, 4096, v%d' % (vWd[2], vWd[2]))
E('v_add_u32 v%d, 2048, v%d' % (vWd[3], vWd[2]))
E('s_waitcnt lgkmcnt(0)')
srd(R_IDX, 4, 4096 * 400)
srd(R_W1, 14, 6400 * 512)
IDXL_OFF = aslot(RA - 1)
if P['IDXL']:
    for i in range(4):
        E('s_add_u32 m0, s%d, 0x%x' % (sLOFF, IDXL_OFF + i * 1024))
        E('s_nop 0')
        E('buffer_load_dwordx4 v%d, %s, s%d offen lds' % ([vT0, vS, vT1, vS + 1][i], sr(R_IDX), sFB)); vm('idx0')
else:
    for c in range(7):
        for i in range(4):
            if c < 6:
                E('buffer_load_dwordx4 %s, v%d, %s, s%d offen offset:%d' % (vr(vIDX[i] + 4 * c), vT0 + (i >> 1), sr(R_IDX), sFB, (i & 1) * 3200 + c * 16))
            else:
                E('buffer_load_dword v%d, v%d, %s, s%d offen offset:%d' % (vIDX[i] + 24, vT0 + (i >> 1), sr(R_IDX), sFB, (i & 1) * 3200 + 96))
            vm('idx0' if c == 0 else 'idx')
def dmaW(u, i):
    if i == 0:
        base = sW0 if u == 24 else (sWp if ((u >> 1) & 1) == 0 else sWm)
        E('s_add_u32 s%d, s%d, 0x%x' % (sT3, base, u * 32768))
    E('s_add_u32 m0, s%d, 0x%x' % (sLOFF, wslot(u) + i * 1024))
    E('s_nop 0')
    E('buffer_load_dwordx4 v%d, %s, s%d offen lds' % (vWd[i], sr(R_W1), sT3)); vm(('W', u))
def dmaA(c, i):
    E('s_add_u32 m0, s%d, 0x%x' % (sLOFF, aslot(c) + i * 1024))
    E('s_nop 0')
    E('buffer_load_dwordx4 v%d, %s, 0 offen lds' % (vIDX[i] + c, sr(R_TAB))); vm(('A', c))
def chunk(k, c):
    for i in range(4): (dmaW if k == 'W' else dmaA)(c, i)
chunk('W', 0)
def wpf():
    if not P['PF']: return
    E('v_lshlrev_b32 v%d, 4, v%d' % (vT2, vL))
    E('s_lshl_b32 s%d, s%d, 10' % (sT0, sQ))
    E('v_add_u32 v%d, s%d, v%d' % (vT2, sT0, vT2))
    E('s_lshr_b32 s%d, s2, 3' % sT0)
    E('s_mul_i32 s%d, s%d, 25600' % (sT0, sT0))
    E('s_add_u32 s%d, s%d, s%d' % (sT0, sT0, sW0))
    for j in range(7):
        if j == 6:
            E('v_cmp_gt_u32 vcc, 1024, v%d' % vT2)
            E('v_mov_b32 v%d, 0x40000000' % (vS + 2))
            E('s_nop 0')
            E('v_cndmask_b32 v%d, v%d, v%d, vcc' % (vT2, vS + 2, vT2))
        E('buffer_load_dwordx4 %s, v%d, %s, s%d offen' % (vr(vRX + 4 * j), vT2, sr(R_W1), sT0)); vm('pf')
        if j < 6: E('s_add_u32 s%d, s%d, 4096' % (sT0, sT0))
if P['PFPOS'] == 0: wpf()
srd(R_TAB, 6, 100000 * 128)
srd(R_WS, 26, WS_BYTES)
srd(R_T0, 24, 512)
srd(R_T1, 22, 16384)
E('s_lshl_b32 s%d, s%d, 3' % (sFLG, sSELF))
E('s_add_u32 s%d, s%d, s%d' % (sFLG, sFLG, sME))
E('s_mul_i32 s%d, s%d, %d' % (sFLG, sFLG, PIECE))
E('s_lshl_b32 s%d, s%d, 8' % (sT0, sQ))
E('s_add_u32 s%d, s%d, s%d' % (sT0, sT0, sFLG))
E('v_mov_b32 v%d, 0' % vT2)
E('v_lshlrev_b32 v%d, 7, v%d' % (vT3, vL))
E('s_mov_b64 exec, 3')
E('buffer_store_dword v%d, v%d, %s, s%d offen sc1' % (vT2, vT3, sr(R_WS), sT0)); vm('clr')
E('s_mov_b64 exec, -1')
E('v_and_b32 v%d, 7, v%d' % (vFo, vL))
E('v_lshlrev_b32 v%d, 7, v%d' % (vFo, vFo))
E('v_add_u32 v%d, s%d, v%d' % (vFo, sFLG, vFo))
E('v_lshlrev_b32 v%d, 4, v%d' % (vXc, vL))
E('s_mul_i32 s%d, s%d, %d' % (sT0, sQ, PIECE // 4))
E('v_add_u32 v%d, s%d, v%d' % (vXc, sT0, vXc))
E('v_mov_b32 v%d, 1' % vONE)
E('v_lshrrev_b32 v10, 4, v%d' % vL)
E('v_and_b32 v11, 7, v%d' % vL)
E('v_xor_b32 v10, v10, v11')
E('v_lshlrev_b32 v10, 4, v10')
E('v_xor_b32 v11, 64, v10')
def conv(cs, tag):
    if P['COOP']:
        E('s_cmp_eq_u32 s%d, 0' % sNH)
        E('s_cbranch_scc1 L_nosw%s' % tag)
        for i in range(4):
            for c in cs:
                if c % 4 < 2 and c < 24:
                    E('v_swap_b32 v%d, v%d' % (vIDX[i] + c, vIDX[i] + c + 2))
        L('L_nosw%s' % tag)
    for c in cs:
        for i in range(4):
            E('v_lshl_or_b32 v%d, v%d, 7, v%d' % (vIDX[i] + c, vIDX[i] + c, 10 + (i & 1)))
E('s_waitcnt vmcnt(%d)' % wait_for(['idx0'], 0))
ts(1)
if P['IDXL']:
    E('v_lshrrev_b32 v%d, 3, v%d' % (vT2, vL))
    E('v_lshlrev_b32 v%d, 7, v%d' % (vT2, vT2))
    E('v_add_u32 v%d, s%d, v%d' % (vT2, sLOFF, vT2))
    E('v_add_u32 v%d, 0x%x, v%d' % (vT2, IDXL_OFF, vT2))
    for c in range(7):
        for i in range(4):
            if c < 6: E('ds_read_b128 %s, v%d offset:%d' % (vr(vIDX[i] + 4 * c), vT2, i * 1024 + c * 16))
            else: E('ds_read_b32 v%d, v%d offset:%d' % (vIDX[i] + 24, vT2, i * 1024 + 96))
        if c == 0:
            E('s_waitcnt lgkmcnt(0)')
            conv(range(4), 'a')
            chunk('A', 0)
    chunk('A', 1)
    E('s_waitcnt lgkmcnt(0)')
    conv(range(4, 25), 'b')
else:
    conv(range(4), 'a')
    chunk('A', 0); chunk('A', 1)
    E('s_waitcnt vmcnt(%d)' % wait_for(['idx'], 0))
    conv(range(4, 25), 'b')
if P['PFPOS'] == 1: wpf()
def earliest(k, ch):
    R = RW if k == 'W' else RA
    return -1 if ch < R else ch - R
order = []
if P['ORD'] == 'AAWW':
    order = [('W', 1)]
    for p in range(1, 13):
        order += [('A', c) for c in (2 * p, 2 * p + 1) if c < 25] + [('W', c) for c in (2 * p, 2 * p + 1) if c < 25]
elif P['ORD'] == 'A2':
    order = [('W', 1), ('A', 2), ('A', 3)]
    for p in range(1, 13):
        order += [('A', c) for c in (2 * p + 2, 2 * p + 3) if c < 25] + [('W', c) for c in (2 * p, 2 * p + 1) if c < 25]
else:
    order = [('W', 1)]
    for c in range(2, 25): order += [('A', c), ('W', c)]
pend = list(order)
def loader_loop(var):
    for b in range(-1, NSTEP):
        nd = need_at(b)
        while any(vmq.count(t) < 4 for t in nd):
            d = pend[0]
            if earliest(*d) > b - 1:
                d = [x for x in pend if x in nd][0]
                assert earliest(*d) <= b - 1
            pend.remove(d); chunk(*d)
        if nd: E('s_waitcnt vmcnt(%d)' % wait_for(nd, 4))
        E('s_barrier')
        if b == -1: ts(2)
        q = (P['Q0'] if b < 4 else P['Q']) // 4
        n = 0
        while pend and n < q:
            d = pend[0]
            if earliest(*d) > b: break
            if d[0] == 'A' and len(pend) > 1 and pend[1][0] == 'A' and d[1] % 2 == 0 and earliest(*pend[1]) > b: break
            pend.pop(0); chunk(*d); n += 1
        if b == 2:
            E('s_cmp_lg_u32 s%d, 0' % sQ)
            E('s_cbranch_scc1 L_nordy%d' % var)
            if P['DBG']:
                E('s_lshl_b32 s%d, s%d, 2' % (sT2, sMT))
                E('s_add_u32 s%d, s%d, 128' % (sT2, sT2))
                E('v_mov_b32 v%d, s%d' % (vT0, sT2))
                E('s_lshl_b32 s%d, 1, s%d' % (sT2, sME))
                E('v_mov_b32 v%d, s%d' % (vT1, sT2))
                E('s_mov_b64 exec, 1')
                E('buffer_atomic_or v%d, v%d, %s, 0 offen sc1' % (vT1, vT0, sr(R_T0)))
            else:
                E('v_mov_b32 v%d, s%d' % (vT0, sSELF))
                E('s_mov_b64 exec, 1')
                E('buffer_store_byte v%d, v%d, %s, 0 offen sc1' % (vONE, vT0, sr(R_T0)))
            E('s_mov_b64 exec, -1')
            L('L_nordy%d' % var)
        if b == NSTEP - 4: small_loads()
def small_loads():
    srd(R_IDX, 16, 512); srd(R_T2, 18, 512)
    E('s_lshl_b32 s%d, s%d, 6' % (sT0, sQ))
    E('v_lshrrev_b32 v%d, 4, v%d' % (vT0, vL))
    E('v_lshlrev_b32 v%d, 3, v%d' % (vT0, vT0))
    for t in range(4):
        off = 256 * (t >> 1) + 32 * (t & 1)
        E('buffer_load_dwordx2 %s, v%d, %s, s%d offen offset:%d' % (vr(vB1v + 2 * t, 2), vT0, sr(R_IDX), sT0, off)); vm('ep')
        E('buffer_load_dwordx2 %s, v%d, %s, s%d offen offset:%d' % (vr(vW2v + 2 * t, 2), vT0, sr(R_T2), sT0, off)); vm('ep')
    E('s_nop 0')
    srd(R_IDX, 8, 4096 * 26 + 64); srd(R_T2, 10, 64)
    E('v_and_b32 v%d, 15, v%d' % (vT1, vL))
    E('s_lshl_b32 s%d, s%d, 4' % (sT0, sSELF))
    E('v_add_u32 v%d, s%d, v%d' % (vT1, sT0, vT1))
    E('v_mul_u32_u24 v%d, 26, v%d' % (vT1, vT1))
    E('v_lshrrev_b32 v%d, 2, v%d' % (vT0, vT0))
    E('v_add_u32 v%d, v%d, v%d' % (vT1, vT1, vT0))
    for m in range(4):
        if m == 3:
            E('v_mov_b32 v%d, 0' % (vXW + 3)); E('v_mov_b32 v%d, 0' % (vWW + 3))
            E('s_mov_b64 exec, 0xffff')
        E('buffer_load_ushort v%d, v%d, %s, 0 offen offset:%d' % (vXW + m, vT1, sr(R_IDX), 8 * m)); vm('ep')
        E('buffer_load_ushort v%d, v%d, %s, 0 offen offset:%d' % (vWW + m, vT0, sr(R_T2), 8 * m)); vm('ep')
    E('s_mov_b64 exec, -1')
    E('s_nop 0')
    srd(R_IDX, 12, 64); srd(R_T2, 20, 64)
    E('v_mov_b32 v%d, 0' % vT2)
    E('buffer_load_ushort v%d, v%d, %s, 0 offen' % (vSC, vT2, sr(R_IDX))); vm('ep')
    E('buffer_load_ushort v%d, v%d, %s, 0 offen' % (vSC + 1, vT2, sr(R_T2))); vm('ep')
loader_loop(0)
assert not pend, pend
ts(3)
def lane_reduce(v, tmp):
    E('v_mov_b32 v%d, v%d' % (tmp, v)); E('s_nop 1')
    E('v_permlane32_swap_b32 v%d, v%d' % (v, tmp)); E('s_nop 1')
    E('v_add_f32 v%d, v%d, v%d' % (v, v, tmp))
    E('v_mov_b32 v%d, v%d' % (tmp, v)); E('s_nop 1')
    E('v_permlane16_swap_b32 v%d, v%d' % (v, tmp)); E('s_nop 1')
    E('v_add_f32 v%d, v%d, v%d' % (v, v, tmp))
def rbf(v):
    E('v_cvt_pk_bf16_f32 v%d, v%d, v%d' % (v, v, v))
    E('v_lshlrev_b32 v%d, 16, v%d' % (v, v))
E('s_waitcnt vmcnt(0)')
for m in range(4):
    E('v_lshlrev_b32 v%d, 16, v%d' % (vXW + m, vXW + m))
    E('v_lshlrev_b32 v%d, 16, v%d' % (vWW + m, vWW + m))
E('v_mul_f32 v%d, v%d, v%d' % (vT0, vXW, vWW))
for m in range(1, 4): E('v_fmac_f32 v%d, v%d, v%d' % (vT0, vXW + m, vWW + m))
lane_reduce(vT0, vT1)
rbf(vT0)
E('v_lshlrev_b32 v%d, 16, v%d' % (vSC, vSC))
E('v_lshlrev_b32 v%d, 16, v%d' % (vSC + 1, vSC + 1))
E('v_add_f32 v%d, v%d, v%d' % (vT0, vT0, vSC))
rbf(vT0)
for t in range(4):
    for d in range(2):
        E('v_lshlrev_b32 v%d, 16, v%d' % (vBf + 4 * t + 2 * d, vB1v + 2 * t + d))
        E('v_and_b32 v%d, 0xffff0000, v%d' % (vBf + 4 * t + 2 * d + 1, vB1v + 2 * t + d))
        E('v_lshlrev_b32 v%d, 16, v%d' % (vWf + 4 * t + 2 * d, vW2v + 2 * t + d))
        E('v_and_b32 v%d, 0xffff0000, v%d' % (vWf + 4 * t + 2 * d + 1, vW2v + 2 * t + d))
for r in range(8 * 4 * NST): E('v_mov_b32 v%d, 0' % (vRX + r))
E('s_mov_b32 s%d, 0' % sSPIN)
E('s_lshl_b32 s%d, 1, s%d' % (sMASK, sME))
E('s_lshl_b32 s%d, s%d, 3' % (sT1, sSELF))
FLDS = SCROFF + 1024
E('v_lshlrev_b32 v%d, 2, v%d' % (vT3, vL))
E('v_add_u32 v%d, 0x%x, v%d' % (vT3, FLDS, vT3))
E('v_mov_b32 v%d, 0' % vT2)
E('ds_write_b32 v%d, v%d' % (vT3, vT2))
E('s_mov_b32 m0, 0x%x' % FLDS)
E('s_waitcnt lgkmcnt(0)')
E('s_barrier')
L('L_rxloop')
if P['POLL'] == 'dma':
    E('s_cmp_lg_u32 s%d, 0' % sQ)
    E('s_cbranch_scc1 L_nopoll')
    E('s_not_b32 s%d, s%d' % (sT2, sMASK))
    E('s_and_b32 exec_lo, s%d, 0xff' % sT2)
    E('s_mov_b32 exec_hi, 0')
    E('buffer_load_dword v%d, %s, 0 offen sc1 lds' % (vFo, sr(R_WS)))
    E('s_mov_b64 exec, -1')
    L('L_nopoll')
if P['SLP']: E('s_sleep %d' % P['SLP'])
E('ds_read_b32 v%d, v%d' % (vT2, vT3))
E('s_add_u32 s%d, s%d, 1' % (sSPIN, sSPIN))
E('s_cmp_gt_u32 s%d, 0x20000' % sSPIN)
E('s_cbranch_scc1 L_rxdone')
E('s_waitcnt vmcnt(30) lgkmcnt(0)')
E('v_cmp_ne_u32 vcc, 0, v%d' % vT2)
E('s_nop 1')
E('s_andn2_b32 s%d, vcc_lo, s%d' % (sPREV, sMASK))
E('s_cbranch_scc0 L_rxloop')
E('s_or_b32 s%d, s%d, s%d' % (sMASK, sMASK, sPREV))
for s_ in range(8):
    E('s_bitcmp1_b32 s%d, %d' % (sPREV, s_))
    E('s_cbranch_scc0 L_rxs%d' % s_)
    E('s_add_u32 s%d, s%d, %d' % (sT2, sT1, s_))
    E('s_mul_i32 s%d, s%d, %d' % (sT2, sT2, PIECE))
    for j in range(NST):
        E('buffer_load_dwordx4 %s, v%d, %s, s%d offen offset:%d sc1' % (vr(vRX + (s_ * NST + j) * 4), vXc, sr(R_WS), sT2, j * 1024))
    L('L_rxs%d' % s_)
E('s_cmp_lg_u32 s%d, 0xff' % sMASK)
E('s_cbranch_scc1 L_rxloop')
L('L_rxdone')
ts(4)
E('v_lshlrev_b32 v%d, 4, v%d' % (vT1, vL))
E('s_lshl_b32 s%d, s%d, 11' % (sT2, sQ))
E('v_add_u32 v%d, s%d, v%d' % (vT1, sT2, vT1))
for r in range(16): E('v_mov_b32 v%d, 0' % (vS + r))
E('s_cmp_eq_u32 s%d, 0' % sNH)
E('s_cbranch_scc0 L_own1')
for t in range(2): E('ds_read_b128 %s, v%d offset:%d' % (vr(vS + 4 * t), vT1, OWNOFF + t * 1024))
E('s_branch L_ownj')
L('L_own1')
for t in range(2): E('ds_read_b128 %s, v%d offset:%d' % (vr(vS + 8 + 4 * t), vT1, OWNOFF + t * 1024))
L('L_ownj')
E('s_waitcnt vmcnt(0) lgkmcnt(0)')
ts(5)
for s_ in range(8):
    o = vS + 8 * (s_ >> 2)
    if BF:
        b = vRX + s_ * 4
        for d in range(4):
            E('v_lshlrev_b32 v%d, 16, v%d' % (vT2, b + d))
            E('v_and_b32 v%d, 0xffff0000, v%d' % (vT3, b + d))
            E('v_pk_add_f32 %s, %s, %s' % (vr(o + 2 * d, 2), vr(o + 2 * d, 2), vr(vT2, 2)))
    else:
        b = vRX + s_ * 8
        for r in range(0, 8, 2):
            E('v_pk_add_f32 %s, %s, %s' % (vr(o + r, 2), vr(o + r, 2), vr(b + r, 2)))
E('v_mov_b32 v%d, 0' % vT1)
E('v_mov_b32 v%d, 0' % vT3)
for r in range(0, 16, 2):
    a, b = vS + r, vS + r + 1
    E('v_cvt_pk_bf16_f32 v%d, v%d, v%d' % (vT2, a, b))
    E('v_lshlrev_b32 v%d, 16, v%d' % (a, vT2))
    E('v_and_b32 v%d, 0xffff0000, v%d' % (b, vT2))
    E('v_pk_add_f32 %s, %s, %s' % (vr(a, 2), vr(a, 2), vr(vBf + r, 2)))
    E('v_cvt_pk_bf16_f32 v%d, v%d, v%d' % (vT2, a, b))
    E('v_lshlrev_b32 v%d, 16, v%d' % (a, vT2))
    E('v_and_b32 v%d, 0xffff0000, v%d' % (b, vT2))
    E('v_cmp_lt_f32 vcc, 0, v%d' % a)
    E('v_cmp_lt_f32 s[92:93], 0, v%d' % b)
    E('s_nop 0')
    E('v_cndmask_b32 v10, 0, 1.0, vcc')
    E('v_cndmask_b32 v11, 0, 1.0, s[92:93]')
    E('v_mul_f32 v%d, v%d, v10' % (a, a))
    E('v_mul_f32 v%d, v%d, v11' % (b, b))
    E('v_fmac_f32 v%d, v%d, v%d' % (vT1, a, vWf + r))
    E('v_fmac_f32 v%d, v%d, v%d' % (vT3, b, vWf + r + 1))
E('v_add_f32 v%d, v%d, v%d' % (vT1, vT1, vT3))
lane_reduce(vT1, vT2)
E('v_and_b32 v%d, 15, v%d' % (vT2, vL))
E('v_lshlrev_b32 v%d, 4, v%d' % (vT2, vT2))
E('s_lshl_b32 s%d, s%d, 2' % (sT2, sQ))
E('v_add_u32 v%d, s%d, v%d' % (vT3, sT2, vT2))
E('s_mov_b64 exec, 0xffff')
E('ds_write_b32 v%d, v%d offset:%d' % (vT3, vT1, SCROFF))
E('s_waitcnt lgkmcnt(0)')
E('s_barrier')
E('s_cmp_lg_u32 s%d, 0' % sQ)
E('s_cbranch_scc1 L_end')
E('ds_read_b128 %s, v%d offset:%d' % (vr(vS), vT2, SCROFF))
E('s_waitcnt lgkmcnt(0)')
E('v_add_f32 v%d, v%d, v%d' % (vS, vS, vS + 1))
E('v_add_f32 v%d, v%d, v%d' % (vS + 2, vS + 2, vS + 3))
E('v_add_f32 v%d, v%d, v%d' % (vS, vS, vS + 2))
rbf(vS)
E('v_add_f32 v%d, v%d, v%d' % (vS, vS, vSC + 1))
rbf(vS)
E('v_add_f32 v%d, v%d, v%d' % (vS, vS, vT0))
rbf(vS)
E('v_mul_f32 v%d, 0xbfb8aa3b, v%d' % (vS, vS))
E('v_exp_f32 v%d, v%d' % (vS, vS)); E('s_nop 0')
E('v_add_f32 v%d, 1.0, v%d' % (vS, vS))
E('v_rcp_f32 v%d, v%d' % (vS, vS)); E('s_nop 0')
E('v_cvt_pk_bf16_f32 v%d, v%d, v%d' % (vS, vS, vS))
E('v_lshlrev_b32 v%d, 1, v%d' % (vT2, vL))
E('s_lshl_b32 s%d, s%d, 5' % (sT2, sSELF))
for _ in range(P['SL1']): E('s_sleep 127')
if P['LEAK']:
    if P['LEAK'] == 6: E('s_memrealtime s[74:75]')
    E('s_memrealtime s[76:77]')
    E('s_waitcnt lgkmcnt(0)')
    E('s_sub_u32 s78, s74, s72')
    if P['LEAK'] == 9: E('s_mov_b32 s78, 0')
    E('s_add_u32 s78, s78, s76')
    L('L_leak')
    E('s_sleep 4')
    E('s_memrealtime s[76:77]')
    E('s_waitcnt lgkmcnt(0)')
    E('s_sub_u32 s79, s76, s78')
    E('s_cmp_lt_i32 s79, 0')
    E('s_cbranch_scc1 L_leak')
E('buffer_store_short v%d, v%d, %s, s%d offen' % (vS, vT2, sr(R_T1), sT2))
if TS:
    ts(6); ts_store(0)
E('s_endpgm')

L('L_compute')
INC[0] = True
INC2[0] = True
if P['CPF']:
    E('v_lshlrev_b32 v2, 6, v0')
    for rnd in range(2):
        E('v_cmp_gt_u32 vcc, 0x%x, v2' % (P['CPF'] * 1024 - rnd * 16384))
        E('s_and_saveexec_b64 s[94:95], vcc')
        E('s_cbranch_execz L_nocpf%d' % rnd)
        if rnd: E('v_add_u32 v2, 0x4000, v2')
        E('global_load_dword v%d, v2, s[92:93]' % (20 + rnd))
        L('L_nocpf%d' % rnd)
        E('s_mov_b64 exec, s[94:95]')
cXo, cT0, cT1, cT2, cONE = 2, 3, 4, 5, 6
cB = [[8, 9], [10, 11]]
cW = [12, 13]
cRDY = 14
cFO = 16
cFR = 20
cACC = 180
def acc(X, nt): return cACC + (X * 2 + nt) * 4
def frB(p, X, kk): return cFR + p * 80 + (kk * 8 + X) * 4
def frW(p, nt, kk): return cFR + p * 80 + 64 + (kk * 2 + nt) * 4
E('v_and_b32 v%d, 15, v%d' % (cT0, vL))
E('v_lshrrev_b32 v%d, 4, v%d' % (cT1, vL))
E('v_lshrrev_b32 v%d, 1, v%d' % (cT2, cT0))
E('v_xor_b32 v%d, v%d, v%d' % (cT2, cT2, cT1))
E('v_lshlrev_b32 v%d, 4, v%d' % (cT2, cT2))
E('v_lshl_add_u32 v%d, v%d, 7, v%d' % (cB[0][0], cT0, cT2))
E('v_add_u32 v%d, 0x%x, v%d' % (cB[0][0], ABASE, cB[0][0]))
E('v_xor_b32 v%d, 64, v%d' % (cB[0][1], cB[0][0]))
E('v_add_u32 v%d, 0x10000, v%d' % (cB[1][0], cB[0][0]))
E('v_add_u32 v%d, 0x10000, v%d' % (cB[1][1], cB[0][1]))
E('v_bfe_u32 v%d, v%d, 2, 2' % (cT0, vL))
E('v_and_b32 v%d, 1, v%d' % (cT2, cT1))
E('v_lshl_or_b32 v%d, v%d, 2, v%d' % (cT2, cT2, cT0))
E('v_lshl_add_u32 v%d, v%d, 3, v%d' % (cT0, cT1, cT0))
E('v_lshlrev_b32 v%d, 8, v%d' % (cT0, cT0))
E('v_and_b32 v%d, 3, v%d' % (cT1, vL))
E('v_lshl_add_u32 v%d, v%d, 3, v%d' % (cT0, cT1, cT0))
E('s_lshl_b32 s%d, s%d, 1' % (sT0, sQ))
for nt in range(2):
    E('s_add_u32 s%d, s%d, %d' % (sT1, sT0, nt))
    E('v_xor_b32 v%d, s%d, v%d' % (cT1, sT1, cT2))
    E('v_lshl_add_u32 v%d, v%d, 5, v%d' % (cW[nt], cT1, cT0))
E('v_lshlrev_b32 v%d, 4, v%d' % (cXo, vL))
E('s_mul_i32 s%d, s%d, %d' % (sT0, sQ, PIECE // 4))
E('v_add_u32 v%d, s%d, v%d' % (cXo, sT0, cXo))
E('v_mov_b32 v%d, 1' % cONE)
E('s_add_u32 s%d, s%d, 1' % (sT0, sME))
E('v_add_u32 v%d, s%d, v%d' % (cT0, sT0, vL))
E('v_and_b32 v%d, 7, v%d' % (cT0, cT0))
E('v_mul_u32_u24 v%d, %d, v%d' % (cT0, 9 * PIECE, cT0))
E('s_mul_i32 s%d, s%d, %d' % (sT0, sGRP, 8 * PIECE))
E('s_lshl_b32 s%d, s%d, 7' % (sT1, sME))
E('s_add_u32 s%d, s%d, s%d' % (sT0, sT0, sT1))
E('v_add_u32 v%d, s%d, v%d' % (cFO, sT0, cT0))
for r in range(64): E('v_mov_b32 v%d, 0' % (cACC + r))
E('s_waitcnt lgkmcnt(0)')
srd(R_WS, 26, WS_BYTES)
srd(R_T0, 24, 512)
assert RW <= 4
def reads(u):
    p = u & 1
    l = []
    for kk in range(2):
        for nt in range(2):
            for h in range(2):
                l.append('ds_read_b64_tr_b16 %s, v%d offset:%d' % (vr(frW(p, nt, kk) + 2 * h, 2), cW[nt], (u % RW) * 16384 + kk * 8192 + h * 1024))
        s = u % RA
        for X in range(8):
            l.append('ds_read_b128 %s, v%d offset:%d' % (vr(frB(p, X, kk)), cB[s // 4][kk], (s % 4) * 16384 + X * 2048))
    return l
if P['CPF']: E('s_waitcnt vmcnt(0)')
E('s_barrier')
ts(2)
for x in reads(0): E(x)
for u in range(NSTEP):
    p = u & 1
    E('; ---- step %d' % u)
    E('s_waitcnt lgkmcnt(0)')
    E('s_barrier')
    if u < NSTEP - 1:
        mf = ['v_mfma_f32_16x16x32_bf16 %s, %s, %s, %s' % (vr(acc(X, nt)), vr(frW(p, nt, kk)), vr(frB(p, X, kk)), vr(acc(X, nt)))
              for kk in range(2) for X in range(8) for nt in range(2)]
    else:
        mf = ['v_mfma_f32_16x16x32_bf16 %s, %s, %s, %s' % (vr(acc(X, nt)), vr(frW(p, nt, kk)), vr(frB(p, X, kk)), vr(acc(X, nt)))
              for X in range(8) for kk in range(2) for nt in range(2)]
    rd = reads(u + 1) if u + 1 < NSTEP else []
    for m, x in enumerate(mf):
        E(x)
        if m < len(rd): E(rd[m])
    if u == NSTEP - 5:
        if P['DBG']:
            E('s_lshl_b32 s%d, s%d, 2' % (sT2, sMT))
            E('s_add_u32 s%d, s%d, 128' % (sT2, sT2))
            E('v_mov_b32 v%d, s%d' % (cT0, sT2))
        else:
            E('v_mov_b32 v%d, s%d' % (cT0, sGRP))
        E('buffer_load_dwordx2 %s, v%d, %s, 0 offen sc1' % (vr(cRDY, 2), cT0, sr(R_T0)))
ts(3)
INC[0] = False
E('s_mov_b32 s%d, 0' % sSPIN)
def stores(X):
    E('s_add_u32 s%d, s%d, %d' % (sT3, sME, X + 1))
    E('s_and_b32 s%d, s%d, 7' % (sT3, sT3))
    E('s_add_u32 s%d, s%d, s%d' % (sT2, sT3, sGRP))
    E('s_lshl_b32 s%d, s%d, 3' % (sT2, sT2))
    E('s_add_u32 s%d, s%d, s%d' % (sT2, sT2, sME))
    E('s_mul_i32 s%d, s%d, %d' % (sT2, sT2, PIECE))
    if BF:
        a0, a1 = acc(X, 0), acc(X, 1)
        E('v_cvt_pk_bf16_f32 v%d, v%d, v%d' % (a0, a0, a0 + 1))
        E('v_cvt_pk_bf16_f32 v%d, v%d, v%d' % (a0 + 1, a0 + 2, a0 + 3))
        E('v_cvt_pk_bf16_f32 v%d, v%d, v%d' % (a0 + 2, a1, a1 + 1))
        E('v_cvt_pk_bf16_f32 v%d, v%d, v%d' % (a0 + 3, a1 + 2, a1 + 3))
        E('buffer_store_dwordx4 %s, v%d, %s, s%d offen sc1' % (vr(a0), cXo, sr(R_WS), sT2))
    else:
        for nt in range(2):
            E('buffer_store_dwordx4 %s, v%d, %s, s%d offen offset:%d sc1' % (vr(acc(X, nt)), cXo, sr(R_WS), sT2, nt * 1024))
if P['SL2']: E('s_sleep %d' % P['SL2'])
for X in range(7):
    stores(X)
    if P['PACE'] and X < 6: E('s_sleep %d' % P['PACE'])
ts(4)
E('v_lshlrev_b32 v%d, 4, v%d' % (cT1, vL))
E('s_lshl_b32 s%d, s%d, 11' % (sT2, sQ))
E('v_add_u32 v%d, s%d, v%d' % (cT1, sT2, cT1))
for nt in range(2): E('ds_write_b128 v%d, %s offset:%d' % (cT1, vr(acc(7, nt)), OWNOFF + nt * 1024))
E('s_waitcnt vmcnt(%d)' % (7 * NST))
L('L_rdychk')
E('v_and_b32 v%d, v%d, v%d' % (cT1, cRDY, cRDY + (0 if P['DBG'] else 1)))
E('s_nop 0')
E('v_readfirstlane_b32 s%d, v%d' % (sT2, cT1))
E('s_cmp_eq_u32 s%d, %s' % (sT2, '0xff' if P['DBG'] else '0x01010101'))
E('s_cbranch_scc1 L_rdyok')
E('s_add_u32 s%d, s%d, 1' % (sSPIN, sSPIN))
E('s_cmp_gt_u32 s%d, 0x8000' % sSPIN)
E('s_cbranch_scc1 L_rdyok')
E('s_sleep 2')
E('buffer_load_dwordx2 %s, v%d, %s, 0 offen sc1' % (vr(cRDY, 2), cT0, sr(R_T0)))
E('s_waitcnt vmcnt(0)')
E('s_branch L_rdychk')
L('L_rdyok')
E('s_waitcnt vmcnt(0) lgkmcnt(0)')
ts(5)
E('s_barrier')
if P['POLL'] != 'dma':
    E('s_cmp_lg_u32 s%d, 1' % sQ)
    E('s_cbranch_scc1 L_notpoller')
    E('s_lshl_b32 s%d, s%d, 3' % (sT0, sSELF))
    E('s_add_u32 s%d, s%d, s%d' % (sT0, sT0, sME))
    E('s_mul_i32 s%d, s%d, %d' % (sT0, sT0, PIECE))
    E('v_lshlrev_b32 v%d, 7, v%d' % (cT0, vL))
    E('v_add_u32 v%d, s%d, v%d' % (cT0, sT0, cT0))
    E('v_lshlrev_b32 v%d, 2, v%d' % (cT1, vL))
    E('v_add_u32 v%d, 0x%x, v%d' % (cT1, SCROFF + 1024, cT1))
    E('s_lshl_b32 s%d, 1, s%d' % (sMASK, sME))
    E('s_mov_b32 exec_hi, 0')
    L('L_cpoll')
    E('s_andn2_b32 exec_lo, 0xff, s%d' % sMASK)
    if P['POLL'] == 'atom':
        E('v_mov_b32 v%d, 0' % cT2)
        E('buffer_atomic_or v%d, v%d, %s, 0 offen sc0 sc1' % (cT2, cT0, sr(R_WS)))
    else:
        E('buffer_load_dword v%d, v%d, %s, 0 offen sc1' % (cT2, cT0, sr(R_WS)))
    E('s_add_u32 s%d, s%d, 1' % (sSPIN, sSPIN))
    E('s_cmp_gt_u32 s%d, 0x20000' % sSPIN)
    E('s_cbranch_scc1 L_end')
    E('s_waitcnt vmcnt(0)')
    E('ds_write_b32 v%d, v%d' % (cT1, cT2))
    E('v_cmp_ne_u32 vcc, 0, v%d' % cT2)
    E('s_nop 1')
    E('s_or_b32 s%d, s%d, vcc_lo' % (sMASK, sMASK))
    if P['PSL']: E('s_sleep %d' % P['PSL'])
    E('s_cmp_lg_u32 s%d, 0xff' % sMASK)
    E('s_cbranch_scc1 L_cpoll')
    E('s_endpgm')
    L('L_notpoller')
E('s_cmp_lg_u32 s%d, 0' % sQ)
E('s_cbranch_scc1 L_end')
E('s_mov_b64 exec, 0x7f')
E(('buffer_atomic_or v%d, v%d, %s, 0 offen sc1' if P['FAT'] else 'buffer_store_dword v%d, v%d, %s, 0 offen sc1') % (cONE, cFO, sr(R_WS)))
E('s_mov_b64 exec, -1')
if TS:
    ts(6)
    E('s_cmp_lg_u32 s%d, 0' % sQ)
    E('s_cbranch_scc1 L_end')
    ts_store(1)
L('L_end')
E('s_endpgm')
out += ['.section .rodata,"a"', '.p2align 6', '.amdhsa_kernel ' + KN, '  .amdhsa_next_free_vgpr 248', '  .amdhsa_next_free_sgpr 100',
        '  .amdhsa_accum_offset 248', '  .amdhsa_group_segment_fixed_size 0', '  .amdhsa_kernarg_size 96', '  .amdhsa_user_sgpr_count 2',
        '  .amdhsa_user_sgpr_kernarg_segment_ptr 1', '  .amdhsa_system_sgpr_workgroup_id_x 1', '  .amdhsa_float_denorm_mode_32 3', '.end_amdhsa_kernel']
open(sys.argv[1], 'w').write('\n'.join(out) + '\n')
print('lds', LDS_BYTES, 'lines', len(out))
```

```python
import sys, copy
P = dict(XFMT='f32', TS=0, RA=6, RW=4, PF=0, LPRIO=2, COOP=1, SLP=0, NOMF=0, NORD=0, ORD='AAWW', PH=0, Q=8, Q0=12, FG=2, IDXL=1, PFPOS=0, CPF=0, DBG=0, DELAY=0, SL0=0, SL1=0, LEAK=0, POLL='atom', PSL=0, FAT=0, SL2=0, PACE=0, SFL='sc1', LFL='sc1', RDY1=1, ROT=1, L1ST=1, NPOLL=1)
for a in sys.argv[2:]:
    k, v = a.split('=')
    P[k] = int(v) if v.lstrip('-').isdigit() else v
BF = P['XFMT'] == 'bf16'
TS = P['TS']
RA, RW = P['RA'], P['RW']
NSTEP = 25
WBASE = 0
ABASE = RW * 16384
LDS_BYTES = (RA + RW) * 16384
F24 = P['XFMT'] == 'f24'
NST = 1 if BF else 2
PIECE = 6144 if F24 else NST * 4096
TB = 768 if F24 else 1024
TSOFF = 56 << 20
WS_BYTES = 64 << 20
out = []
INC = [False]
INC2 = [False]
def E(s=''):
    if P['NOMF'] and s.startswith('v_mfma'): return
    if P['NORD'] and INC[0] and s.startswith('ds_read'): return
    out.append('    ' + s)
def L(s): out.append(s + ':')
def vr(b, n=4): return 'v[%d:%d]' % (b, b + n - 1)
def sr(b, n=4): return 's[%d:%d]' % (b, b + n - 1)
R_TAB, R_W1, R_IDX, R_WS, R_T0, R_T1, R_T2 = 28, 32, 36, 40, 44, 48, 96
sW, sMT, sME, sQ, sLOFF, sWp, sWm, sT0, sT1, sT2, sT3, sSELF, sPREV, sMASK, sGRP, sSPIN, sNH, sFB, sKQ, sFLG = range(52, 72)
sTS = 72
sW0 = 94
def ts(i):
    if P['LEAK'] and not INC2[0] and i == P['LEAK']:
        E('s_memrealtime s[74:75]')
    if TS:
        E('s_memrealtime s[%d:%d]' % (sTS + 2 * i, sTS + 2 * i + 1))
        if i == 2: E('s_memtime s[88:89]')
        if i == 3: E('s_memtime s[90:91]')
def srd(r, p, nbytes):
    E('s_mov_b32 s%d, s%d' % (r, p))
    E('s_and_b32 s%d, s%d, 0xffff' % (r + 1, p + 1))
    E('s_mov_b32 s%d, 0x%x' % (r + 2, nbytes))
    E('s_mov_b32 s%d, 0x00020000' % (r + 3))
def ts_store(role):
    if P['DBG']:
        E('s_waitcnt lgkmcnt(0)')
        E('s_mov_b64 exec, 1')
        E('v_mov_b32 v2, 0')
        if role == 0:
            E('s_not_b32 s%d, s%d' % (sT2, sTS))
            E('v_mov_b32 v4, s%d' % sT2)
            E('buffer_atomic_umax v4, v2, %s, 0 offen offset:28 sc1' % sr(R_T0))
            E('v_mov_b32 v5, s%d' % (sTS + 12))
            E('buffer_atomic_umax v5, v2, %s, 0 offen offset:60 sc1' % sr(R_T0))
        E('s_cmp_lg_u32 s2, %d' % P['DBG'])
        E('s_cbranch_scc1 L_end')
        for i in range(7):
            if i == 0: E('s_mov_b32 s%d, s%d' % (sT2, sTS))
            else: E('s_sub_u32 s%d, s%d, s%d' % (sT2, sTS + 2 * i, sTS))
            E('v_mov_b32 v%d, s%d' % (6 + i, sT2))
            E('buffer_store_dword v%d, v2, %s, 0 offen offset:%d sc1' % (6 + i, sr(R_T0), role * 32 + 4 * i))
        return
    E('s_waitcnt lgkmcnt(0)')
    E('s_mov_b64 exec, 1')
    E('s_lshl_b32 s%d, s2, 7' % sT2)
    E('s_add_u32 s%d, s%d, 0x%x' % (sT2, sT2, TSOFF + role * 64))
    E('v_mov_b32 v2, 0')
    E('s_sub_u32 s86, s90, s88')
    E('s_subb_u32 s87, s91, s89')
    for i in range(8):
        E('v_mov_b32 v4, s%d' % (sTS + 2 * i))
        E('v_mov_b32 v5, s%d' % (sTS + 2 * i + 1))
        E('buffer_store_dwordx2 v[4:5], v2, %s, s%d offen offset:%d' % (sr(R_WS), sT2, 8 * i))
        E('s_nop 1')
hdr = open('standalone__deep_cross_wide_deep__recsys.s.ref').read().split('\n')
for line in hdr:
    if line.startswith('; @launch'):
        out.append('; @launch grid=(256,1,1) block=(512,1,1) lds=%d' % LDS_BYTES)
    elif line.startswith(';'):
        out.append(line)
    else:
        break
out.append('; generated v2-style v4: ' + ' '.join('%s=%s' % kv for kv in sorted(P.items())))
out.append('.amdgcn_target "amdgcn-amd-amdhsa--gfx950"')
out.append('.text')
KN = 'standalone__deep_cross_wide_deep__recsys_kernel'
out += ['.globl ' + KN, '.p2align 8', '.type %s,@function' % KN]
L(KN)
E('s_cmp_ge_u32 s2, 256')
E('s_cbranch_scc1 L_end')
E('s_load_dwordx16 s[4:19], s[0:1], 0')
E('s_load_dwordx8 s[20:27], s[0:1], 64')
if TS:
    for i in range(1, 8): E('s_mov_b64 s[%d:%d], 0' % (sTS + 2 * i, sTS + 2 * i + 1))
    E('s_mov_b64 s[88:89], 0'); E('s_mov_b64 s[90:91], 0')
ts(0)
vL = 1
if P['DELAY']:
    E('s_memrealtime s[92:93]')
    E('s_waitcnt lgkmcnt(0)')
    E('s_add_u32 s94, s92, %d' % P['DELAY'])
    L('L_dly')
    E('s_memrealtime s[92:93]')
    E('s_waitcnt lgkmcnt(0)')
    E('s_sub_u32 s95, s92, s94')
    E('s_cmp_lt_i32 s95, 0')
    E('s_cbranch_scc1 L_dly')
for _ in range(P['SL0']): E('s_sleep 127')
E('v_lshrrev_b32 v2, 6, v0')
E('v_and_b32 v%d, 63, v0' % vL)
E('v_readfirstlane_b32 s%d, v2' % sW)
E('s_lshr_b32 s%d, s2, 3' % sT0)
E('s_and_b32 s%d, s%d, 1' % (sNH, sT0))
E('s_lshr_b32 s%d, s%d, 1' % (sMT, sT0))
E('s_bfe_u32 s%d, s2, 0x10002' % sT1)
E('s_lshl_b32 s%d, s%d, 4' % (sT1, sT1))
E('s_add_u32 s%d, s%d, s%d' % (sMT, sMT, sT1))
E('s_and_b32 s%d, s2, 3' % sKQ)
E('s_lshl_b32 s%d, s%d, 2' % (sME, sNH))
E('s_add_u32 s%d, s%d, s%d' % (sME, sME, sKQ))
E('s_lshl_b32 s%d, s%d, 3' % (sGRP, sMT))
E('s_add_u32 s%d, s%d, s%d' % (sSELF, sGRP, sME))
E('s_and_b32 s%d, s%d, 3' % (sQ, sW))
if P['CPF']: E('s_getpc_b64 s[92:93]')
E('s_cmp_lt_u32 s%d, 4' % sW)
E('s_cbranch_scc1 L_compute')
def wslot(u): return WBASE + (u % RW) * 16384
def aslot(c): return ABASE + (c % RA) * 16384
OWNOFF, SCROFF = 0, 16384
def need_at(b):
    u = b + 1
    return [('W', u), ('A', u)] if u < NSTEP else []

vT0, vT1, vT2, vT3 = 2, 3, 4, 5
vWd = [6, 7, 8, 9]
vIDX = [12 + 28 * i for i in range(4)]
vB1v, vW2v, vXW, vWW, vSC, vFo, vXc, vONE = 124, 132, 140, 144, 148, 150, 151, 152
vS = 156
vRX = 176
vBf, vWf = 12, 28
vmq = []
def vm(t): vmq.append(t)
def wait_for(tags, cnt):
    last = -1
    for t in tags:
        if isinstance(t, tuple): assert vmq.count(t) == cnt, ('needed DMA not issued', t, vmq.count(t))
    for i, t in enumerate(vmq):
        if t in tags: last = i
    return min(len(vmq) - 1 - last, 63)
if P['LPRIO']: E('s_setprio %d' % P['LPRIO'])
if P['LEAK']: E('s_memrealtime s[72:73]')
E('s_mul_i32 s%d, s%d, 25' % (sFB, sKQ))
E('s_lshl_b32 s%d, s%d, 15' % (sW0, sFB))
E('s_lshl_b32 s%d, s%d, 16' % (sT0, sNH))
if not P['COOP']: E('s_mov_b32 s%d, 0' % sT0)
E('s_add_u32 s%d, s%d, s%d' % (sWp, sW0, sT0))
E('s_sub_u32 s%d, s%d, s%d' % (sWm, sW0, sT0))
E('s_lshl_b32 s%d, s%d, 2' % (sFB, sFB))
E('s_lshl_b32 s%d, s%d, 12' % (sLOFF, sQ))
if P['ROT']:
    E('s_mul_i32 s100, s%d, 43' % sMT)
    E('s_lshr_b32 s100, s100, 8')
    E('s_mul_i32 s100, s100, 6')
    E('s_sub_u32 s100, s%d, s100' % sMT)
    E('s_lshl_b32 s100, s100, 17')
E('v_lshrrev_b32 v%d, 3, v%d' % (vT2, vL))
for j in range(2):
    E('s_lshl_b32 s%d, s%d, 1' % (sT0, sQ))
    E('s_add_u32 s%d, s%d, s%d' % (sT0, sT0, sME))
    E('s_add_u32 s%d, s%d, %d' % (sT0, sT0, 1 + j))
    E('s_and_b32 s%d, s%d, 7' % (sT0, sT0))
    E('s_add_u32 s%d, s%d, s%d' % (sT0, sT0, sGRP))
    E('s_lshl_b32 s%d, s%d, 4' % (sT0, sT0))
    E('v_add_u32 v%d, s%d, v%d' % (vT0 + j, sT0, vT2))
    E('v_mul_u32_u24 v%d, 400, v%d' % (vT0 + j, vT0 + j))
if P['IDXL']:
    E('v_and_b32 v10, 7, v%d' % vL)
    for j in range(2): E('v_lshl_add_u32 v%d, v10, 4, v%d' % (vT0 + j, vT0 + j))
    E('v_add_u32 v%d, 3200, v%d' % (vS, vT0))
    E('v_add_u32 v%d, 3200, v%d' % (vS + 1, vT1))
E('v_lshrrev_b32 v%d, 4, v%d' % (vT2, vL))
E('v_lshlrev_b32 v%d, 1, v%d' % (vT3, vT2))
E('v_and_b32 v10, 15, v%d' % vL)
E('v_xor_b32 v%d, v%d, v10' % (vT3, vT3))
E('v_lshlrev_b32 v%d, 9, v%d' % (vT2, vT2))
E('s_lshl_b32 s%d, s%d, 13' % (sT0, sQ))
E('s_lshl_b32 s%d, s%d, 8' % (sT1, sNH))
E('s_add_u32 s%d, s%d, s%d' % (sT0, sT0, sT1))
E('v_add_u32 v%d, s%d, v%d' % (vT2, sT0, vT2))
E('v_lshl_add_u32 v%d, v%d, 4, v%d' % (vWd[0], vT3, vT2))
E('v_add_u32 v%d, 2048, v%d' % (vWd[1], vWd[0]))
E('v_xor_b32 v%d, 8, v%d' % (vT3, vT3))
E('v_lshl_add_u32 v%d, v%d, 4, v%d' % (vWd[2], vT3, vT2))
E('v_add_u32 v%d, 4096, v%d' % (vWd[2], vWd[2]))
E('v_add_u32 v%d, 2048, v%d' % (vWd[3], vWd[2]))
E('s_waitcnt lgkmcnt(0)')
srd(R_IDX, 4, 4096 * 400)
srd(R_W1, 14, 6400 * 512)
IDXL_OFF = aslot(RA - 1)
if P['IDXL']:
    for i in range(4):
        E('s_add_u32 m0, s%d, 0x%x' % (sLOFF, IDXL_OFF + i * 1024))
        E('s_nop 0')
        E('buffer_load_dwordx4 v%d, %s, s%d offen lds' % ([vT0, vS, vT1, vS + 1][i], sr(R_IDX), sFB)); vm('idx0')
else:
    for c in range(7):
        for i in range(4):
            if c < 6:
                E('buffer_load_dwordx4 %s, v%d, %s, s%d offen offset:%d' % (vr(vIDX[i] + 4 * c), vT0 + (i >> 1), sr(R_IDX), sFB, (i & 1) * 3200 + c * 16))
            else:
                E('buffer_load_dword v%d, v%d, %s, s%d offen offset:%d' % (vIDX[i] + 24, vT0 + (i >> 1), sr(R_IDX), sFB, (i & 1) * 3200 + 96))
            vm('idx0' if c == 0 else 'idx')
def pos(t):
    if not P['L1ST']: return t
    return 24 if t == 0 else t - 1
def dmaW(t, i):
    u = pos(t)
    if i == 0:
        base = sW0 if u == 24 else (sWp if ((u >> 1) & 1) == 0 else sWm)
        if P['ROT'] and u < 24:
            r = u >> 2
            E('s_add_u32 s%d, s100, 0x%x' % (sT3, r * 131072))
            E('s_sub_u32 s101, s%d, 0x%x' % (sT3, 6 * 131072))
            E('s_cselect_b32 s%d, s%d, s101' % (sT3, sT3))
            E('s_add_u32 s%d, s%d, s%d' % (sT3, sT3, base))
            if u & 3: E('s_add_u32 s%d, s%d, 0x%x' % (sT3, sT3, (u & 3) * 32768))
        else:
            E('s_add_u32 s%d, s%d, 0x%x' % (sT3, base, u * 32768))
    E('s_add_u32 m0, s%d, 0x%x' % (sLOFF, wslot(t) + i * 1024))
    E('s_nop 0')
    E('buffer_load_dwordx4 v%d, %s, s%d offen lds' % (vWd[i], sr(R_W1), sT3)); vm(('W', t))
def dmaA(c, i):
    E('s_add_u32 m0, s%d, 0x%x' % (sLOFF, aslot(c) + i * 1024))
    E('s_nop 0')
    E('buffer_load_dwordx4 v%d, %s, 0 offen lds' % (vIDX[i] + pos(c), sr(R_TAB))); vm(('A', c))
def chunk(k, c):
    for i in range(4): (dmaW if k == 'W' else dmaA)(c, i)
chunk('W', 0)
def wpf():
    if not P['PF']: return
    if P['PF'] == 2:
        E('v_lshlrev_b32 v%d, 4, v%d' % (vT2, vL))
        E('s_lshr_b32 s%d, s2, 3' % sT0)
        E('s_lshl_b32 s%d, s%d, 10' % (sT0, sT0))
        E('s_lshl_b32 s%d, s%d, 8' % (sT1, sQ))
        E('s_add_u32 s%d, s%d, s%d' % (sT0, sT0, sT1))
        E('s_add_u32 s%d, s%d, s%d' % (sT0, sT0, sW0))
        E('s_add_u32 s%d, s%d, 0x%x' % (sT0, sT0, 24 * 32768))
        E('s_mov_b64 exec, 0xffff')
        E('buffer_load_dwordx4 %s, v%d, %s, s%d offen' % (vr(vRX), vT2, sr(R_W1), sT0)); vm('pf')
        E('s_mov_b64 exec, -1')
        return
    E('v_lshlrev_b32 v%d, 4, v%d' % (vT2, vL))
    E('s_lshl_b32 s%d, s%d, 10' % (sT0, sQ))
    E('v_add_u32 v%d, s%d, v%d' % (vT2, sT0, vT2))
    E('s_lshr_b32 s%d, s2, 3' % sT0)
    E('s_mul_i32 s%d, s%d, 25600' % (sT0, sT0))
    E('s_add_u32 s%d, s%d, s%d' % (sT0, sT0, sW0))
    for j in range(7):
        if j == 6:
            E('v_cmp_gt_u32 vcc, 1024, v%d' % vT2)
            E('v_mov_b32 v%d, 0x40000000' % (vS + 2))
            E('s_nop 0')
            E('v_cndmask_b32 v%d, v%d, v%d, vcc' % (vT2, vS + 2, vT2))
        E('buffer_load_dwordx4 %s, v%d, %s, s%d offen' % (vr(vRX + 4 * j), vT2, sr(R_W1), sT0)); vm('pf')
        if j < 6: E('s_add_u32 s%d, s%d, 4096' % (sT0, sT0))
if P['PFPOS'] == 0: wpf()
srd(R_TAB, 6, 100000 * 128)
srd(R_WS, 26, WS_BYTES)
srd(R_T0, 24, 512)
srd(R_T1, 22, 16384)
E('s_lshl_b32 s%d, s%d, 3' % (sFLG, sSELF))
E('s_add_u32 s%d, s%d, s%d' % (sFLG, sFLG, sME))
E('s_mul_i32 s%d, s%d, %d' % (sFLG, sFLG, PIECE))
E('s_lshl_b32 s%d, s%d, 8' % (sT0, sQ))
E('s_add_u32 s%d, s%d, s%d' % (sT0, sT0, sFLG))
E('v_mov_b32 v%d, 0' % vT2)
E('v_lshlrev_b32 v%d, 7, v%d' % (vT3, vL))
E('s_mov_b64 exec, 3')
E('buffer_store_dword v%d, v%d, %s, s%d offen sc1' % (vT2, vT3, sr(R_WS), sT0)); vm('clr')
E('s_mov_b64 exec, -1')
E('v_and_b32 v%d, 7, v%d' % (vFo, vL))
E('v_lshlrev_b32 v%d, 7, v%d' % (vFo, vFo))
E('v_add_u32 v%d, s%d, v%d' % (vFo, sFLG, vFo))
E(('v_mul_u32_u24 v%d, 12, v%d' if F24 else 'v_lshlrev_b32 v%d, 4, v%d') % (vXc, vL))
E('s_mul_i32 s%d, s%d, %d' % (sT0, sQ, PIECE // 4))
E('v_add_u32 v%d, s%d, v%d' % (vXc, sT0, vXc))
E('v_mov_b32 v%d, 1' % vONE)
E('v_lshrrev_b32 v10, 4, v%d' % vL)
E('v_and_b32 v11, 7, v%d' % vL)
E('v_xor_b32 v10, v10, v11')
E('v_lshlrev_b32 v10, 4, v10')
E('v_xor_b32 v11, 64, v10')
def conv(cs, tag):
    if P['COOP']:
        E('s_cmp_eq_u32 s%d, 0' % sNH)
        E('s_cbranch_scc1 L_nosw%s' % tag)
        for i in range(4):
            for c in cs:
                if c % 4 < 2 and c < 24:
                    E('v_swap_b32 v%d, v%d' % (vIDX[i] + c, vIDX[i] + c + 2))
        L('L_nosw%s' % tag)
    for c in cs:
        for i in range(4):
            E('v_lshl_or_b32 v%d, v%d, 7, v%d' % (vIDX[i] + c, vIDX[i] + c, 10 + (i & 1)))
E('s_waitcnt vmcnt(%d)' % wait_for(['idx0'], 0))
ts(1)
if P['IDXL']:
    E('v_lshrrev_b32 v%d, 3, v%d' % (vT2, vL))
    E('v_lshlrev_b32 v%d, 7, v%d' % (vT2, vT2))
    E('v_add_u32 v%d, s%d, v%d' % (vT2, sLOFF, vT2))
    E('v_add_u32 v%d, 0x%x, v%d' % (vT2, IDXL_OFF, vT2))
    corder = [6, 0, 1, 2, 3, 4, 5] if P['L1ST'] else list(range(7))
    for ci, c in enumerate(corder):
        if P['ROT'] and c < 6:
            E('s_lshr_b32 s%d, s100, 13' % sT0)
            E('s_add_u32 s%d, s%d, %d' % (sT0, sT0, c * 16))
            E('s_sub_u32 s101, s%d, 96' % sT0)
            E('s_cselect_b32 s%d, s%d, s101' % (sT0, sT0))
            E('v_add_u32 v%d, s%d, v%d' % (vT3, sT0, vT2))
        for i in range(4):
            if c < 6 and P['ROT']: E('ds_read_b128 %s, v%d offset:%d' % (vr(vIDX[i] + 4 * c), vT3, i * 1024))
            elif c < 6: E('ds_read_b128 %s, v%d offset:%d' % (vr(vIDX[i] + 4 * c), vT2, i * 1024 + c * 16))
            else: E('ds_read_b32 v%d, v%d offset:%d' % (vIDX[i] + 24, vT2, i * 1024 + 96))
        if c == 0:
            E('s_waitcnt lgkmcnt(0)')
            conv(([24] if P['L1ST'] else []) + list(range(4)), 'a')
            chunk('A', 0)
    chunk('A', 1)
    if P['L1ST']: chunk('A', 2)
    E('s_waitcnt lgkmcnt(0)')
    conv(range(4, 24 if P['L1ST'] else 25), 'b')
else:
    conv(range(4), 'a')
    chunk('A', 0); chunk('A', 1)
    E('s_waitcnt vmcnt(%d)' % wait_for(['idx'], 0))
    conv(range(4, 25), 'b')
if P['PFPOS'] == 1: wpf()
def earliest(k, ch):
    R = RW if k == 'W' else RA
    return -1 if ch < R else ch - R
order = []
if P['L1ST']:
    order = [('W', 1), ('W', 2)]
    for p in range(1, 12):
        order += [('A', 2 * p + 1), ('A', 2 * p + 2), ('W', 2 * p + 1), ('W', 2 * p + 2)]
elif P['ORD'] == 'AAWW':
    order = [('W', 1)]
    for p in range(1, 13):
        order += [('A', c) for c in (2 * p, 2 * p + 1) if c < 25] + [('W', c) for c in (2 * p, 2 * p + 1) if c < 25]
elif P['ORD'] == 'A2':
    order = [('W', 1), ('A', 2), ('A', 3)]
    for p in range(1, 13):
        order += [('A', c) for c in (2 * p + 2, 2 * p + 3) if c < 25] + [('W', c) for c in (2 * p, 2 * p + 1) if c < 25]
else:
    order = [('W', 1)]
    for c in range(2, 25): order += [('A', c), ('W', c)]
pend = list(order)
def loader_loop(var):
    for b in range(-1, NSTEP):
        nd = need_at(b)
        while any(vmq.count(t) < 4 for t in nd):
            d = pend[0]
            if earliest(*d) > b - 1:
                d = [x for x in pend if x in nd][0]
                assert earliest(*d) <= b - 1
            pend.remove(d); chunk(*d)
        if nd: E('s_waitcnt vmcnt(%d)' % wait_for(nd, 4))
        E('s_barrier')
        if b == -1: ts(2)
        q = (P['Q0'] if b < 4 else P['Q']) // 4
        n = 0
        while pend and n < q:
            d = pend[0]
            if earliest(*d) > b: break
            if d[0] == 'A' and len(pend) > 1 and pend[1][0] == 'A' and d[1] % 2 == P['L1ST'] and earliest(*pend[1]) > b: break
            pend.pop(0); chunk(*d); n += 1
        if b == 2:
            E('s_cmp_lg_u32 s%d, 0' % sQ)
            E('s_cbranch_scc1 L_nordy%d' % var)
            if P['DBG']:
                E('s_lshl_b32 s%d, s%d, 2' % (sT2, sMT))
                E('s_add_u32 s%d, s%d, 128' % (sT2, sT2))
                E('v_mov_b32 v%d, s%d' % (vT0, sT2))
                E('s_lshl_b32 s%d, 1, s%d' % (sT2, sME))
                E('v_mov_b32 v%d, s%d' % (vT1, sT2))
                E('s_mov_b64 exec, 1')
                E('buffer_atomic_or v%d, v%d, %s, 0 offen sc1' % (vT1, vT0, sr(R_T0)))
            else:
                E('v_mov_b32 v%d, s%d' % (vT0, sSELF))
                E('s_mov_b64 exec, 1')
                E('buffer_store_byte v%d, v%d, %s, 0 offen sc1' % (vONE, vT0, sr(R_T0)))
            E('s_mov_b64 exec, -1')
            L('L_nordy%d' % var)
        if b == NSTEP - 4: small_loads()
def small_loads():
    srd(R_IDX, 16, 512); srd(R_T2, 18, 512)
    E('s_lshl_b32 s%d, s%d, 6' % (sT0, sQ))
    E('v_lshrrev_b32 v%d, 4, v%d' % (vT0, vL))
    E('v_lshlrev_b32 v%d, 3, v%d' % (vT0, vT0))
    for t in range(4):
        off = 256 * (t >> 1) + 32 * (t & 1)
        E('buffer_load_dwordx2 %s, v%d, %s, s%d offen offset:%d' % (vr(vB1v + 2 * t, 2), vT0, sr(R_IDX), sT0, off)); vm('ep')
        E('buffer_load_dwordx2 %s, v%d, %s, s%d offen offset:%d' % (vr(vW2v + 2 * t, 2), vT0, sr(R_T2), sT0, off)); vm('ep')
    E('s_nop 0')
    srd(R_IDX, 8, 4096 * 26 + 64); srd(R_T2, 10, 64)
    E('v_and_b32 v%d, 15, v%d' % (vT1, vL))
    E('s_lshl_b32 s%d, s%d, 4' % (sT0, sSELF))
    E('v_add_u32 v%d, s%d, v%d' % (vT1, sT0, vT1))
    E('v_mul_u32_u24 v%d, 26, v%d' % (vT1, vT1))
    E('v_lshrrev_b32 v%d, 2, v%d' % (vT0, vT0))
    E('v_add_u32 v%d, v%d, v%d' % (vT1, vT1, vT0))
    for m in range(4):
        if m == 3:
            E('v_mov_b32 v%d, 0' % (vXW + 3)); E('v_mov_b32 v%d, 0' % (vWW + 3))
            E('s_mov_b64 exec, 0xffff')
        E('buffer_load_ushort v%d, v%d, %s, 0 offen offset:%d' % (vXW + m, vT1, sr(R_IDX), 8 * m)); vm('ep')
        E('buffer_load_ushort v%d, v%d, %s, 0 offen offset:%d' % (vWW + m, vT0, sr(R_T2), 8 * m)); vm('ep')
    E('s_mov_b64 exec, -1')
    E('s_nop 0')
    srd(R_IDX, 12, 64); srd(R_T2, 20, 64)
    E('v_mov_b32 v%d, 0' % vT2)
    E('buffer_load_ushort v%d, v%d, %s, 0 offen' % (vSC, vT2, sr(R_IDX))); vm('ep')
    E('buffer_load_ushort v%d, v%d, %s, 0 offen' % (vSC + 1, vT2, sr(R_T2))); vm('ep')
loader_loop(0)
assert not pend, pend
ts(3)
def lane_reduce(v, tmp):
    E('v_mov_b32 v%d, v%d' % (tmp, v)); E('s_nop 1')
    E('v_permlane32_swap_b32 v%d, v%d' % (v, tmp)); E('s_nop 1')
    E('v_add_f32 v%d, v%d, v%d' % (v, v, tmp))
    E('v_mov_b32 v%d, v%d' % (tmp, v)); E('s_nop 1')
    E('v_permlane16_swap_b32 v%d, v%d' % (v, tmp)); E('s_nop 1')
    E('v_add_f32 v%d, v%d, v%d' % (v, v, tmp))
def rbf(v):
    E('v_cvt_pk_bf16_f32 v%d, v%d, v%d' % (v, v, v))
    E('v_lshlrev_b32 v%d, 16, v%d' % (v, v))
E('s_waitcnt vmcnt(0)')
for m in range(4):
    E('v_lshlrev_b32 v%d, 16, v%d' % (vXW + m, vXW + m))
    E('v_lshlrev_b32 v%d, 16, v%d' % (vWW + m, vWW + m))
E('v_mul_f32 v%d, v%d, v%d' % (vT0, vXW, vWW))
for m in range(1, 4): E('v_fmac_f32 v%d, v%d, v%d' % (vT0, vXW + m, vWW + m))
lane_reduce(vT0, vT1)
rbf(vT0)
E('v_lshlrev_b32 v%d, 16, v%d' % (vSC, vSC))
E('v_lshlrev_b32 v%d, 16, v%d' % (vSC + 1, vSC + 1))
E('v_add_f32 v%d, v%d, v%d' % (vT0, vT0, vSC))
rbf(vT0)
for t in range(4):
    for d in range(2):
        E('v_lshlrev_b32 v%d, 16, v%d' % (vBf + 4 * t + 2 * d, vB1v + 2 * t + d))
        E('v_and_b32 v%d, 0xffff0000, v%d' % (vBf + 4 * t + 2 * d + 1, vB1v + 2 * t + d))
        E('v_lshlrev_b32 v%d, 16, v%d' % (vWf + 4 * t + 2 * d, vW2v + 2 * t + d))
        E('v_and_b32 v%d, 0xffff0000, v%d' % (vWf + 4 * t + 2 * d + 1, vW2v + 2 * t + d))
for r in range(8 * 4 * NST): E('v_mov_b32 v%d, 0' % (vRX + r))
E('s_mov_b32 s%d, 0' % sSPIN)
E('s_lshl_b32 s%d, 1, s%d' % (sMASK, sME))
E('s_lshl_b32 s%d, s%d, 3' % (sT1, sSELF))
FLDS = SCROFF + 1024
E('v_lshlrev_b32 v%d, 2, v%d' % (vT3, vL))
E('v_add_u32 v%d, 0x%x, v%d' % (vT3, FLDS, vT3))
E('v_mov_b32 v%d, 0' % vT2)
E('ds_write_b32 v%d, v%d' % (vT3, vT2))
E('s_mov_b32 m0, 0x%x' % FLDS)
E('s_waitcnt lgkmcnt(0)')
E('s_barrier')
L('L_rxloop')
if P['POLL'] == 'dma':
    E('s_cmp_lg_u32 s%d, 0' % sQ)
    E('s_cbranch_scc1 L_nopoll')
    E('s_not_b32 s%d, s%d' % (sT2, sMASK))
    E('s_and_b32 exec_lo, s%d, 0xff' % sT2)
    E('s_mov_b32 exec_hi, 0')
    E('buffer_load_dword v%d, %s, 0 offen sc1 lds' % (vFo, sr(R_WS)))
    E('s_mov_b64 exec, -1')
    L('L_nopoll')
if P['SLP']: E('s_sleep %d' % P['SLP'])
E('ds_read_b32 v%d, v%d' % (vT2, vT3))
E('s_add_u32 s%d, s%d, 1' % (sSPIN, sSPIN))
E('s_cmp_gt_u32 s%d, 0x20000' % sSPIN)
E('s_cbranch_scc1 L_rxdone')
E('s_waitcnt vmcnt(30) lgkmcnt(0)')
E('v_cmp_ne_u32 vcc, 0, v%d' % vT2)
E('s_nop 1')
E('s_andn2_b32 s%d, vcc_lo, s%d' % (sPREV, sMASK))
E('s_cbranch_scc0 L_rxloop')
E('s_or_b32 s%d, s%d, s%d' % (sMASK, sMASK, sPREV))
for s_ in range(8):
    E('s_bitcmp1_b32 s%d, %d' % (sPREV, s_))
    E('s_cbranch_scc0 L_rxs%d' % s_)
    E('s_add_u32 s%d, s%d, %d' % (sT2, sT1, s_))
    E('s_mul_i32 s%d, s%d, %d' % (sT2, sT2, PIECE))
    for j in range(NST):
        if F24:
            E('buffer_load_dwordx3 %s, v%d, %s, s%d offen offset:%d sc1' % (vr(vRX + (s_ * NST + j) * 4, 3), vXc, sr(R_WS), sT2, j * TB))
        else:
            E('buffer_load_dwordx4 %s, v%d, %s, s%d offen offset:%d %s' % (vr(vRX + (s_ * NST + j) * 4), vXc, sr(R_WS), sT2, j * 1024, P['LFL'].replace('+', ' ')))
    L('L_rxs%d' % s_)
E('s_cmp_lg_u32 s%d, 0xff' % sMASK)
E('s_cbranch_scc1 L_rxloop')
L('L_rxdone')
ts(4)
E('v_lshlrev_b32 v%d, 4, v%d' % (vT1, vL))
E('s_lshl_b32 s%d, s%d, 11' % (sT2, sQ))
E('v_add_u32 v%d, s%d, v%d' % (vT1, sT2, vT1))
for r in range(16): E('v_mov_b32 v%d, 0' % (vS + r))
E('s_cmp_eq_u32 s%d, 0' % sNH)
E('s_cbranch_scc0 L_own1')
for t in range(2): E('ds_read_b128 %s, v%d offset:%d' % (vr(vS + 4 * t), vT1, OWNOFF + t * 1024))
E('s_branch L_ownj')
L('L_own1')
for t in range(2): E('ds_read_b128 %s, v%d offset:%d' % (vr(vS + 8 + 4 * t), vT1, OWNOFF + t * 1024))
L('L_ownj')
if F24:
    E('s_mov_b32 s92, 0x0c04000c')
    E('s_mov_b32 s93, 0x0402010c')
E('s_waitcnt vmcnt(0) lgkmcnt(0)')
ts(5)
for s_ in range(8):
    o = vS + 8 * (s_ >> 2)
    if BF:
        b = vRX + s_ * 4
        for d in range(4):
            E('v_lshlrev_b32 v%d, 16, v%d' % (vT2, b + d))
            E('v_and_b32 v%d, 0xffff0000, v%d' % (vT3, b + d))
            E('v_pk_add_f32 %s, %s, %s' % (vr(o + 2 * d, 2), vr(o + 2 * d, 2), vr(vT2, 2)))
    else:
        b = vRX + s_ * 8
        if F24:
            for t in range(2):
                d = b + 4 * t
                E('v_perm_b32 v%d, v%d, v%d, s92' % (d + 3, d + 1, d))
                E('v_perm_b32 v%d, v%d, v%d, s93' % (d + 3, d + 2, d + 3))
        for r in range(0, 8, 2):
            E('v_pk_add_f32 %s, %s, %s' % (vr(o + r, 2), vr(o + r, 2), vr(b + r, 2)))
E('v_mov_b32 v%d, 0' % vT1)
E('v_mov_b32 v%d, 0' % vT3)
for r in range(0, 16, 2):
    a, b = vS + r, vS + r + 1
    E('v_cvt_pk_bf16_f32 v%d, v%d, v%d' % (vT2, a, b))
    E('v_lshlrev_b32 v%d, 16, v%d' % (a, vT2))
    E('v_and_b32 v%d, 0xffff0000, v%d' % (b, vT2))
    E('v_pk_add_f32 %s, %s, %s' % (vr(a, 2), vr(a, 2), vr(vBf + r, 2)))
    E('v_cvt_pk_bf16_f32 v%d, v%d, v%d' % (vT2, a, b))
    E('v_lshlrev_b32 v%d, 16, v%d' % (a, vT2))
    E('v_and_b32 v%d, 0xffff0000, v%d' % (b, vT2))
    E('v_cmp_lt_f32 vcc, 0, v%d' % a)
    E('v_cmp_lt_f32 s[92:93], 0, v%d' % b)
    E('s_nop 0')
    E('v_cndmask_b32 v10, 0, 1.0, vcc')
    E('v_cndmask_b32 v11, 0, 1.0, s[92:93]')
    E('v_mul_f32 v%d, v%d, v10' % (a, a))
    E('v_mul_f32 v%d, v%d, v11' % (b, b))
    E('v_fmac_f32 v%d, v%d, v%d' % (vT1, a, vWf + r))
    E('v_fmac_f32 v%d, v%d, v%d' % (vT3, b, vWf + r + 1))
E('v_add_f32 v%d, v%d, v%d' % (vT1, vT1, vT3))
lane_reduce(vT1, vT2)
E('v_and_b32 v%d, 15, v%d' % (vT2, vL))
E('v_lshlrev_b32 v%d, 4, v%d' % (vT2, vT2))
E('s_lshl_b32 s%d, s%d, 2' % (sT2, sQ))
E('v_add_u32 v%d, s%d, v%d' % (vT3, sT2, vT2))
E('s_mov_b64 exec, 0xffff')
E('ds_write_b32 v%d, v%d offset:%d' % (vT3, vT1, SCROFF))
E('s_waitcnt lgkmcnt(0)')
E('s_barrier')
E('s_cmp_lg_u32 s%d, 0' % sQ)
E('s_cbranch_scc1 L_end')
E('ds_read_b128 %s, v%d offset:%d' % (vr(vS), vT2, SCROFF))
E('s_waitcnt lgkmcnt(0)')
E('v_add_f32 v%d, v%d, v%d' % (vS, vS, vS + 1))
E('v_add_f32 v%d, v%d, v%d' % (vS + 2, vS + 2, vS + 3))
E('v_add_f32 v%d, v%d, v%d' % (vS, vS, vS + 2))
rbf(vS)
E('v_add_f32 v%d, v%d, v%d' % (vS, vS, vSC + 1))
rbf(vS)
E('v_add_f32 v%d, v%d, v%d' % (vS, vS, vT0))
rbf(vS)
E('v_mul_f32 v%d, 0xbfb8aa3b, v%d' % (vS, vS))
E('v_exp_f32 v%d, v%d' % (vS, vS)); E('s_nop 0')
E('v_add_f32 v%d, 1.0, v%d' % (vS, vS))
E('v_rcp_f32 v%d, v%d' % (vS, vS)); E('s_nop 0')
E('v_cvt_pk_bf16_f32 v%d, v%d, v%d' % (vS, vS, vS))
E('v_lshlrev_b32 v%d, 1, v%d' % (vT2, vL))
E('s_lshl_b32 s%d, s%d, 5' % (sT2, sSELF))
for _ in range(P['SL1']): E('s_sleep 127')
if P['LEAK']:
    if P['LEAK'] == 6: E('s_memrealtime s[74:75]')
    E('s_memrealtime s[76:77]')
    E('s_waitcnt lgkmcnt(0)')
    E('s_sub_u32 s78, s74, s72')
    if P['LEAK'] == 9: E('s_mov_b32 s78, 0')
    E('s_add_u32 s78, s78, s76')
    L('L_leak')
    E('s_sleep 4')
    E('s_memrealtime s[76:77]')
    E('s_waitcnt lgkmcnt(0)')
    E('s_sub_u32 s79, s76, s78')
    E('s_cmp_lt_i32 s79, 0')
    E('s_cbranch_scc1 L_leak')
E('buffer_store_short v%d, v%d, %s, s%d offen' % (vS, vT2, sr(R_T1), sT2))
if TS:
    ts(6); ts_store(0)
E('s_endpgm')

L('L_compute')
INC[0] = True
INC2[0] = True
if P['CPF']:
    E('v_lshlrev_b32 v2, 6, v0')
    for rnd in range(2):
        E('v_cmp_gt_u32 vcc, 0x%x, v2' % (P['CPF'] * 1024 - rnd * 16384))
        E('s_and_saveexec_b64 s[94:95], vcc')
        E('s_cbranch_execz L_nocpf%d' % rnd)
        if rnd: E('v_add_u32 v2, 0x4000, v2')
        E('global_load_dword v%d, v2, s[92:93]' % (20 + rnd))
        L('L_nocpf%d' % rnd)
        E('s_mov_b64 exec, s[94:95]')
cXo, cT0, cT1, cT2, cONE = 2, 3, 4, 5, 6
cB = [[8, 9], [10, 11]]
cW = [12, 13]
cRDY = 14
cFO = 16
cFR = 20
cACC = 180
def acc(X, nt): return cACC + (X * 2 + nt) * 4
def frB(p, X, kk): return cFR + p * 80 + (kk * 8 + X) * 4
def frW(p, nt, kk): return cFR + p * 80 + 64 + (kk * 2 + nt) * 4
E('v_and_b32 v%d, 15, v%d' % (cT0, vL))
E('v_lshrrev_b32 v%d, 4, v%d' % (cT1, vL))
E('v_lshrrev_b32 v%d, 1, v%d' % (cT2, cT0))
E('v_xor_b32 v%d, v%d, v%d' % (cT2, cT2, cT1))
E('v_lshlrev_b32 v%d, 4, v%d' % (cT2, cT2))
E('v_lshl_add_u32 v%d, v%d, 7, v%d' % (cB[0][0], cT0, cT2))
E('v_add_u32 v%d, 0x%x, v%d' % (cB[0][0], ABASE, cB[0][0]))
E('v_xor_b32 v%d, 64, v%d' % (cB[0][1], cB[0][0]))
E('v_add_u32 v%d, 0x10000, v%d' % (cB[1][0], cB[0][0]))
E('v_add_u32 v%d, 0x10000, v%d' % (cB[1][1], cB[0][1]))
E('v_bfe_u32 v%d, v%d, 2, 2' % (cT0, vL))
E('v_and_b32 v%d, 1, v%d' % (cT2, cT1))
E('v_lshl_or_b32 v%d, v%d, 2, v%d' % (cT2, cT2, cT0))
E('v_lshl_add_u32 v%d, v%d, 3, v%d' % (cT0, cT1, cT0))
E('v_lshlrev_b32 v%d, 8, v%d' % (cT0, cT0))
E('v_and_b32 v%d, 3, v%d' % (cT1, vL))
E('v_lshl_add_u32 v%d, v%d, 3, v%d' % (cT0, cT1, cT0))
E('s_lshl_b32 s%d, s%d, 1' % (sT0, sQ))
for nt in range(2):
    E('s_add_u32 s%d, s%d, %d' % (sT1, sT0, nt))
    E('v_xor_b32 v%d, s%d, v%d' % (cT1, sT1, cT2))
    E('v_lshl_add_u32 v%d, v%d, 5, v%d' % (cW[nt], cT1, cT0))
E(('v_mul_u32_u24 v%d, 12, v%d' if F24 else 'v_lshlrev_b32 v%d, 4, v%d') % (cXo, vL))
E('s_mul_i32 s%d, s%d, %d' % (sT0, sQ, PIECE // 4))
E('v_add_u32 v%d, s%d, v%d' % (cXo, sT0, cXo))
E('v_mov_b32 v%d, 1' % cONE)
E('s_add_u32 s%d, s%d, 1' % (sT0, sME))
E('v_add_u32 v%d, s%d, v%d' % (cT0, sT0, vL))
E('v_and_b32 v%d, 7, v%d' % (cT0, cT0))
E('v_mul_u32_u24 v%d, %d, v%d' % (cT0, 9 * PIECE, cT0))
E('s_mul_i32 s%d, s%d, %d' % (sT0, sGRP, 8 * PIECE))
E('s_lshl_b32 s%d, s%d, 7' % (sT1, sME))
E('s_add_u32 s%d, s%d, s%d' % (sT0, sT0, sT1))
E('v_add_u32 v%d, s%d, v%d' % (cFO, sT0, cT0))
for r in range(64): E('v_mov_b32 v%d, 0' % (cACC + r))
E('s_waitcnt lgkmcnt(0)')
srd(R_WS, 26, WS_BYTES)
srd(R_T0, 24, 512)
assert RW <= 4
def reads(u):
    p = u & 1
    l = []
    for kk in range(2):
        for nt in range(2):
            for h in range(2):
                l.append('ds_read_b64_tr_b16 %s, v%d offset:%d' % (vr(frW(p, nt, kk) + 2 * h, 2), cW[nt], (u % RW) * 16384 + kk * 8192 + h * 1024))
        s = u % RA
        for X in range(8):
            l.append('ds_read_b128 %s, v%d offset:%d' % (vr(frB(p, X, kk)), cB[s // 4][kk], (s % 4) * 16384 + X * 2048))
    return l
if P['CPF']: E('s_waitcnt vmcnt(0)')
E('s_barrier')
ts(2)
for x in reads(0): E(x)
for u in range(NSTEP):
    p = u & 1
    E('; ---- step %d' % u)
    E('s_waitcnt lgkmcnt(0)')
    E('s_barrier')
    if u < NSTEP - 1:
        mf = ['v_mfma_f32_16x16x32_bf16 %s, %s, %s, %s' % (vr(acc(X, nt)), vr(frW(p, nt, kk)), vr(frB(p, X, kk)), vr(acc(X, nt)))
              for kk in range(2) for X in range(8) for nt in range(2)]
    else:
        mf = ['v_mfma_f32_16x16x32_bf16 %s, %s, %s, %s' % (vr(acc(X, nt)), vr(frW(p, nt, kk)), vr(frB(p, X, kk)), vr(acc(X, nt)))
              for X in range(8) for kk in range(2) for nt in range(2)]
    rd = reads(u + 1) if u + 1 < NSTEP else []
    for m, x in enumerate(mf):
        E(x)
        if m < len(rd): E(rd[m])
    if u == NSTEP - 5:
        if P['DBG']:
            E('s_lshl_b32 s%d, s%d, 2' % (sT2, sMT))
            E('s_add_u32 s%d, s%d, 128' % (sT2, sT2))
            E('v_mov_b32 v%d, s%d' % (cT0, sT2))
        else:
            E('v_mov_b32 v%d, s%d' % (cT0, sGRP))
        if P['RDY1']:
            E('s_cmp_lg_u32 s%d, 0' % sQ)
            E('s_cbranch_scc1 L_nord1')
            E('s_mov_b64 exec, 1')
        E('buffer_load_dwordx2 %s, v%d, %s, 0 offen sc1' % (vr(cRDY, 2), cT0, sr(R_T0)))
        if P['RDY1']:
            E('s_mov_b64 exec, -1')
            L('L_nord1')
ts(3)
INC[0] = False
E('s_mov_b32 s%d, 0' % sSPIN)
def stores(X):
    E('s_add_u32 s%d, s%d, %d' % (sT3, sME, X + 1))
    E('s_and_b32 s%d, s%d, 7' % (sT3, sT3))
    E('s_add_u32 s%d, s%d, s%d' % (sT2, sT3, sGRP))
    E('s_lshl_b32 s%d, s%d, 3' % (sT2, sT2))
    E('s_add_u32 s%d, s%d, s%d' % (sT2, sT2, sME))
    E('s_mul_i32 s%d, s%d, %d' % (sT2, sT2, PIECE))
    if BF:
        a0, a1 = acc(X, 0), acc(X, 1)
        E('v_cvt_pk_bf16_f32 v%d, v%d, v%d' % (a0, a0, a0 + 1))
        E('v_cvt_pk_bf16_f32 v%d, v%d, v%d' % (a0 + 1, a0 + 2, a0 + 3))
        E('v_cvt_pk_bf16_f32 v%d, v%d, v%d' % (a0 + 2, a1, a1 + 1))
        E('v_cvt_pk_bf16_f32 v%d, v%d, v%d' % (a0 + 3, a1 + 2, a1 + 3))
        E('buffer_store_dwordx4 %s, v%d, %s, s%d offen %s' % (vr(a0), cXo, sr(R_WS), sT2, P['SFL'].replace('+', ' ')))
    elif F24:
        for nt in range(2):
            a = acc(X, nt)
            E('v_add_u32 v%d, 0x80, v%d' % (a + 3, a + 3))
            for r in range(3):
                E('v_perm_b32 v%d, v%d, v%d, s%d' % (a + r, a + r, a + 3, 92 + r))
            E('buffer_store_dwordx3 %s, v%d, %s, s%d offen offset:%d sc1' % (vr(a, 3), cXo, sr(R_WS), sT2, nt * TB))
    else:
        for nt in range(2):
            E('buffer_store_dwordx4 %s, v%d, %s, s%d offen offset:%d %s' % (vr(acc(X, nt)), cXo, sr(R_WS), sT2, nt * 1024, P['SFL'].replace('+', ' ')))
if F24:
    for r in range(3): E('s_mov_b32 s%d, 0x%08x' % (92 + r, 0x07060500 + r + 1))
if P['SL2']: E('s_sleep %d' % P['SL2'])
for X in range(7):
    stores(X)
    if P['PACE'] and X < 6: E('s_sleep %d' % P['PACE'])
ts(4)
E('v_lshlrev_b32 v%d, 4, v%d' % (cT1, vL))
E('s_lshl_b32 s%d, s%d, 11' % (sT2, sQ))
E('v_add_u32 v%d, s%d, v%d' % (cT1, sT2, cT1))
for nt in range(2): E('ds_write_b128 v%d, %s offset:%d' % (cT1, vr(acc(7, nt)), OWNOFF + nt * 1024))
if P['RDY1']:
    E('s_cmp_lg_u32 s%d, 0' % sQ)
    E('s_cbranch_scc1 L_rdyok')
E('s_waitcnt vmcnt(%d)' % (7 * NST))
L('L_rdychk')
E('v_and_b32 v%d, v%d, v%d' % (cT1, cRDY, cRDY + (0 if P['DBG'] else 1)))
E('s_nop 0')
E('v_readfirstlane_b32 s%d, v%d' % (sT2, cT1))
E('s_cmp_eq_u32 s%d, %s' % (sT2, '0xff' if P['DBG'] else '0x01010101'))
E('s_cbranch_scc1 L_rdyok')
E('s_add_u32 s%d, s%d, 1' % (sSPIN, sSPIN))
E('s_cmp_gt_u32 s%d, 0x8000' % sSPIN)
E('s_cbranch_scc1 L_rdyok')
E('s_sleep 2')
E('buffer_load_dwordx2 %s, v%d, %s, 0 offen sc1' % (vr(cRDY, 2), cT0, sr(R_T0)))
E('s_waitcnt vmcnt(0)')
E('s_branch L_rdychk')
L('L_rdyok')
E('s_waitcnt vmcnt(0) lgkmcnt(0)')
ts(5)
E('s_barrier')
if P['POLL'] != 'dma':
    E('s_sub_u32 s%d, s%d, 1' % (sT0, sQ))
    E('s_cmp_ge_u32 s%d, %d' % (sT0, P['NPOLL']))
    E('s_cbranch_scc1 L_notpoller')
    if P['NPOLL'] > 1:
        E('s_cmp_eq_u32 s%d, 0' % sT0)
        E('s_cbranch_scc1 L_pst')
        E('s_sleep %d' % (20 // P['NPOLL']))
        E('s_cmp_eq_u32 s%d, 1' % sT0)
        E('s_cbranch_scc1 L_pst')
        E('s_sleep %d' % (20 // P['NPOLL']))
        L('L_pst')
    E('s_lshl_b32 s%d, s%d, 3' % (sT0, sSELF))
    E('s_add_u32 s%d, s%d, s%d' % (sT0, sT0, sME))
    E('s_mul_i32 s%d, s%d, %d' % (sT0, sT0, PIECE))
    E('v_lshlrev_b32 v%d, 7, v%d' % (cT0, vL))
    E('v_add_u32 v%d, s%d, v%d' % (cT0, sT0, cT0))
    E('v_lshlrev_b32 v%d, 2, v%d' % (cT1, vL))
    E('v_add_u32 v%d, 0x%x, v%d' % (cT1, SCROFF + 1024, cT1))
    E('s_lshl_b32 s%d, 1, s%d' % (sMASK, sME))
    E('s_mov_b32 exec_hi, 0')
    L('L_cpoll')
    E('s_andn2_b32 exec_lo, 0xff, s%d' % sMASK)
    if P['POLL'] == 'atom':
        E('v_mov_b32 v%d, 0' % cT2)
        E('buffer_atomic_or v%d, v%d, %s, 0 offen sc0 sc1' % (cT2, cT0, sr(R_WS)))
    else:
        E('buffer_load_dword v%d, v%d, %s, 0 offen sc1' % (cT2, cT0, sr(R_WS)))
    E('s_add_u32 s%d, s%d, 1' % (sSPIN, sSPIN))
    E('s_cmp_gt_u32 s%d, 0x20000' % sSPIN)
    E('s_cbranch_scc1 L_end')
    E('s_waitcnt vmcnt(0)')
    E('v_cmp_ne_u32 vcc, 0, v%d' % cT2)
    E('s_nop 1')
    E('s_mov_b32 exec_lo, vcc_lo')
    E('ds_write_b32 v%d, v%d' % (cT1, cT2))
    E('s_or_b32 s%d, s%d, vcc_lo' % (sMASK, sMASK))
    if P['PSL']: E('s_sleep %d' % P['PSL'])
    E('s_cmp_lg_u32 s%d, 0xff' % sMASK)
    E('s_cbranch_scc1 L_cpoll')
    E('s_endpgm')
    L('L_notpoller')
E('s_cmp_lg_u32 s%d, 0' % sQ)
E('s_cbranch_scc1 L_end')
E('s_mov_b64 exec, 0x7f')
E(('buffer_atomic_or v%d, v%d, %s, 0 offen sc1' if P['FAT'] else 'buffer_store_dword v%d, v%d, %s, 0 offen sc1') % (cONE, cFO, sr(R_WS)))
E('s_mov_b64 exec, -1')
if TS:
    ts(6)
    E('s_cmp_lg_u32 s%d, 0' % sQ)
    E('s_cbranch_scc1 L_end')
    ts_store(1)
L('L_end')
E('s_endpgm')
out += ['.section .rodata,"a"', '.p2align 6', '.amdhsa_kernel ' + KN, '  .amdhsa_next_free_vgpr 248', '  .amdhsa_next_free_sgpr 102',
        '  .amdhsa_accum_offset 248', '  .amdhsa_group_segment_fixed_size 0', '  .amdhsa_kernarg_size 96', '  .amdhsa_user_sgpr_count 2',
        '  .amdhsa_user_sgpr_kernarg_segment_ptr 1', '  .amdhsa_system_sgpr_workgroup_id_x 1', '  .amdhsa_float_denorm_mode_32 3', '.end_amdhsa_kernel']
open(sys.argv[1], 'w').write('\n'.join(out) + '\n')
print('lds', LDS_BYTES, 'lines', len(out))
```

```python
import sys, copy
P = dict(XFMT='f24', TS=0, RA=6, RW=4, PF=0, LPRIO=2, COOP=1, SLP=0, NOMF=0, NORD=0, ORD='AAWW', PH=0, Q=8, Q0=12, FG=2, IDXL=1, PFPOS=0, CPF=0, DBG=0, DELAY=0, SL0=0, SL1=0, LEAK=0, POLL='atom', PSL=0, FAT=0, SL2=0, PACE=0, SFL='sc1', LFL='sc1', RDY1=1, ROT=1, L1ST=1, NPOLL=1, MNOP=-1, MORD=0, EST=1, OTOUCH=0, OFL='sc1')
for a in sys.argv[2:]:
    k, v = a.split('=')
    P[k] = int(v) if v.lstrip('-').isdigit() else v
BF = P['XFMT'] == 'bf16'
TS = P['TS']
RA, RW = P['RA'], P['RW']
NSTEP = 25
WBASE = 0
ABASE = RW * 16384
LDS_BYTES = (RA + RW) * 16384
F24 = P['XFMT'] == 'f24'
NST = 1 if BF else 2
PIECE = 6144 if F24 else NST * 4096
TB = 768 if F24 else 1024
TSOFF = 56 << 20
WS_BYTES = 64 << 20
out = []
INC = [False]
INC2 = [False]
def E(s=''):
    if P['NOMF'] and s.startswith('v_mfma'): return
    if P['NORD'] and INC[0] and s.startswith('ds_read'): return
    out.append('    ' + s)
def L(s): out.append(s + ':')
def vr(b, n=4): return 'v[%d:%d]' % (b, b + n - 1)
def sr(b, n=4): return 's[%d:%d]' % (b, b + n - 1)
R_TAB, R_W1, R_IDX, R_WS, R_T0, R_T1, R_T2 = 28, 32, 36, 40, 44, 48, 96
sW, sMT, sME, sQ, sLOFF, sWp, sWm, sT0, sT1, sT2, sT3, sSELF, sPREV, sMASK, sGRP, sSPIN, sNH, sFB, sKQ, sFLG = range(52, 72)
sTS = 72
sW0 = 94
def ts(i):
    if P['LEAK'] and not INC2[0] and i == P['LEAK']:
        E('s_memrealtime s[74:75]')
    if TS:
        E('s_memrealtime s[%d:%d]' % (sTS + 2 * i, sTS + 2 * i + 1))
        if i == 2: E('s_memtime s[88:89]')
        if i == 3: E('s_memtime s[90:91]')
def srd(r, p, nbytes):
    E('s_mov_b32 s%d, s%d' % (r, p))
    E('s_and_b32 s%d, s%d, 0xffff' % (r + 1, p + 1))
    E('s_mov_b32 s%d, 0x%x' % (r + 2, nbytes))
    E('s_mov_b32 s%d, 0x00020000' % (r + 3))
def ts_store(role):
    if P['DBG']:
        E('s_waitcnt lgkmcnt(0)')
        E('s_mov_b64 exec, 1')
        E('v_mov_b32 v2, 0')
        if role == 0:
            E('s_not_b32 s%d, s%d' % (sT2, sTS))
            E('v_mov_b32 v4, s%d' % sT2)
            E('buffer_atomic_umax v4, v2, %s, 0 offen offset:28 sc1' % sr(R_T0))
            E('v_mov_b32 v5, s%d' % (sTS + 12))
            E('buffer_atomic_umax v5, v2, %s, 0 offen offset:60 sc1' % sr(R_T0))
        E('s_cmp_lg_u32 s2, %d' % P['DBG'])
        E('s_cbranch_scc1 L_end')
        for i in range(7):
            if i == 0: E('s_mov_b32 s%d, s%d' % (sT2, sTS))
            else: E('s_sub_u32 s%d, s%d, s%d' % (sT2, sTS + 2 * i, sTS))
            E('v_mov_b32 v%d, s%d' % (6 + i, sT2))
            E('buffer_store_dword v%d, v2, %s, 0 offen offset:%d sc1' % (6 + i, sr(R_T0), role * 32 + 4 * i))
        return
    E('s_waitcnt lgkmcnt(0)')
    E('s_mov_b64 exec, 1')
    E('s_lshl_b32 s%d, s2, 7' % sT2)
    E('s_add_u32 s%d, s%d, 0x%x' % (sT2, sT2, TSOFF + role * 64))
    E('v_mov_b32 v2, 0')
    E('s_sub_u32 s86, s90, s88')
    E('s_subb_u32 s87, s91, s89')
    for i in range(8):
        E('v_mov_b32 v4, s%d' % (sTS + 2 * i))
        E('v_mov_b32 v5, s%d' % (sTS + 2 * i + 1))
        E('buffer_store_dwordx2 v[4:5], v2, %s, s%d offen offset:%d' % (sr(R_WS), sT2, 8 * i))
        E('s_nop 1')
hdr = open('standalone__deep_cross_wide_deep__recsys.s.ref').read().split('\n')
for line in hdr:
    if line.startswith('; @launch'):
        out.append('; @launch grid=(256,1,1) block=(512,1,1) lds=%d' % LDS_BYTES)
    elif line.startswith(';'):
        out.append(line)
    else:
        break
out.append('; generated v2-style v4: ' + ' '.join('%s=%s' % kv for kv in sorted(P.items())))
out.append('.amdgcn_target "amdgcn-amd-amdhsa--gfx950"')
out.append('.text')
KN = 'standalone__deep_cross_wide_deep__recsys_kernel'
out += ['.globl ' + KN, '.p2align 8', '.type %s,@function' % KN]
L(KN)
E('s_cmp_ge_u32 s2, 256')
E('s_cbranch_scc1 L_end')
E('s_load_dwordx16 s[4:19], s[0:1], 0')
E('s_load_dwordx8 s[20:27], s[0:1], 64')
if TS:
    for i in range(1, 8): E('s_mov_b64 s[%d:%d], 0' % (sTS + 2 * i, sTS + 2 * i + 1))
    E('s_mov_b64 s[88:89], 0'); E('s_mov_b64 s[90:91], 0')
ts(0)
vL = 1
if P['DELAY']:
    E('s_memrealtime s[92:93]')
    E('s_waitcnt lgkmcnt(0)')
    E('s_add_u32 s94, s92, %d' % P['DELAY'])
    L('L_dly')
    E('s_memrealtime s[92:93]')
    E('s_waitcnt lgkmcnt(0)')
    E('s_sub_u32 s95, s92, s94')
    E('s_cmp_lt_i32 s95, 0')
    E('s_cbranch_scc1 L_dly')
for _ in range(P['SL0']): E('s_sleep 127')
E('v_lshrrev_b32 v2, 6, v0')
E('v_and_b32 v%d, 63, v0' % vL)
E('v_readfirstlane_b32 s%d, v2' % sW)
E('s_lshr_b32 s%d, s2, 3' % sT0)
E('s_and_b32 s%d, s%d, 1' % (sNH, sT0))
E('s_lshr_b32 s%d, s%d, 1' % (sMT, sT0))
E('s_bfe_u32 s%d, s2, 0x10002' % sT1)
E('s_lshl_b32 s%d, s%d, 4' % (sT1, sT1))
E('s_add_u32 s%d, s%d, s%d' % (sMT, sMT, sT1))
E('s_and_b32 s%d, s2, 3' % sKQ)
E('s_lshl_b32 s%d, s%d, 2' % (sME, sNH))
E('s_add_u32 s%d, s%d, s%d' % (sME, sME, sKQ))
E('s_lshl_b32 s%d, s%d, 3' % (sGRP, sMT))
E('s_add_u32 s%d, s%d, s%d' % (sSELF, sGRP, sME))
E('s_and_b32 s%d, s%d, 3' % (sQ, sW))
if P['CPF']: E('s_getpc_b64 s[92:93]')
E('s_cmp_lt_u32 s%d, 4' % sW)
E('s_cbranch_scc1 L_compute')
def wslot(u): return WBASE + (u % RW) * 16384
def aslot(c): return ABASE + (c % RA) * 16384
OWNOFF, SCROFF = 0, 16384
def need_at(b):
    u = b + 1
    return [('W', u), ('A', u)] if u < NSTEP else []

vT0, vT1, vT2, vT3 = 2, 3, 4, 5
vWd = [6, 7, 8, 9]
vIDX = [12 + 28 * i for i in range(4)]
vB1v, vW2v, vXW, vWW, vSC, vFo, vXc, vONE = 124, 132, 140, 144, 148, 150, 151, 152
vS = 156
vRX = 176
vBf, vWf = 12, 28
vmq = []
def vm(t): vmq.append(t)
def wait_for(tags, cnt):
    last = -1
    for t in tags:
        if isinstance(t, tuple): assert vmq.count(t) == cnt, ('needed DMA not issued', t, vmq.count(t))
    for i, t in enumerate(vmq):
        if t in tags: last = i
    return min(len(vmq) - 1 - last, 63)
if P['LPRIO']: E('s_setprio %d' % P['LPRIO'])
if P['LEAK']: E('s_memrealtime s[72:73]')
E('s_mul_i32 s%d, s%d, 25' % (sFB, sKQ))
E('s_lshl_b32 s%d, s%d, 15' % (sW0, sFB))
E('s_lshl_b32 s%d, s%d, 16' % (sT0, sNH))
if not P['COOP']: E('s_mov_b32 s%d, 0' % sT0)
E('s_add_u32 s%d, s%d, s%d' % (sWp, sW0, sT0))
E('s_sub_u32 s%d, s%d, s%d' % (sWm, sW0, sT0))
E('s_lshl_b32 s%d, s%d, 2' % (sFB, sFB))
E('s_lshl_b32 s%d, s%d, 12' % (sLOFF, sQ))
if P['ROT']:
    E('s_mul_i32 s100, s%d, 43' % sMT)
    E('s_lshr_b32 s100, s100, 8')
    E('s_mul_i32 s100, s100, 6')
    E('s_sub_u32 s100, s%d, s100' % sMT)
    E('s_lshl_b32 s100, s100, 17')
E('v_lshrrev_b32 v%d, 3, v%d' % (vT2, vL))
for j in range(2):
    E('s_lshl_b32 s%d, s%d, 1' % (sT0, sQ))
    E('s_add_u32 s%d, s%d, s%d' % (sT0, sT0, sME))
    E('s_add_u32 s%d, s%d, %d' % (sT0, sT0, 1 + j))
    E('s_and_b32 s%d, s%d, 7' % (sT0, sT0))
    E('s_add_u32 s%d, s%d, s%d' % (sT0, sT0, sGRP))
    E('s_lshl_b32 s%d, s%d, 4' % (sT0, sT0))
    E('v_add_u32 v%d, s%d, v%d' % (vT0 + j, sT0, vT2))
    E('v_mul_u32_u24 v%d, 400, v%d' % (vT0 + j, vT0 + j))
if P['IDXL']:
    E('v_and_b32 v10, 7, v%d' % vL)
    for j in range(2): E('v_lshl_add_u32 v%d, v10, 4, v%d' % (vT0 + j, vT0 + j))
    E('v_add_u32 v%d, 3200, v%d' % (vS, vT0))
    E('v_add_u32 v%d, 3200, v%d' % (vS + 1, vT1))
E('v_lshrrev_b32 v%d, 4, v%d' % (vT2, vL))
E('v_lshlrev_b32 v%d, 1, v%d' % (vT3, vT2))
E('v_and_b32 v10, 15, v%d' % vL)
E('v_xor_b32 v%d, v%d, v10' % (vT3, vT3))
E('v_lshlrev_b32 v%d, 9, v%d' % (vT2, vT2))
E('s_lshl_b32 s%d, s%d, 13' % (sT0, sQ))
E('s_lshl_b32 s%d, s%d, 8' % (sT1, sNH))
E('s_add_u32 s%d, s%d, s%d' % (sT0, sT0, sT1))
E('v_add_u32 v%d, s%d, v%d' % (vT2, sT0, vT2))
E('v_lshl_add_u32 v%d, v%d, 4, v%d' % (vWd[0], vT3, vT2))
E('v_add_u32 v%d, 2048, v%d' % (vWd[1], vWd[0]))
E('v_xor_b32 v%d, 8, v%d' % (vT3, vT3))
E('v_lshl_add_u32 v%d, v%d, 4, v%d' % (vWd[2], vT3, vT2))
E('v_add_u32 v%d, 4096, v%d' % (vWd[2], vWd[2]))
E('v_add_u32 v%d, 2048, v%d' % (vWd[3], vWd[2]))
E('s_waitcnt lgkmcnt(0)')
srd(R_IDX, 4, 4096 * 400)
srd(R_W1, 14, 6400 * 512)
IDXL_OFF = aslot(RA - 1)
if P['IDXL']:
    for i in range(4):
        E('s_add_u32 m0, s%d, 0x%x' % (sLOFF, IDXL_OFF + i * 1024))
        E('s_nop 0')
        E('buffer_load_dwordx4 v%d, %s, s%d offen lds' % ([vT0, vS, vT1, vS + 1][i], sr(R_IDX), sFB)); vm('idx0')
else:
    for c in range(7):
        for i in range(4):
            if c < 6:
                E('buffer_load_dwordx4 %s, v%d, %s, s%d offen offset:%d' % (vr(vIDX[i] + 4 * c), vT0 + (i >> 1), sr(R_IDX), sFB, (i & 1) * 3200 + c * 16))
            else:
                E('buffer_load_dword v%d, v%d, %s, s%d offen offset:%d' % (vIDX[i] + 24, vT0 + (i >> 1), sr(R_IDX), sFB, (i & 1) * 3200 + 96))
            vm('idx0' if c == 0 else 'idx')
def pos(t):
    if not P['L1ST']: return t
    return 24 if t == 0 else t - 1
def dmaW(t, i):
    u = pos(t)
    if i == 0:
        base = sW0 if u == 24 else (sWp if ((u >> 1) & 1) == 0 else sWm)
        if P['ROT'] and u < 24:
            r = u >> 2
            E('s_add_u32 s%d, s100, 0x%x' % (sT3, r * 131072))
            E('s_sub_u32 s101, s%d, 0x%x' % (sT3, 6 * 131072))
            E('s_cselect_b32 s%d, s%d, s101' % (sT3, sT3))
            E('s_add_u32 s%d, s%d, s%d' % (sT3, sT3, base))
            if u & 3: E('s_add_u32 s%d, s%d, 0x%x' % (sT3, sT3, (u & 3) * 32768))
        else:
            E('s_add_u32 s%d, s%d, 0x%x' % (sT3, base, u * 32768))
    E('s_add_u32 m0, s%d, 0x%x' % (sLOFF, wslot(t) + i * 1024))
    E('s_nop 0')
    E('buffer_load_dwordx4 v%d, %s, s%d offen lds' % (vWd[i], sr(R_W1), sT3)); vm(('W', t))
def dmaA(c, i):
    E('s_add_u32 m0, s%d, 0x%x' % (sLOFF, aslot(c) + i * 1024))
    E('s_nop 0')
    E('buffer_load_dwordx4 v%d, %s, 0 offen lds' % (vIDX[i] + pos(c), sr(R_TAB))); vm(('A', c))
def chunk(k, c):
    for i in range(4): (dmaW if k == 'W' else dmaA)(c, i)
chunk('W', 0)
def wpf():
    if not P['PF']: return
    if P['PF'] == 2:
        E('v_lshlrev_b32 v%d, 4, v%d' % (vT2, vL))
        E('s_lshr_b32 s%d, s2, 3' % sT0)
        E('s_lshl_b32 s%d, s%d, 10' % (sT0, sT0))
        E('s_lshl_b32 s%d, s%d, 8' % (sT1, sQ))
        E('s_add_u32 s%d, s%d, s%d' % (sT0, sT0, sT1))
        E('s_add_u32 s%d, s%d, s%d' % (sT0, sT0, sW0))
        E('s_add_u32 s%d, s%d, 0x%x' % (sT0, sT0, 24 * 32768))
        E('s_mov_b64 exec, 0xffff')
        E('buffer_load_dwordx4 %s, v%d, %s, s%d offen' % (vr(vRX), vT2, sr(R_W1), sT0)); vm('pf')
        E('s_mov_b64 exec, -1')
        return
    E('v_lshlrev_b32 v%d, 4, v%d' % (vT2, vL))
    E('s_lshl_b32 s%d, s%d, 10' % (sT0, sQ))
    E('v_add_u32 v%d, s%d, v%d' % (vT2, sT0, vT2))
    E('s_lshr_b32 s%d, s2, 3' % sT0)
    E('s_mul_i32 s%d, s%d, 25600' % (sT0, sT0))
    E('s_add_u32 s%d, s%d, s%d' % (sT0, sT0, sW0))
    for j in range(7):
        if j == 6:
            E('v_cmp_gt_u32 vcc, 1024, v%d' % vT2)
            E('v_mov_b32 v%d, 0x40000000' % (vS + 2))
            E('s_nop 0')
            E('v_cndmask_b32 v%d, v%d, v%d, vcc' % (vT2, vS + 2, vT2))
        E('buffer_load_dwordx4 %s, v%d, %s, s%d offen' % (vr(vRX + 4 * j), vT2, sr(R_W1), sT0)); vm('pf')
        if j < 6: E('s_add_u32 s%d, s%d, 4096' % (sT0, sT0))
if P['PFPOS'] == 0: wpf()
srd(R_TAB, 6, 100000 * 128)
srd(R_WS, 26, WS_BYTES)
srd(R_T0, 24, 512)
srd(R_T1, 22, 16384)
E('s_lshl_b32 s%d, s%d, 3' % (sFLG, sSELF))
E('s_add_u32 s%d, s%d, s%d' % (sFLG, sFLG, sME))
E('s_mul_i32 s%d, s%d, %d' % (sFLG, sFLG, PIECE))
E('s_lshl_b32 s%d, s%d, 8' % (sT0, sQ))
E('s_add_u32 s%d, s%d, s%d' % (sT0, sT0, sFLG))
E('v_mov_b32 v%d, 0' % vT2)
E('v_lshlrev_b32 v%d, 7, v%d' % (vT3, vL))
E('s_mov_b64 exec, 3')
E('buffer_store_dword v%d, v%d, %s, s%d offen sc1' % (vT2, vT3, sr(R_WS), sT0)); vm('clr')
E('s_mov_b64 exec, -1')
E('v_and_b32 v%d, 7, v%d' % (vFo, vL))
E('v_lshlrev_b32 v%d, 7, v%d' % (vFo, vFo))
E('v_add_u32 v%d, s%d, v%d' % (vFo, sFLG, vFo))
E(('v_mul_u32_u24 v%d, 12, v%d' if F24 else 'v_lshlrev_b32 v%d, 4, v%d') % (vXc, vL))
E('s_mul_i32 s%d, s%d, %d' % (sT0, sQ, PIECE // 4))
E('v_add_u32 v%d, s%d, v%d' % (vXc, sT0, vXc))
E('v_mov_b32 v%d, 1' % vONE)
E('v_lshrrev_b32 v10, 4, v%d' % vL)
E('v_and_b32 v11, 7, v%d' % vL)
E('v_xor_b32 v10, v10, v11')
E('v_lshlrev_b32 v10, 4, v10')
E('v_xor_b32 v11, 64, v10')
def conv(cs, tag):
    if P['COOP']:
        E('s_cmp_eq_u32 s%d, 0' % sNH)
        E('s_cbranch_scc1 L_nosw%s' % tag)
        for i in range(4):
            for c in cs:
                if c % 4 < 2 and c < 24:
                    E('v_swap_b32 v%d, v%d' % (vIDX[i] + c, vIDX[i] + c + 2))
        L('L_nosw%s' % tag)
    for c in cs:
        for i in range(4):
            E('v_lshl_or_b32 v%d, v%d, 7, v%d' % (vIDX[i] + c, vIDX[i] + c, 10 + (i & 1)))
E('s_waitcnt vmcnt(%d)' % wait_for(['idx0'], 0))
ts(1)
if P['IDXL']:
    E('v_lshrrev_b32 v%d, 3, v%d' % (vT2, vL))
    E('v_lshlrev_b32 v%d, 7, v%d' % (vT2, vT2))
    E('v_add_u32 v%d, s%d, v%d' % (vT2, sLOFF, vT2))
    E('v_add_u32 v%d, 0x%x, v%d' % (vT2, IDXL_OFF, vT2))
    corder = [6, 0, 1, 2, 3, 4, 5] if P['L1ST'] else list(range(7))
    for ci, c in enumerate(corder):
        if P['ROT'] and c < 6:
            E('s_lshr_b32 s%d, s100, 13' % sT0)
            E('s_add_u32 s%d, s%d, %d' % (sT0, sT0, c * 16))
            E('s_sub_u32 s101, s%d, 96' % sT0)
            E('s_cselect_b32 s%d, s%d, s101' % (sT0, sT0))
            E('v_add_u32 v%d, s%d, v%d' % (vT3, sT0, vT2))
        for i in range(4):
            if c < 6 and P['ROT']: E('ds_read_b128 %s, v%d offset:%d' % (vr(vIDX[i] + 4 * c), vT3, i * 1024))
            elif c < 6: E('ds_read_b128 %s, v%d offset:%d' % (vr(vIDX[i] + 4 * c), vT2, i * 1024 + c * 16))
            else: E('ds_read_b32 v%d, v%d offset:%d' % (vIDX[i] + 24, vT2, i * 1024 + 96))
        if c == 0:
            E('s_waitcnt lgkmcnt(0)')
            conv(([24] if P['L1ST'] else []) + list(range(4)), 'a')
            chunk('A', 0)
    chunk('A', 1)
    if P['L1ST']: chunk('A', 2)
    E('s_waitcnt lgkmcnt(0)')
    conv(range(4, 24 if P['L1ST'] else 25), 'b')
else:
    conv(range(4), 'a')
    chunk('A', 0); chunk('A', 1)
    E('s_waitcnt vmcnt(%d)' % wait_for(['idx'], 0))
    conv(range(4, 25), 'b')
if P['PFPOS'] == 1: wpf()
def earliest(k, ch):
    R = RW if k == 'W' else RA
    return -1 if ch < R else ch - R
order = []
if P['L1ST']:
    order = [('W', 1), ('W', 2)]
    for p in range(1, 12):
        order += [('A', 2 * p + 1), ('A', 2 * p + 2), ('W', 2 * p + 1), ('W', 2 * p + 2)]
elif P['ORD'] == 'AAWW':
    order = [('W', 1)]
    for p in range(1, 13):
        order += [('A', c) for c in (2 * p, 2 * p + 1) if c < 25] + [('W', c) for c in (2 * p, 2 * p + 1) if c < 25]
elif P['ORD'] == 'A2':
    order = [('W', 1), ('A', 2), ('A', 3)]
    for p in range(1, 13):
        order += [('A', c) for c in (2 * p + 2, 2 * p + 3) if c < 25] + [('W', c) for c in (2 * p, 2 * p + 1) if c < 25]
else:
    order = [('W', 1)]
    for c in range(2, 25): order += [('A', c), ('W', c)]
pend = list(order)
def loader_loop(var):
    for b in range(-1, NSTEP):
        nd = need_at(b)
        while any(vmq.count(t) < 4 for t in nd):
            d = pend[0]
            if earliest(*d) > b - 1:
                d = [x for x in pend if x in nd][0]
                assert earliest(*d) <= b - 1
            pend.remove(d); chunk(*d)
        if nd: E('s_waitcnt vmcnt(%d)' % wait_for(nd, 4))
        E('s_barrier')
        if b == -1: ts(2)
        q = (P['Q0'] if b < 4 else P['Q']) // 4
        n = 0
        while pend and n < q:
            d = pend[0]
            if earliest(*d) > b: break
            if d[0] == 'A' and len(pend) > 1 and pend[1][0] == 'A' and d[1] % 2 == P['L1ST'] and earliest(*pend[1]) > b: break
            pend.pop(0); chunk(*d); n += 1
        if b == 2:
            E('s_cmp_lg_u32 s%d, 0' % sQ)
            E('s_cbranch_scc1 L_nordy%d' % var)
            if P['DBG']:
                E('s_lshl_b32 s%d, s%d, 2' % (sT2, sMT))
                E('s_add_u32 s%d, s%d, 128' % (sT2, sT2))
                E('v_mov_b32 v%d, s%d' % (vT0, sT2))
                E('s_lshl_b32 s%d, 1, s%d' % (sT2, sME))
                E('v_mov_b32 v%d, s%d' % (vT1, sT2))
                E('s_mov_b64 exec, 1')
                E('buffer_atomic_or v%d, v%d, %s, 0 offen sc1' % (vT1, vT0, sr(R_T0)))
            else:
                E('v_mov_b32 v%d, s%d' % (vT0, sSELF))
                E('s_mov_b64 exec, 1')
                E('buffer_store_byte v%d, v%d, %s, 0 offen sc1' % (vONE, vT0, sr(R_T0)))
            E('s_mov_b64 exec, -1')
            L('L_nordy%d' % var)
        if b == NSTEP - 4: small_loads()
def small_loads():
    srd(R_IDX, 16, 512); srd(R_T2, 18, 512)
    E('s_lshl_b32 s%d, s%d, 6' % (sT0, sQ))
    E('v_lshrrev_b32 v%d, 4, v%d' % (vT0, vL))
    E('v_lshlrev_b32 v%d, 3, v%d' % (vT0, vT0))
    for t in range(4):
        off = 256 * (t >> 1) + 32 * (t & 1)
        E('buffer_load_dwordx2 %s, v%d, %s, s%d offen offset:%d' % (vr(vB1v + 2 * t, 2), vT0, sr(R_IDX), sT0, off)); vm('ep')
        E('buffer_load_dwordx2 %s, v%d, %s, s%d offen offset:%d' % (vr(vW2v + 2 * t, 2), vT0, sr(R_T2), sT0, off)); vm('ep')
    E('s_nop 0')
    srd(R_IDX, 8, 4096 * 26 + 64); srd(R_T2, 10, 64)
    E('v_and_b32 v%d, 15, v%d' % (vT1, vL))
    E('s_lshl_b32 s%d, s%d, 4' % (sT0, sSELF))
    E('v_add_u32 v%d, s%d, v%d' % (vT1, sT0, vT1))
    E('v_mul_u32_u24 v%d, 26, v%d' % (vT1, vT1))
    E('v_lshrrev_b32 v%d, 2, v%d' % (vT0, vT0))
    E('v_add_u32 v%d, v%d, v%d' % (vT1, vT1, vT0))
    for m in range(4):
        if m == 3:
            E('v_mov_b32 v%d, 0' % (vXW + 3)); E('v_mov_b32 v%d, 0' % (vWW + 3))
            E('s_mov_b64 exec, 0xffff')
        E('buffer_load_ushort v%d, v%d, %s, 0 offen offset:%d' % (vXW + m, vT1, sr(R_IDX), 8 * m)); vm('ep')
        E('buffer_load_ushort v%d, v%d, %s, 0 offen offset:%d' % (vWW + m, vT0, sr(R_T2), 8 * m)); vm('ep')
    E('s_mov_b64 exec, -1')
    E('s_nop 0')
    srd(R_IDX, 12, 64); srd(R_T2, 20, 64)
    E('v_mov_b32 v%d, 0' % vT2)
    E('buffer_load_ushort v%d, v%d, %s, 0 offen' % (vSC, vT2, sr(R_IDX))); vm('ep')
    E('buffer_load_ushort v%d, v%d, %s, 0 offen' % (vSC + 1, vT2, sr(R_T2))); vm('ep')
    if P['OTOUCH']:
        E('s_lshl_b32 s%d, s%d, 5' % (sT0, sSELF))
        E('s_mov_b64 exec, 1')
        E('buffer_load_ushort v%d, v%d, %s, s%d offen sc1' % (vS + 3, vT2, sr(R_T1), sT0)); vm('ep')
        E('s_mov_b64 exec, -1')
loader_loop(0)
assert not pend, pend
ts(3)
def lane_reduce(v, tmp):
    E('v_mov_b32 v%d, v%d' % (tmp, v)); E('s_nop 1')
    E('v_permlane32_swap_b32 v%d, v%d' % (v, tmp)); E('s_nop 1')
    E('v_add_f32 v%d, v%d, v%d' % (v, v, tmp))
    E('v_mov_b32 v%d, v%d' % (tmp, v)); E('s_nop 1')
    E('v_permlane16_swap_b32 v%d, v%d' % (v, tmp)); E('s_nop 1')
    E('v_add_f32 v%d, v%d, v%d' % (v, v, tmp))
def rbf(v):
    E('v_cvt_pk_bf16_f32 v%d, v%d, v%d' % (v, v, v))
    E('v_lshlrev_b32 v%d, 16, v%d' % (v, v))
E('s_waitcnt vmcnt(0)')
for m in range(4):
    E('v_lshlrev_b32 v%d, 16, v%d' % (vXW + m, vXW + m))
    E('v_lshlrev_b32 v%d, 16, v%d' % (vWW + m, vWW + m))
E('v_mul_f32 v%d, v%d, v%d' % (vT0, vXW, vWW))
for m in range(1, 4): E('v_fmac_f32 v%d, v%d, v%d' % (vT0, vXW + m, vWW + m))
lane_reduce(vT0, vT1)
rbf(vT0)
E('v_lshlrev_b32 v%d, 16, v%d' % (vSC, vSC))
E('v_lshlrev_b32 v%d, 16, v%d' % (vSC + 1, vSC + 1))
E('v_add_f32 v%d, v%d, v%d' % (vT0, vT0, vSC))
rbf(vT0)
for t in range(4):
    for d in range(2):
        E('v_lshlrev_b32 v%d, 16, v%d' % (vBf + 4 * t + 2 * d, vB1v + 2 * t + d))
        E('v_and_b32 v%d, 0xffff0000, v%d' % (vBf + 4 * t + 2 * d + 1, vB1v + 2 * t + d))
        E('v_lshlrev_b32 v%d, 16, v%d' % (vWf + 4 * t + 2 * d, vW2v + 2 * t + d))
        E('v_and_b32 v%d, 0xffff0000, v%d' % (vWf + 4 * t + 2 * d + 1, vW2v + 2 * t + d))
for r in range(8 * 4 * NST): E('v_mov_b32 v%d, 0' % (vRX + r))
E('s_mov_b32 s%d, 0' % sSPIN)
E('s_lshl_b32 s%d, 1, s%d' % (sMASK, sME))
E('s_lshl_b32 s%d, s%d, 3' % (sT1, sSELF))
FLDS = SCROFF + 1024
E('v_lshlrev_b32 v%d, 2, v%d' % (vT3, vL))
E('v_add_u32 v%d, 0x%x, v%d' % (vT3, FLDS, vT3))
E('v_mov_b32 v%d, 0' % vT2)
E('ds_write_b32 v%d, v%d' % (vT3, vT2))
E('s_mov_b32 m0, 0x%x' % FLDS)
E('s_waitcnt lgkmcnt(0)')
E('s_barrier')
L('L_rxloop')
if P['POLL'] == 'dma':
    E('s_cmp_lg_u32 s%d, 0' % sQ)
    E('s_cbranch_scc1 L_nopoll')
    E('s_not_b32 s%d, s%d' % (sT2, sMASK))
    E('s_and_b32 exec_lo, s%d, 0xff' % sT2)
    E('s_mov_b32 exec_hi, 0')
    E('buffer_load_dword v%d, %s, 0 offen sc1 lds' % (vFo, sr(R_WS)))
    E('s_mov_b64 exec, -1')
    L('L_nopoll')
if P['SLP']: E('s_sleep %d' % P['SLP'])
E('ds_read_b32 v%d, v%d' % (vT2, vT3))
E('s_add_u32 s%d, s%d, 1' % (sSPIN, sSPIN))
E('s_cmp_gt_u32 s%d, 0x20000' % sSPIN)
E('s_cbranch_scc1 L_rxdone')
E('s_waitcnt vmcnt(30) lgkmcnt(0)')
E('v_cmp_ne_u32 vcc, 0, v%d' % vT2)
E('s_nop 1')
E('s_andn2_b32 s%d, vcc_lo, s%d' % (sPREV, sMASK))
E('s_cbranch_scc0 L_rxloop')
E('s_or_b32 s%d, s%d, s%d' % (sMASK, sMASK, sPREV))
for s_ in range(8):
    E('s_bitcmp1_b32 s%d, %d' % (sPREV, s_))
    E('s_cbranch_scc0 L_rxs%d' % s_)
    E('s_add_u32 s%d, s%d, %d' % (sT2, sT1, s_))
    E('s_mul_i32 s%d, s%d, %d' % (sT2, sT2, PIECE))
    for j in range(NST):
        if F24:
            E('buffer_load_dwordx3 %s, v%d, %s, s%d offen offset:%d sc1' % (vr(vRX + (s_ * NST + j) * 4, 3), vXc, sr(R_WS), sT2, j * TB))
        else:
            E('buffer_load_dwordx4 %s, v%d, %s, s%d offen offset:%d %s' % (vr(vRX + (s_ * NST + j) * 4), vXc, sr(R_WS), sT2, j * 1024, P['LFL'].replace('+', ' ')))
    L('L_rxs%d' % s_)
E('s_cmp_lg_u32 s%d, 0xff' % sMASK)
E('s_cbranch_scc1 L_rxloop')
L('L_rxdone')
ts(4)
E('v_lshlrev_b32 v%d, 4, v%d' % (vT1, vL))
E('s_lshl_b32 s%d, s%d, 11' % (sT2, sQ))
E('v_add_u32 v%d, s%d, v%d' % (vT1, sT2, vT1))
for r in range(16): E('v_mov_b32 v%d, 0' % (vS + r))
E('s_cmp_eq_u32 s%d, 0' % sNH)
E('s_cbranch_scc0 L_own1')
for t in range(2): E('ds_read_b128 %s, v%d offset:%d' % (vr(vS + 4 * t), vT1, OWNOFF + t * 1024))
E('s_branch L_ownj')
L('L_own1')
for t in range(2): E('ds_read_b128 %s, v%d offset:%d' % (vr(vS + 8 + 4 * t), vT1, OWNOFF + t * 1024))
L('L_ownj')
if F24:
    E('s_mov_b32 s92, 0x0c04000c')
    E('s_mov_b32 s93, 0x0402010c')
E('s_waitcnt vmcnt(0) lgkmcnt(0)')
ts(5)
for s_ in range(8):
    o = vS + 8 * (s_ >> 2)
    if BF:
        b = vRX + s_ * 4
        for d in range(4):
            E('v_lshlrev_b32 v%d, 16, v%d' % (vT2, b + d))
            E('v_and_b32 v%d, 0xffff0000, v%d' % (vT3, b + d))
            E('v_pk_add_f32 %s, %s, %s' % (vr(o + 2 * d, 2), vr(o + 2 * d, 2), vr(vT2, 2)))
    else:
        b = vRX + s_ * 8
        if F24:
            for t in range(2):
                d = b + 4 * t
                E('v_perm_b32 v%d, v%d, v%d, s92' % (d + 3, d + 1, d))
                E('v_perm_b32 v%d, v%d, v%d, s93' % (d + 3, d + 2, d + 3))
        for r in range(0, 8, 2):
            E('v_pk_add_f32 %s, %s, %s' % (vr(o + r, 2), vr(o + r, 2), vr(b + r, 2)))
E('v_mov_b32 v%d, 0' % vT1)
E('v_mov_b32 v%d, 0' % vT3)
for r in range(0, 16, 2):
    a, b = vS + r, vS + r + 1
    E('v_cvt_pk_bf16_f32 v%d, v%d, v%d' % (vT2, a, b))
    E('v_lshlrev_b32 v%d, 16, v%d' % (a, vT2))
    E('v_and_b32 v%d, 0xffff0000, v%d' % (b, vT2))
    E('v_pk_add_f32 %s, %s, %s' % (vr(a, 2), vr(a, 2), vr(vBf + r, 2)))
    E('v_cvt_pk_bf16_f32 v%d, v%d, v%d' % (vT2, a, b))
    E('v_lshlrev_b32 v%d, 16, v%d' % (a, vT2))
    E('v_and_b32 v%d, 0xffff0000, v%d' % (b, vT2))
    E('v_cmp_lt_f32 vcc, 0, v%d' % a)
    E('v_cmp_lt_f32 s[92:93], 0, v%d' % b)
    E('s_nop 0')
    E('v_cndmask_b32 v10, 0, 1.0, vcc')
    E('v_cndmask_b32 v11, 0, 1.0, s[92:93]')
    E('v_mul_f32 v%d, v%d, v10' % (a, a))
    E('v_mul_f32 v%d, v%d, v11' % (b, b))
    E('v_fmac_f32 v%d, v%d, v%d' % (vT1, a, vWf + r))
    E('v_fmac_f32 v%d, v%d, v%d' % (vT3, b, vWf + r + 1))
E('v_add_f32 v%d, v%d, v%d' % (vT1, vT1, vT3))
lane_reduce(vT1, vT2)
E('v_and_b32 v%d, 15, v%d' % (vT2, vL))
E('v_lshlrev_b32 v%d, 4, v%d' % (vT2, vT2))
E('s_lshl_b32 s%d, s%d, 2' % (sT2, sQ))
E('v_add_u32 v%d, s%d, v%d' % (vT3, sT2, vT2))
E('s_mov_b64 exec, 0xffff')
E('ds_write_b32 v%d, v%d offset:%d' % (vT3, vT1, SCROFF))
E('s_waitcnt lgkmcnt(0)')
E('s_barrier')
E('s_cmp_lg_u32 s%d, 0' % sQ)
E('s_cbranch_scc1 L_end')
E('ds_read_b128 %s, v%d offset:%d' % (vr(vS), vT2, SCROFF))
E('s_waitcnt lgkmcnt(0)')
E('v_add_f32 v%d, v%d, v%d' % (vS, vS, vS + 1))
E('v_add_f32 v%d, v%d, v%d' % (vS + 2, vS + 2, vS + 3))
E('v_add_f32 v%d, v%d, v%d' % (vS, vS, vS + 2))
rbf(vS)
E('v_add_f32 v%d, v%d, v%d' % (vS, vS, vSC + 1))
rbf(vS)
E('v_add_f32 v%d, v%d, v%d' % (vS, vS, vT0))
rbf(vS)
E('v_mul_f32 v%d, 0xbfb8aa3b, v%d' % (vS, vS))
E('v_exp_f32 v%d, v%d' % (vS, vS)); E('s_nop 0')
E('v_add_f32 v%d, 1.0, v%d' % (vS, vS))
E('v_rcp_f32 v%d, v%d' % (vS, vS)); E('s_nop 0')
E('v_cvt_pk_bf16_f32 v%d, v%d, v%d' % (vS, vS, vS))
E('v_lshlrev_b32 v%d, 1, v%d' % (vT2, vL))
E('s_lshl_b32 s%d, s%d, 5' % (sT2, sSELF))
for _ in range(P['SL1']): E('s_sleep 127')
if P['LEAK']:
    if P['LEAK'] == 6: E('s_memrealtime s[74:75]')
    E('s_memrealtime s[76:77]')
    E('s_waitcnt lgkmcnt(0)')
    E('s_sub_u32 s78, s74, s72')
    if P['LEAK'] == 9: E('s_mov_b32 s78, 0')
    E('s_add_u32 s78, s78, s76')
    L('L_leak')
    E('s_sleep 4')
    E('s_memrealtime s[76:77]')
    E('s_waitcnt lgkmcnt(0)')
    E('s_sub_u32 s79, s76, s78')
    E('s_cmp_lt_i32 s79, 0')
    E('s_cbranch_scc1 L_leak')
E('buffer_store_short v%d, v%d, %s, s%d offen %s' % (vS, vT2, sr(R_T1), sT2, P['OFL']))
if TS:
    ts(6); ts_store(0)
E('s_endpgm')

L('L_compute')
INC[0] = True
INC2[0] = True
if P['CPF']:
    E('v_lshlrev_b32 v2, 6, v0')
    for rnd in range(2):
        E('v_cmp_gt_u32 vcc, 0x%x, v2' % (P['CPF'] * 1024 - rnd * 16384))
        E('s_and_saveexec_b64 s[94:95], vcc')
        E('s_cbranch_execz L_nocpf%d' % rnd)
        if rnd: E('v_add_u32 v2, 0x4000, v2')
        E('global_load_dword v%d, v2, s[92:93]' % (20 + rnd))
        L('L_nocpf%d' % rnd)
        E('s_mov_b64 exec, s[94:95]')
cXo, cT0, cT1, cT2, cONE = 2, 3, 4, 5, 6
cB = [[8, 9], [10, 11]]
cW = [12, 13]
cRDY = 14
cFO = 16
cFR = 20
cACC = 180
def acc(X, nt): return cACC + (X * 2 + nt) * 4
def frB(p, X, kk): return cFR + p * 80 + (kk * 8 + X) * 4
def frW(p, nt, kk): return cFR + p * 80 + 64 + (kk * 2 + nt) * 4
E('v_and_b32 v%d, 15, v%d' % (cT0, vL))
E('v_lshrrev_b32 v%d, 4, v%d' % (cT1, vL))
E('v_lshrrev_b32 v%d, 1, v%d' % (cT2, cT0))
E('v_xor_b32 v%d, v%d, v%d' % (cT2, cT2, cT1))
E('v_lshlrev_b32 v%d, 4, v%d' % (cT2, cT2))
E('v_lshl_add_u32 v%d, v%d, 7, v%d' % (cB[0][0], cT0, cT2))
E('v_add_u32 v%d, 0x%x, v%d' % (cB[0][0], ABASE, cB[0][0]))
E('v_xor_b32 v%d, 64, v%d' % (cB[0][1], cB[0][0]))
E('v_add_u32 v%d, 0x10000, v%d' % (cB[1][0], cB[0][0]))
E('v_add_u32 v%d, 0x10000, v%d' % (cB[1][1], cB[0][1]))
E('v_bfe_u32 v%d, v%d, 2, 2' % (cT0, vL))
E('v_and_b32 v%d, 1, v%d' % (cT2, cT1))
E('v_lshl_or_b32 v%d, v%d, 2, v%d' % (cT2, cT2, cT0))
E('v_lshl_add_u32 v%d, v%d, 3, v%d' % (cT0, cT1, cT0))
E('v_lshlrev_b32 v%d, 8, v%d' % (cT0, cT0))
E('v_and_b32 v%d, 3, v%d' % (cT1, vL))
E('v_lshl_add_u32 v%d, v%d, 3, v%d' % (cT0, cT1, cT0))
E('s_lshl_b32 s%d, s%d, 1' % (sT0, sQ))
for nt in range(2):
    E('s_add_u32 s%d, s%d, %d' % (sT1, sT0, nt))
    E('v_xor_b32 v%d, s%d, v%d' % (cT1, sT1, cT2))
    E('v_lshl_add_u32 v%d, v%d, 5, v%d' % (cW[nt], cT1, cT0))
E(('v_mul_u32_u24 v%d, 12, v%d' if F24 else 'v_lshlrev_b32 v%d, 4, v%d') % (cXo, vL))
E('s_mul_i32 s%d, s%d, %d' % (sT0, sQ, PIECE // 4))
E('v_add_u32 v%d, s%d, v%d' % (cXo, sT0, cXo))
E('v_mov_b32 v%d, 1' % cONE)
E('s_add_u32 s%d, s%d, 1' % (sT0, sME))
E('v_add_u32 v%d, s%d, v%d' % (cT0, sT0, vL))
E('v_and_b32 v%d, 7, v%d' % (cT0, cT0))
E('v_mul_u32_u24 v%d, %d, v%d' % (cT0, 9 * PIECE, cT0))
E('s_mul_i32 s%d, s%d, %d' % (sT0, sGRP, 8 * PIECE))
E('s_lshl_b32 s%d, s%d, 7' % (sT1, sME))
E('s_add_u32 s%d, s%d, s%d' % (sT0, sT0, sT1))
E('v_add_u32 v%d, s%d, v%d' % (cFO, sT0, cT0))
for r in range(64): E('v_mov_b32 v%d, 0' % (cACC + r))
E('s_waitcnt lgkmcnt(0)')
srd(R_WS, 26, WS_BYTES)
srd(R_T0, 24, 512)
assert RW <= 4
def reads(u):
    p = u & 1
    l = []
    for kk in range(2):
        for nt in range(2):
            for h in range(2):
                l.append('ds_read_b64_tr_b16 %s, v%d offset:%d' % (vr(frW(p, nt, kk) + 2 * h, 2), cW[nt], (u % RW) * 16384 + kk * 8192 + h * 1024))
        s = u % RA
        for X in range(8):
            l.append('ds_read_b128 %s, v%d offset:%d' % (vr(frB(p, X, kk)), cB[s // 4][kk], (s % 4) * 16384 + X * 2048))
    return l
def stores(X):
    E('s_add_u32 s%d, s%d, %d' % (sT3, sME, X + 1))
    E('s_and_b32 s%d, s%d, 7' % (sT3, sT3))
    E('s_add_u32 s%d, s%d, s%d' % (sT2, sT3, sGRP))
    E('s_lshl_b32 s%d, s%d, 3' % (sT2, sT2))
    E('s_add_u32 s%d, s%d, s%d' % (sT2, sT2, sME))
    E('s_mul_i32 s%d, s%d, %d' % (sT2, sT2, PIECE))
    if BF:
        a0, a1 = acc(X, 0), acc(X, 1)
        E('v_cvt_pk_bf16_f32 v%d, v%d, v%d' % (a0, a0, a0 + 1))
        E('v_cvt_pk_bf16_f32 v%d, v%d, v%d' % (a0 + 1, a0 + 2, a0 + 3))
        E('v_cvt_pk_bf16_f32 v%d, v%d, v%d' % (a0 + 2, a1, a1 + 1))
        E('v_cvt_pk_bf16_f32 v%d, v%d, v%d' % (a0 + 3, a1 + 2, a1 + 3))
        E('buffer_store_dwordx4 %s, v%d, %s, s%d offen %s' % (vr(a0), cXo, sr(R_WS), sT2, P['SFL'].replace('+', ' ')))
    elif F24:
        for nt in range(2):
            a = acc(X, nt)
            E('v_add_u32 v%d, 0x80, v%d' % (a + 3, a + 3))
            for r in range(3):
                E('v_perm_b32 v%d, v%d, v%d, s%d' % (a + r, a + r, a + 3, 92 + r))
            E('buffer_store_dwordx3 %s, v%d, %s, s%d offen offset:%d sc1' % (vr(a, 3), cXo, sr(R_WS), sT2, nt * TB))
    else:
        for nt in range(2):
            E('buffer_store_dwordx4 %s, v%d, %s, s%d offen offset:%d %s' % (vr(acc(X, nt)), cXo, sr(R_WS), sT2, nt * 1024, P['SFL'].replace('+', ' ')))
if F24:
    for r in range(3): E('s_mov_b32 s%d, 0x%08x' % (92 + r, 0x07060500 + r + 1))
est_done = [0]
if P['CPF']: E('s_waitcnt vmcnt(0)')
E('s_barrier')
ts(2)
for x in reads(0): E(x)
for u in range(NSTEP):
    p = u & 1
    E('; ---- step %d' % u)
    E('s_waitcnt lgkmcnt(0)')
    E('s_barrier')
    if u < NSTEP - 1:
        mf = ['v_mfma_f32_16x16x32_bf16 %s, %s, %s, %s' % (vr(acc(X, nt)), vr(frW(p, nt, kk)), vr(frB(p, X, kk)), vr(acc(X, nt)))
              for kk in range(2) for X in range(8) for nt in range(2)]
        if P['MORD']:
            mf = ['v_mfma_f32_16x16x32_bf16 %s, %s, %s, %s' % (vr(acc(X, nt)), vr(frW(p, nt, kk)), vr(frB(p, X, kk)), vr(acc(X, nt)))
                  for kk in range(2) for nt in range(2) for X in range(8)]
    else:
        mf = ['v_mfma_f32_16x16x32_bf16 %s, %s, %s, %s' % (vr(acc(X, nt)), vr(frW(p, nt, kk)), vr(frB(p, X, kk)), vr(acc(X, nt)))
              for X in range(8) for kk in range(2) for nt in range(2)]
    rd = reads(u + 1) if u + 1 < NSTEP else []
    for m, x in enumerate(mf):
        E(x)
        if m < len(rd): E(rd[m])
        if P['MNOP'] >= 0 and u < NSTEP - 1: E('s_nop %d' % P['MNOP'])
        if P['EST'] and u == NSTEP - 1 and m % 4 == 3 and m // 4 >= 2:
            stores(m // 4 - 2); est_done[0] += 1
    if u == NSTEP - 5:
        if P['DBG']:
            E('s_lshl_b32 s%d, s%d, 2' % (sT2, sMT))
            E('s_add_u32 s%d, s%d, 128' % (sT2, sT2))
            E('v_mov_b32 v%d, s%d' % (cT0, sT2))
        else:
            E('v_mov_b32 v%d, s%d' % (cT0, sGRP))
        if P['RDY1']:
            E('s_cmp_lg_u32 s%d, 0' % sQ)
            E('s_cbranch_scc1 L_nord1')
            E('s_mov_b64 exec, 1')
        E('buffer_load_dwordx2 %s, v%d, %s, 0 offen sc1' % (vr(cRDY, 2), cT0, sr(R_T0)))
        if P['RDY1']:
            E('s_mov_b64 exec, -1')
            L('L_nord1')
ts(3)
INC[0] = False
E('s_mov_b32 s%d, 0' % sSPIN)
if F24:
    for r in range(3): E('s_mov_b32 s%d, 0x%08x' % (92 + r, 0x07060500 + r + 1))
if P['SL2']: E('s_sleep %d' % P['SL2'])
for X in range(est_done[0], 7):
    stores(X)
    if P['PACE'] and X < 6: E('s_sleep %d' % P['PACE'])
ts(4)
E('v_lshlrev_b32 v%d, 4, v%d' % (cT1, vL))
E('s_lshl_b32 s%d, s%d, 11' % (sT2, sQ))
E('v_add_u32 v%d, s%d, v%d' % (cT1, sT2, cT1))
for nt in range(2): E('ds_write_b128 v%d, %s offset:%d' % (cT1, vr(acc(7, nt)), OWNOFF + nt * 1024))
if P['RDY1']:
    E('s_cmp_lg_u32 s%d, 0' % sQ)
    E('s_cbranch_scc1 L_rdyok')
E('s_waitcnt vmcnt(%d)' % (7 * NST))
L('L_rdychk')
E('v_and_b32 v%d, v%d, v%d' % (cT1, cRDY, cRDY + (0 if P['DBG'] else 1)))
E('s_nop 0')
E('v_readfirstlane_b32 s%d, v%d' % (sT2, cT1))
E('s_cmp_eq_u32 s%d, %s' % (sT2, '0xff' if P['DBG'] else '0x01010101'))
E('s_cbranch_scc1 L_rdyok')
E('s_add_u32 s%d, s%d, 1' % (sSPIN, sSPIN))
E('s_cmp_gt_u32 s%d, 0x8000' % sSPIN)
E('s_cbranch_scc1 L_rdyok')
E('s_sleep 2')
E('buffer_load_dwordx2 %s, v%d, %s, 0 offen sc1' % (vr(cRDY, 2), cT0, sr(R_T0)))
E('s_waitcnt vmcnt(0)')
E('s_branch L_rdychk')
L('L_rdyok')
E('s_waitcnt vmcnt(0) lgkmcnt(0)')
ts(5)
E('s_barrier')
if P['POLL'] != 'dma':
    E('s_sub_u32 s%d, s%d, 1' % (sT0, sQ))
    E('s_cmp_ge_u32 s%d, %d' % (sT0, P['NPOLL']))
    E('s_cbranch_scc1 L_notpoller')
    if P['NPOLL'] > 1:
        E('s_cmp_eq_u32 s%d, 0' % sT0)
        E('s_cbranch_scc1 L_pst')
        E('s_sleep %d' % (20 // P['NPOLL']))
        E('s_cmp_eq_u32 s%d, 1' % sT0)
        E('s_cbranch_scc1 L_pst')
        E('s_sleep %d' % (20 // P['NPOLL']))
        L('L_pst')
    E('s_lshl_b32 s%d, s%d, 3' % (sT0, sSELF))
    E('s_add_u32 s%d, s%d, s%d' % (sT0, sT0, sME))
    E('s_mul_i32 s%d, s%d, %d' % (sT0, sT0, PIECE))
    E('v_lshlrev_b32 v%d, 7, v%d' % (cT0, vL))
    E('v_add_u32 v%d, s%d, v%d' % (cT0, sT0, cT0))
    E('v_lshlrev_b32 v%d, 2, v%d' % (cT1, vL))
    E('v_add_u32 v%d, 0x%x, v%d' % (cT1, SCROFF + 1024, cT1))
    E('s_lshl_b32 s%d, 1, s%d' % (sMASK, sME))
    E('s_mov_b32 exec_hi, 0')
    L('L_cpoll')
    E('s_andn2_b32 exec_lo, 0xff, s%d' % sMASK)
    if P['POLL'] == 'atom':
        E('v_mov_b32 v%d, 0' % cT2)
        E('buffer_atomic_or v%d, v%d, %s, 0 offen sc0 sc1' % (cT2, cT0, sr(R_WS)))
    else:
        E('buffer_load_dword v%d, v%d, %s, 0 offen sc1' % (cT2, cT0, sr(R_WS)))
    E('s_add_u32 s%d, s%d, 1' % (sSPIN, sSPIN))
    E('s_cmp_gt_u32 s%d, 0x20000' % sSPIN)
    E('s_cbranch_scc1 L_end')
    E('s_waitcnt vmcnt(0)')
    E('v_cmp_ne_u32 vcc, 0, v%d' % cT2)
    E('s_nop 1')
    E('s_mov_b32 exec_lo, vcc_lo')
    E('ds_write_b32 v%d, v%d' % (cT1, cT2))
    E('s_or_b32 s%d, s%d, vcc_lo' % (sMASK, sMASK))
    if P['PSL']: E('s_sleep %d' % P['PSL'])
    E('s_cmp_lg_u32 s%d, 0xff' % sMASK)
    E('s_cbranch_scc1 L_cpoll')
    E('s_endpgm')
    L('L_notpoller')
E('s_cmp_lg_u32 s%d, 0' % sQ)
E('s_cbranch_scc1 L_end')
E('s_mov_b64 exec, 0x7f')
E(('buffer_atomic_or v%d, v%d, %s, 0 offen sc1' if P['FAT'] else 'buffer_store_dword v%d, v%d, %s, 0 offen sc1') % (cONE, cFO, sr(R_WS)))
E('s_mov_b64 exec, -1')
if TS:
    ts(6)
    E('s_cmp_lg_u32 s%d, 0' % sQ)
    E('s_cbranch_scc1 L_end')
    ts_store(1)
L('L_end')
E('s_endpgm')
out += ['.section .rodata,"a"', '.p2align 6', '.amdhsa_kernel ' + KN, '  .amdhsa_next_free_vgpr 248', '  .amdhsa_next_free_sgpr 102',
        '  .amdhsa_accum_offset 248', '  .amdhsa_group_segment_fixed_size 0', '  .amdhsa_kernarg_size 96', '  .amdhsa_user_sgpr_count 2',
        '  .amdhsa_user_sgpr_kernarg_segment_ptr 1', '  .amdhsa_system_sgpr_workgroup_id_x 1', '  .amdhsa_float_denorm_mode_32 3', '.end_amdhsa_kernel']
open(sys.argv[1], 'w').write('\n'.join(out) + '\n')
print('lds', LDS_BYTES, 'lines', len(out))
```

```python
import sys, copy
P = dict(XFMT='f24', TS=0, RA=6, RW=4, PF=0, LPRIO=2, COOP=1, SLP=0, NOMF=0, NORD=0, ORD='AAWW', PH=0, Q=8, Q0=12, FG=2, IDXL=1, PFPOS=0, CPF=0, DBG=0, DELAY=0, SL0=0, SL1=0, LEAK=0, POLL='atom', PSL=0, FAT=0, SL2=0, PACE=0, SFL='sc1', LFL='sc1', RDY1=1, ROT=1, L1ST=1, NPOLL=1, MNOP=-1, MORD=0, EST=1, OTOUCH=0, OFL='sc1', M32=0, MRG=0, STG=1, MID=3)
for a in sys.argv[2:]:
    k, v = a.split('=')
    P[k] = int(v) if v.lstrip('-').isdigit() else v
BF = P['XFMT'] == 'bf16'
TS = P['TS']
RA, RW = P['RA'], P['RW']
NSTEP = 25
WBASE = 0
ABASE = RW * 16384
LDS_BYTES = (RA + RW) * 16384
F24 = P['XFMT'] == 'f24'
NST = 1 if BF else 2
PIECE = 6144 if F24 else NST * 4096
TB = 768 if F24 else 1024
TSOFF = 56 << 20
WS_BYTES = 64 << 20
out = []
INC = [False]
INC2 = [False]
def E(s=''):
    if P['NOMF'] and s.startswith('v_mfma'): return
    if P['NORD'] and INC[0] and s.startswith('ds_read'): return
    out.append('    ' + s)
def L(s): out.append(s + ':')
def vr(b, n=4): return 'v[%d:%d]' % (b, b + n - 1)
def sr(b, n=4): return 's[%d:%d]' % (b, b + n - 1)
R_TAB, R_W1, R_IDX, R_WS, R_T0, R_T1, R_T2 = 28, 32, 36, 40, 44, 48, 96
sW, sMT, sME, sQ, sLOFF, sWp, sWm, sT0, sT1, sT2, sT3, sSELF, sPREV, sMASK, sGRP, sSPIN, sNH, sFB, sKQ, sFLG = range(52, 72)
sTS = 72
sW0 = 94
def ts(i):
    if P['LEAK'] and not INC2[0] and i == P['LEAK']:
        E('s_memrealtime s[74:75]')
    if TS:
        E('s_memrealtime s[%d:%d]' % (sTS + 2 * i, sTS + 2 * i + 1))
        if i == 2: E('s_memtime s[88:89]')
        if i == 3: E('s_memtime s[90:91]')
def srd(r, p, nbytes):
    E('s_mov_b32 s%d, s%d' % (r, p))
    E('s_and_b32 s%d, s%d, 0xffff' % (r + 1, p + 1))
    E('s_mov_b32 s%d, 0x%x' % (r + 2, nbytes))
    E('s_mov_b32 s%d, 0x00020000' % (r + 3))
def ts_store(role):
    if P['DBG']:
        E('s_waitcnt lgkmcnt(0)')
        E('s_mov_b64 exec, 1')
        E('v_mov_b32 v2, 0')
        if role == 0:
            E('s_not_b32 s%d, s%d' % (sT2, sTS))
            E('v_mov_b32 v4, s%d' % sT2)
            E('buffer_atomic_umax v4, v2, %s, 0 offen offset:28 sc1' % sr(R_T0))
            E('v_mov_b32 v5, s%d' % (sTS + 12))
            E('buffer_atomic_umax v5, v2, %s, 0 offen offset:60 sc1' % sr(R_T0))
        E('s_cmp_lg_u32 s2, %d' % P['DBG'])
        E('s_cbranch_scc1 L_end')
        for i in range(7):
            if i == 0: E('s_mov_b32 s%d, s%d' % (sT2, sTS))
            else: E('s_sub_u32 s%d, s%d, s%d' % (sT2, sTS + 2 * i, sTS))
            E('v_mov_b32 v%d, s%d' % (6 + i, sT2))
            E('buffer_store_dword v%d, v2, %s, 0 offen offset:%d sc1' % (6 + i, sr(R_T0), role * 32 + 4 * i))
        return
    E('s_waitcnt lgkmcnt(0)')
    E('s_mov_b64 exec, 1')
    E('s_lshl_b32 s%d, s2, 7' % sT2)
    E('s_add_u32 s%d, s%d, 0x%x' % (sT2, sT2, TSOFF + role * 64))
    E('v_mov_b32 v2, 0')
    E('s_sub_u32 s86, s90, s88')
    E('s_subb_u32 s87, s91, s89')
    for i in range(8):
        E('v_mov_b32 v4, s%d' % (sTS + 2 * i))
        E('v_mov_b32 v5, s%d' % (sTS + 2 * i + 1))
        E('buffer_store_dwordx2 v[4:5], v2, %s, s%d offen offset:%d' % (sr(R_WS), sT2, 8 * i))
        E('s_nop 1')
hdr = open('standalone__deep_cross_wide_deep__recsys.s.ref').read().split('\n')
for line in hdr:
    if line.startswith('; @launch'):
        out.append('; @launch grid=(256,1,1) block=(512,1,1) lds=%d' % LDS_BYTES)
    elif line.startswith(';'):
        out.append(line)
    else:
        break
out.append('; generated v2-style v4: ' + ' '.join('%s=%s' % kv for kv in sorted(P.items())))
out.append('.amdgcn_target "amdgcn-amd-amdhsa--gfx950"')
out.append('.text')
KN = 'standalone__deep_cross_wide_deep__recsys_kernel'
out += ['.globl ' + KN, '.p2align 8', '.type %s,@function' % KN]
L(KN)
E('s_cmp_ge_u32 s2, 256')
E('s_cbranch_scc1 L_end')
E('s_load_dwordx16 s[4:19], s[0:1], 0')
E('s_load_dwordx8 s[20:27], s[0:1], 64')
if TS:
    for i in range(1, 8): E('s_mov_b64 s[%d:%d], 0' % (sTS + 2 * i, sTS + 2 * i + 1))
    E('s_mov_b64 s[88:89], 0'); E('s_mov_b64 s[90:91], 0')
ts(0)
vL = 1
if P['DELAY']:
    E('s_memrealtime s[92:93]')
    E('s_waitcnt lgkmcnt(0)')
    E('s_add_u32 s94, s92, %d' % P['DELAY'])
    L('L_dly')
    E('s_memrealtime s[92:93]')
    E('s_waitcnt lgkmcnt(0)')
    E('s_sub_u32 s95, s92, s94')
    E('s_cmp_lt_i32 s95, 0')
    E('s_cbranch_scc1 L_dly')
for _ in range(P['SL0']): E('s_sleep 127')
E('v_lshrrev_b32 v2, 6, v0')
E('v_and_b32 v%d, 63, v0' % vL)
E('v_readfirstlane_b32 s%d, v2' % sW)
E('s_lshr_b32 s%d, s2, 3' % sT0)
E('s_and_b32 s%d, s%d, 1' % (sNH, sT0))
E('s_lshr_b32 s%d, s%d, 1' % (sMT, sT0))
E('s_bfe_u32 s%d, s2, 0x10002' % sT1)
E('s_lshl_b32 s%d, s%d, 4' % (sT1, sT1))
E('s_add_u32 s%d, s%d, s%d' % (sMT, sMT, sT1))
E('s_and_b32 s%d, s2, 3' % sKQ)
E('s_lshl_b32 s%d, s%d, 2' % (sME, sNH))
E('s_add_u32 s%d, s%d, s%d' % (sME, sME, sKQ))
E('s_lshl_b32 s%d, s%d, 3' % (sGRP, sMT))
E('s_add_u32 s%d, s%d, s%d' % (sSELF, sGRP, sME))
E('s_and_b32 s%d, s%d, 3' % (sQ, sW))
if P['CPF']: E('s_getpc_b64 s[92:93]')
E('s_cmp_lt_u32 s%d, 4' % sW)
E('s_cbranch_scc1 L_compute')
def wslot(u): return WBASE + (u % RW) * 16384
def aslot(c): return ABASE + (c % RA) * 16384
OWNOFF, SCROFF = 0, 16384
def need_at(b):
    u = b + 1
    return [('W', u), ('A', u)] if u < NSTEP else []

vT0, vT1, vT2, vT3 = 2, 3, 4, 5
vWd = [6, 7, 8, 9]
vIDX = [12 + 28 * i for i in range(4)]
vB1v, vW2v, vXW, vWW, vSC, vFo, vXc, vONE = 124, 132, 140, 144, 148, 150, 151, 152
vS = 156
vRX = 176
vBf, vWf = 12, 28
vmq = []
def vm(t): vmq.append(t)
def wait_for(tags, cnt):
    last = -1
    for t in tags:
        if isinstance(t, tuple): assert vmq.count(t) == cnt, ('needed DMA not issued', t, vmq.count(t))
    for i, t in enumerate(vmq):
        if t in tags: last = i
    return min(len(vmq) - 1 - last, 63)
if P['LPRIO']: E('s_setprio %d' % P['LPRIO'])
if P['LEAK']: E('s_memrealtime s[72:73]')
E('s_mul_i32 s%d, s%d, 25' % (sFB, sKQ))
E('s_lshl_b32 s%d, s%d, 15' % (sW0, sFB))
E('s_lshl_b32 s%d, s%d, 16' % (sT0, sNH))
if not P['COOP']: E('s_mov_b32 s%d, 0' % sT0)
E('s_add_u32 s%d, s%d, s%d' % (sWp, sW0, sT0))
E('s_sub_u32 s%d, s%d, s%d' % (sWm, sW0, sT0))
E('s_lshl_b32 s%d, s%d, 2' % (sFB, sFB))
E('s_lshl_b32 s%d, s%d, 12' % (sLOFF, sQ))
if P['ROT']:
    E('s_mul_i32 s100, s%d, 43' % sMT)
    E('s_lshr_b32 s100, s100, 8')
    E('s_mul_i32 s100, s100, 6')
    E('s_sub_u32 s100, s%d, s100' % sMT)
    E('s_lshl_b32 s100, s100, 17')
E('v_lshrrev_b32 v%d, 3, v%d' % (vT2, vL))
for j in range(2):
    E('s_lshl_b32 s%d, s%d, 1' % (sT0, sQ))
    E('s_add_u32 s%d, s%d, s%d' % (sT0, sT0, sME))
    E('s_add_u32 s%d, s%d, %d' % (sT0, sT0, 1 + j))
    E('s_and_b32 s%d, s%d, 7' % (sT0, sT0))
    E('s_add_u32 s%d, s%d, s%d' % (sT0, sT0, sGRP))
    E('s_lshl_b32 s%d, s%d, 4' % (sT0, sT0))
    E('v_add_u32 v%d, s%d, v%d' % (vT0 + j, sT0, vT2))
    E('v_mul_u32_u24 v%d, 400, v%d' % (vT0 + j, vT0 + j))
if P['IDXL']:
    E('v_and_b32 v10, 7, v%d' % vL)
    for j in range(2): E('v_lshl_add_u32 v%d, v10, 4, v%d' % (vT0 + j, vT0 + j))
    E('v_add_u32 v%d, 3200, v%d' % (vS, vT0))
    E('v_add_u32 v%d, 3200, v%d' % (vS + 1, vT1))
E('v_lshrrev_b32 v%d, 4, v%d' % (vT2, vL))
E('v_lshlrev_b32 v%d, 1, v%d' % (vT3, vT2))
E('v_and_b32 v10, 15, v%d' % vL)
E('v_xor_b32 v%d, v%d, v10' % (vT3, vT3))
E('v_lshlrev_b32 v%d, 9, v%d' % (vT2, vT2))
E('s_lshl_b32 s%d, s%d, 13' % (sT0, sQ))
E('s_lshl_b32 s%d, s%d, 8' % (sT1, sNH))
E('s_add_u32 s%d, s%d, s%d' % (sT0, sT0, sT1))
E('v_add_u32 v%d, s%d, v%d' % (vT2, sT0, vT2))
E('v_lshl_add_u32 v%d, v%d, 4, v%d' % (vWd[0], vT3, vT2))
E('v_add_u32 v%d, 2048, v%d' % (vWd[1], vWd[0]))
E('v_xor_b32 v%d, 8, v%d' % (vT3, vT3))
E('v_lshl_add_u32 v%d, v%d, 4, v%d' % (vWd[2], vT3, vT2))
E('v_add_u32 v%d, 4096, v%d' % (vWd[2], vWd[2]))
E('v_add_u32 v%d, 2048, v%d' % (vWd[3], vWd[2]))
E('s_waitcnt lgkmcnt(0)')
srd(R_IDX, 4, 4096 * 400)
srd(R_W1, 14, 6400 * 512)
IDXL_OFF = aslot(RA - 1)
if P['IDXL']:
    for i in range(4):
        E('s_add_u32 m0, s%d, 0x%x' % (sLOFF, IDXL_OFF + i * 1024))
        E('s_nop 0')
        E('buffer_load_dwordx4 v%d, %s, s%d offen lds' % ([vT0, vS, vT1, vS + 1][i], sr(R_IDX), sFB)); vm('idx0')
else:
    for c in range(7):
        for i in range(4):
            if c < 6:
                E('buffer_load_dwordx4 %s, v%d, %s, s%d offen offset:%d' % (vr(vIDX[i] + 4 * c), vT0 + (i >> 1), sr(R_IDX), sFB, (i & 1) * 3200 + c * 16))
            else:
                E('buffer_load_dword v%d, v%d, %s, s%d offen offset:%d' % (vIDX[i] + 24, vT0 + (i >> 1), sr(R_IDX), sFB, (i & 1) * 3200 + 96))
            vm('idx0' if c == 0 else 'idx')
CUR = dict(seq=None)
def mkseq(v, nh):
    rounds = [2] * 6 if (v & 1) == 0 else [1] + [2] * 5 + [1]
    at = 0 if (v & 2) == 0 else P['MID']
    seq = []; grp = []
    p = 0
    for ri, g in enumerate(rounds):
        if ri == at:
            grp.append([len(seq)]); seq.append(24)
        a = list(range(p, p + g)); b = list(range(p + g, p + 2 * g)); p += 2 * g
        own, oth = (a, b) if nh == 0 else (b, a)
        for part in (own, oth):
            grp.append(list(range(len(seq), len(seq) + g))); seq += part
    return seq, grp
def pos(t):
    if P['STG']: return CUR['seq'][t]
    if not P['L1ST']: return t
    return 24 if t == 0 else t - 1
def dmaW(t, i):
    u = pos(t)
    if i == 0:
        base = sW0 if (u == 24 or P['STG']) else (sWp if ((u >> 1) & 1) == 0 else sWm)
        if P['ROT'] and u < 24:
            r = u >> 2
            E('s_add_u32 s%d, s100, 0x%x' % (sT3, r * 131072))
            E('s_sub_u32 s101, s%d, 0x%x' % (sT3, 6 * 131072))
            E('s_cselect_b32 s%d, s%d, s101' % (sT3, sT3))
            E('s_add_u32 s%d, s%d, s%d' % (sT3, sT3, base))
            if u & 3: E('s_add_u32 s%d, s%d, 0x%x' % (sT3, sT3, (u & 3) * 32768))
        else:
            E('s_add_u32 s%d, s%d, 0x%x' % (sT3, base, u * 32768))
    E('s_add_u32 m0, s%d, 0x%x' % (sLOFF, wslot(t) + i * 1024))
    E('s_nop 0')
    E('buffer_load_dwordx4 v%d, %s, s%d offen lds' % (vWd[i], sr(R_W1), sT3)); vm(('W', t))
def dmaA(c, i):
    E('s_add_u32 m0, s%d, 0x%x' % (sLOFF, aslot(c) + i * 1024))
    E('s_nop 0')
    E('buffer_load_dwordx4 v%d, %s, 0 offen lds' % (vIDX[i] + pos(c), sr(R_TAB))); vm(('A', c))
def chunk(k, c):
    for i in range(4): (dmaW if k == 'W' else dmaA)(c, i)
if P['STG']: CUR['seq'] = [24]
if P['STG'] == 3:
    E('s_bitcmp1_b32 s%d, 0' % sMT)
    E('s_cselect_b32 s%d, 15, 16' % sT0)
    E('s_lshl_b32 s%d, s%d, s%d' % (sT0, sNH, sT0))
    E('s_add_u32 s%d, s%d, s100' % (sT0, sT0))
    E('s_bitcmp1_b32 s%d, 1' % sMT)
    E('s_cselect_b32 s%d, s%d, 0x%x' % (sT3, sT0, 24 * 32768))
    E('s_add_u32 s%d, s%d, s%d' % (sT3, sT3, sW0))
    for i in range(4):
        E('s_add_u32 m0, s%d, 0x%x' % (sLOFF, wslot(0) + i * 1024))
        E('s_nop 0')
        E('buffer_load_dwordx4 v%d, %s, s%d offen lds' % (vWd[i], sr(R_W1), sT3)); vm(('W', 0))
else:
    chunk('W', 0)
def wpf():
    if not P['PF']: return
    if P['PF'] == 2:
        E('v_lshlrev_b32 v%d, 4, v%d' % (vT2, vL))
        E('s_lshr_b32 s%d, s2, 3' % sT0)
        E('s_lshl_b32 s%d, s%d, 10' % (sT0, sT0))
        E('s_lshl_b32 s%d, s%d, 8' % (sT1, sQ))
        E('s_add_u32 s%d, s%d, s%d' % (sT0, sT0, sT1))
        E('s_add_u32 s%d, s%d, s%d' % (sT0, sT0, sW0))
        E('s_add_u32 s%d, s%d, 0x%x' % (sT0, sT0, 24 * 32768))
        E('s_mov_b64 exec, 0xffff')
        E('buffer_load_dwordx4 %s, v%d, %s, s%d offen' % (vr(vRX), vT2, sr(R_W1), sT0)); vm('pf')
        E('s_mov_b64 exec, -1')
        return
    E('v_lshlrev_b32 v%d, 4, v%d' % (vT2, vL))
    E('s_lshl_b32 s%d, s%d, 10' % (sT0, sQ))
    E('v_add_u32 v%d, s%d, v%d' % (vT2, sT0, vT2))
    E('s_lshr_b32 s%d, s2, 3' % sT0)
    E('s_mul_i32 s%d, s%d, 25600' % (sT0, sT0))
    E('s_add_u32 s%d, s%d, s%d' % (sT0, sT0, sW0))
    for j in range(7):
        if j == 6:
            E('v_cmp_gt_u32 vcc, 1024, v%d' % vT2)
            E('v_mov_b32 v%d, 0x40000000' % (vS + 2))
            E('s_nop 0')
            E('v_cndmask_b32 v%d, v%d, v%d, vcc' % (vT2, vS + 2, vT2))
        E('buffer_load_dwordx4 %s, v%d, %s, s%d offen' % (vr(vRX + 4 * j), vT2, sr(R_W1), sT0)); vm('pf')
        if j < 6: E('s_add_u32 s%d, s%d, 4096' % (sT0, sT0))
if P['PFPOS'] == 0: wpf()
srd(R_TAB, 6, 100000 * 128)
srd(R_WS, 26, WS_BYTES)
srd(R_T0, 24, 512)
srd(R_T1, 22, 16384)
E('s_lshl_b32 s%d, s%d, 3' % (sFLG, sSELF))
E('s_add_u32 s%d, s%d, s%d' % (sFLG, sFLG, sME))
E('s_mul_i32 s%d, s%d, %d' % (sFLG, sFLG, PIECE))
E('s_lshl_b32 s%d, s%d, 8' % (sT0, sQ))
E('s_add_u32 s%d, s%d, s%d' % (sT0, sT0, sFLG))
E('v_mov_b32 v%d, 0' % vT2)
E('v_lshlrev_b32 v%d, 7, v%d' % (vT3, vL))
E('s_mov_b64 exec, 3')
E('buffer_store_dword v%d, v%d, %s, s%d offen sc1' % (vT2, vT3, sr(R_WS), sT0)); vm('clr')
E('s_mov_b64 exec, -1')
E('v_and_b32 v%d, 7, v%d' % (vFo, vL))
E('v_lshlrev_b32 v%d, 7, v%d' % (vFo, vFo))
E('v_add_u32 v%d, s%d, v%d' % (vFo, sFLG, vFo))
E(('v_mul_u32_u24 v%d, 12, v%d' if F24 else 'v_lshlrev_b32 v%d, 4, v%d') % (vXc, vL))
E('s_mul_i32 s%d, s%d, %d' % (sT0, sQ, PIECE // 4))
E('v_add_u32 v%d, s%d, v%d' % (vXc, sT0, vXc))
E('v_mov_b32 v%d, 1' % vONE)
E('v_lshrrev_b32 v10, 4, v%d' % vL)
E('v_and_b32 v11, 7, v%d' % vL)
E('v_xor_b32 v10, v10, v11')
E('v_lshlrev_b32 v10, 4, v10')
E('v_xor_b32 v11, 64, v10')
def conv(cs, tag):
    if P['COOP'] and not P['STG']:
        E('s_cmp_eq_u32 s%d, 0' % sNH)
        E('s_cbranch_scc1 L_nosw%s' % tag)
        for i in range(4):
            for c in cs:
                if c % 4 < 2 and c < 24:
                    E('v_swap_b32 v%d, v%d' % (vIDX[i] + c, vIDX[i] + c + 2))
        L('L_nosw%s' % tag)
    for c in cs:
        for i in range(4):
            E('v_lshl_or_b32 v%d, v%d, 7, v%d' % (vIDX[i] + c, vIDX[i] + c, 10 + (i & 1)))
E('s_waitcnt vmcnt(%d)' % wait_for(['idx0'], 0))
ts(1)
if P['IDXL']:
    E('v_lshrrev_b32 v%d, 3, v%d' % (vT2, vL))
    E('v_lshlrev_b32 v%d, 7, v%d' % (vT2, vT2))
    E('v_add_u32 v%d, s%d, v%d' % (vT2, sLOFF, vT2))
    E('v_add_u32 v%d, 0x%x, v%d' % (vT2, IDXL_OFF, vT2))
    corder = [6, 0, 1, 2, 3, 4, 5] if P['L1ST'] else list(range(7))
    for ci, c in enumerate(corder):
        if P['ROT'] and c < 6:
            E('s_lshr_b32 s%d, s100, 13' % sT0)
            E('s_add_u32 s%d, s%d, %d' % (sT0, sT0, c * 16))
            E('s_sub_u32 s101, s%d, 96' % sT0)
            E('s_cselect_b32 s%d, s%d, s101' % (sT0, sT0))
            E('v_add_u32 v%d, s%d, v%d' % (vT3, sT0, vT2))
        for i in range(4):
            if c < 6 and P['ROT']: E('ds_read_b128 %s, v%d offset:%d' % (vr(vIDX[i] + 4 * c), vT3, i * 1024))
            elif c < 6: E('ds_read_b128 %s, v%d offset:%d' % (vr(vIDX[i] + 4 * c), vT2, i * 1024 + c * 16))
            else: E('ds_read_b32 v%d, v%d offset:%d' % (vIDX[i] + 24, vT2, i * 1024 + 96))
        if c == 0:
            E('s_waitcnt lgkmcnt(0)')
            conv(([24] if P['L1ST'] else []) + list(range(4)), 'a')
            if P['STG'] != 3: chunk('A', 0)
    if not P['STG']:
        chunk('A', 1)
        if P['L1ST']: chunk('A', 2)
    if P['STG'] != 3:
        E('s_waitcnt lgkmcnt(0)')
        conv(range(4, 24 if P['L1ST'] else 25), 'b')
else:
    conv(range(4), 'a')
    chunk('A', 0); chunk('A', 1)
    E('s_waitcnt vmcnt(%d)' % wait_for(['idx'], 0))
    conv(range(4, 25), 'b')
if P['PFPOS'] == 1: wpf()
def earliest(k, ch):
    R = RW if k == 'W' else RA
    return -1 if ch < R else ch - R
order = []
if P['L1ST']:
    order = [('W', 1), ('W', 2)]
    for p in range(1, 12):
        order += [('A', 2 * p + 1), ('A', 2 * p + 2), ('W', 2 * p + 1), ('W', 2 * p + 2)]
elif P['ORD'] == 'AAWW':
    order = [('W', 1)]
    for p in range(1, 13):
        order += [('A', c) for c in (2 * p, 2 * p + 1) if c < 25] + [('W', c) for c in (2 * p, 2 * p + 1) if c < 25]
elif P['ORD'] == 'A2':
    order = [('W', 1), ('A', 2), ('A', 3)]
    for p in range(1, 13):
        order += [('A', c) for c in (2 * p + 2, 2 * p + 3) if c < 25] + [('W', c) for c in (2 * p, 2 * p + 1) if c < 25]
else:
    order = [('W', 1)]
    for c in range(2, 25): order += [('A', c), ('W', c)]
pend = list(order)
def loader_loop(var):
    for b in range(-1, NSTEP):
        nd = need_at(b)
        while any(vmq.count(t) < 4 for t in nd):
            d = pend[0]
            if earliest(*d) > b - 1:
                d = [x for x in pend if x in nd][0]
                assert earliest(*d) <= b - 1
            pend.remove(d); chunk(*d)
        if nd: E('s_waitcnt vmcnt(%d)' % wait_for(nd, 4))
        E('s_barrier')
        if b == -1: ts(2)
        q = (P['Q0'] if b < 4 else P['Q']) // 4
        n = 0
        while pend and n < q:
            d = pend[0]
            if earliest(*d) > b: break
            if P['STG']:
                if d[0] == 'A' and len(pend) > 1 and pend[1][0] == 'A' and earliest(*pend[1]) > b: break
            elif d[0] == 'A' and len(pend) > 1 and pend[1][0] == 'A' and d[1] % 2 == P['L1ST'] and earliest(*pend[1]) > b: break
            pend.pop(0); chunk(*d); n += 1
        if b == 2:
            E('s_cmp_lg_u32 s%d, 0' % sQ)
            E('s_cbranch_scc1 L_nordy%d' % var)
            if P['DBG']:
                E('s_lshl_b32 s%d, s%d, 2' % (sT2, sMT))
                E('s_add_u32 s%d, s%d, 128' % (sT2, sT2))
                E('v_mov_b32 v%d, s%d' % (vT0, sT2))
                E('s_lshl_b32 s%d, 1, s%d' % (sT2, sME))
                E('v_mov_b32 v%d, s%d' % (vT1, sT2))
                E('s_mov_b64 exec, 1')
                E('buffer_atomic_or v%d, v%d, %s, 0 offen sc1' % (vT1, vT0, sr(R_T0)))
            else:
                E('v_mov_b32 v%d, s%d' % (vT0, sSELF))
                E('s_mov_b64 exec, 1')
                E('buffer_store_byte v%d, v%d, %s, 0 offen sc1' % (vONE, vT0, sr(R_T0)))
            E('s_mov_b64 exec, -1')
            L('L_nordy%d' % var)
        if b == NSTEP - 4: small_loads()
def small_loads():
    srd(R_IDX, 16, 512); srd(R_T2, 18, 512)
    E('s_lshl_b32 s%d, s%d, 6' % (sT0, sQ))
    E('v_lshrrev_b32 v%d, 4, v%d' % (vT0, vL))
    E('v_lshlrev_b32 v%d, 3, v%d' % (vT0, vT0))
    for t in range(4):
        off = 256 * (t >> 1) + 32 * (t & 1)
        E('buffer_load_dwordx2 %s, v%d, %s, s%d offen offset:%d' % (vr(vB1v + 2 * t, 2), vT0, sr(R_IDX), sT0, off)); vm('ep')
        E('buffer_load_dwordx2 %s, v%d, %s, s%d offen offset:%d' % (vr(vW2v + 2 * t, 2), vT0, sr(R_T2), sT0, off)); vm('ep')
    E('s_nop 0')
    srd(R_IDX, 8, 4096 * 26 + 64); srd(R_T2, 10, 64)
    E('v_and_b32 v%d, 15, v%d' % (vT1, vL))
    E('s_lshl_b32 s%d, s%d, 4' % (sT0, sSELF))
    E('v_add_u32 v%d, s%d, v%d' % (vT1, sT0, vT1))
    E('v_mul_u32_u24 v%d, 26, v%d' % (vT1, vT1))
    E('v_lshrrev_b32 v%d, 2, v%d' % (vT0, vT0))
    E('v_add_u32 v%d, v%d, v%d' % (vT1, vT1, vT0))
    for m in range(4):
        if m == 3:
            E('v_mov_b32 v%d, 0' % (vXW + 3)); E('v_mov_b32 v%d, 0' % (vWW + 3))
            E('s_mov_b64 exec, 0xffff')
        E('buffer_load_ushort v%d, v%d, %s, 0 offen offset:%d' % (vXW + m, vT1, sr(R_IDX), 8 * m)); vm('ep')
        E('buffer_load_ushort v%d, v%d, %s, 0 offen offset:%d' % (vWW + m, vT0, sr(R_T2), 8 * m)); vm('ep')
    E('s_mov_b64 exec, -1')
    E('s_nop 0')
    srd(R_IDX, 12, 64); srd(R_T2, 20, 64)
    E('v_mov_b32 v%d, 0' % vT2)
    E('buffer_load_ushort v%d, v%d, %s, 0 offen' % (vSC, vT2, sr(R_IDX))); vm('ep')
    E('buffer_load_ushort v%d, v%d, %s, 0 offen' % (vSC + 1, vT2, sr(R_T2))); vm('ep')
    if P['OTOUCH']:
        E('s_lshl_b32 s%d, s%d, 5' % (sT0, sSELF))
        E('s_mov_b64 exec, 1')
        E('buffer_load_ushort v%d, v%d, %s, s%d offen sc1' % (vS + 3, vT2, sr(R_T1), sT0)); vm('ep')
        E('s_mov_b64 exec, -1')
if P['STG']:
    sv = list(vmq)
    NV = 8 if P['STG'] == 3 else 4
    E('s_and_b32 s%d, s%d, %d' % (sT0, sMT, NV // 2 - 1))
    E('s_lshl_b32 s%d, s%d, 1' % (sT0, sT0))
    E('s_or_b32 s%d, s%d, s%d' % (sT0, sT0, sNH))
    for var in range(1, NV):
        E('s_cmp_eq_u32 s%d, %d' % (sT0, var))
        E('s_cbranch_scc1 L_var%d' % var)
    for var in range(NV):
        L('L_var%d' % var)
        seq, grp = mkseq((var >> 1) if P['STG'] != 2 else 0, var & 1)
        CUR['seq'] = seq; CUR['grp'] = grp
        vmq[:] = sv
        pend[:] = []
        for gi, g in enumerate(grp):
            pend.extend([('A', t) for t in g]); pend.extend([('W', t) for t in g])
        pend.remove(('W', 0))
        first = grp[0] + (grp[1] if seq[0] == 24 else [])
        for t in first:
            pend.remove(('A', t))
            if t > 0 or P['STG'] == 3: chunk('A', t)
        if P['STG'] == 3:
            E('s_waitcnt lgkmcnt(0)')
            conv(range(4, 24), 'b%d' % var)
        loader_loop(var)
        assert not pend, pend
        if var < NV - 1: E('s_branch L_varj')
    L('L_varj')
else:
    loader_loop(0)
    assert not pend, pend
ts(3)
def lane_reduce(v, tmp):
    E('v_mov_b32 v%d, v%d' % (tmp, v)); E('s_nop 1')
    E('v_permlane32_swap_b32 v%d, v%d' % (v, tmp)); E('s_nop 1')
    E('v_add_f32 v%d, v%d, v%d' % (v, v, tmp))
    E('v_mov_b32 v%d, v%d' % (tmp, v)); E('s_nop 1')
    E('v_permlane16_swap_b32 v%d, v%d' % (v, tmp)); E('s_nop 1')
    E('v_add_f32 v%d, v%d, v%d' % (v, v, tmp))
def rbf(v):
    E('v_cvt_pk_bf16_f32 v%d, v%d, v%d' % (v, v, v))
    E('v_lshlrev_b32 v%d, 16, v%d' % (v, v))
E('s_waitcnt vmcnt(0)')
for m in range(4):
    E('v_lshlrev_b32 v%d, 16, v%d' % (vXW + m, vXW + m))
    E('v_lshlrev_b32 v%d, 16, v%d' % (vWW + m, vWW + m))
E('v_mul_f32 v%d, v%d, v%d' % (vT0, vXW, vWW))
for m in range(1, 4): E('v_fmac_f32 v%d, v%d, v%d' % (vT0, vXW + m, vWW + m))
lane_reduce(vT0, vT1)
rbf(vT0)
E('v_lshlrev_b32 v%d, 16, v%d' % (vSC, vSC))
E('v_lshlrev_b32 v%d, 16, v%d' % (vSC + 1, vSC + 1))
E('v_add_f32 v%d, v%d, v%d' % (vT0, vT0, vSC))
rbf(vT0)
for t in range(4):
    for d in range(2):
        E('v_lshlrev_b32 v%d, 16, v%d' % (vBf + 4 * t + 2 * d, vB1v + 2 * t + d))
        E('v_and_b32 v%d, 0xffff0000, v%d' % (vBf + 4 * t + 2 * d + 1, vB1v + 2 * t + d))
        E('v_lshlrev_b32 v%d, 16, v%d' % (vWf + 4 * t + 2 * d, vW2v + 2 * t + d))
        E('v_and_b32 v%d, 0xffff0000, v%d' % (vWf + 4 * t + 2 * d + 1, vW2v + 2 * t + d))
for r in range(8 * 4 * NST): E('v_mov_b32 v%d, 0' % (vRX + r))
E('s_mov_b32 s%d, 0' % sSPIN)
E('s_lshl_b32 s%d, 1, s%d' % (sMASK, sME))
E('s_lshl_b32 s%d, s%d, 3' % (sT1, sSELF))
FLDS = SCROFF + 1024
E('v_lshlrev_b32 v%d, 2, v%d' % (vT3, vL))
E('v_add_u32 v%d, 0x%x, v%d' % (vT3, FLDS, vT3))
E('v_mov_b32 v%d, 0' % vT2)
E('ds_write_b32 v%d, v%d' % (vT3, vT2))
E('s_mov_b32 m0, 0x%x' % FLDS)
E('s_waitcnt lgkmcnt(0)')
E('s_barrier')
L('L_rxloop')
if P['POLL'] == 'dma':
    E('s_cmp_lg_u32 s%d, 0' % sQ)
    E('s_cbranch_scc1 L_nopoll')
    E('s_not_b32 s%d, s%d' % (sT2, sMASK))
    E('s_and_b32 exec_lo, s%d, 0xff' % sT2)
    E('s_mov_b32 exec_hi, 0')
    E('buffer_load_dword v%d, %s, 0 offen sc1 lds' % (vFo, sr(R_WS)))
    E('s_mov_b64 exec, -1')
    L('L_nopoll')
if P['SLP']: E('s_sleep %d' % P['SLP'])
E('ds_read_b32 v%d, v%d' % (vT2, vT3))
E('s_add_u32 s%d, s%d, 1' % (sSPIN, sSPIN))
E('s_cmp_gt_u32 s%d, 0x20000' % sSPIN)
E('s_cbranch_scc1 L_rxdone')
E('s_waitcnt vmcnt(30) lgkmcnt(0)')
E('v_cmp_ne_u32 vcc, 0, v%d' % vT2)
E('s_nop 1')
E('s_andn2_b32 s%d, vcc_lo, s%d' % (sPREV, sMASK))
E('s_cbranch_scc0 L_rxloop')
E('s_or_b32 s%d, s%d, s%d' % (sMASK, sMASK, sPREV))
for s_ in range(8):
    E('s_bitcmp1_b32 s%d, %d' % (sPREV, s_))
    E('s_cbranch_scc0 L_rxs%d' % s_)
    E('s_add_u32 s%d, s%d, %d' % (sT2, sT1, s_))
    E('s_mul_i32 s%d, s%d, %d' % (sT2, sT2, PIECE))
    for j in range(NST):
        if F24:
            E('buffer_load_dwordx3 %s, v%d, %s, s%d offen offset:%d sc1' % (vr(vRX + (s_ * NST + j) * 4, 3), vXc, sr(R_WS), sT2, j * TB))
        else:
            E('buffer_load_dwordx4 %s, v%d, %s, s%d offen offset:%d %s' % (vr(vRX + (s_ * NST + j) * 4), vXc, sr(R_WS), sT2, j * 1024, P['LFL'].replace('+', ' ')))
    L('L_rxs%d' % s_)
E('s_cmp_lg_u32 s%d, 0xff' % sMASK)
E('s_cbranch_scc1 L_rxloop')
L('L_rxdone')
ts(4)
E('v_lshlrev_b32 v%d, 4, v%d' % (vT1, vL))
E('s_lshl_b32 s%d, s%d, 11' % (sT2, sQ))
E('v_add_u32 v%d, s%d, v%d' % (vT1, sT2, vT1))
for r in range(16): E('v_mov_b32 v%d, 0' % (vS + r))
E('s_cmp_eq_u32 s%d, 0' % sNH)
E('s_cbranch_scc0 L_own1')
for t in range(2): E('ds_read_b128 %s, v%d offset:%d' % (vr(vS + 4 * t), vT1, OWNOFF + t * 1024))
E('s_branch L_ownj')
L('L_own1')
for t in range(2): E('ds_read_b128 %s, v%d offset:%d' % (vr(vS + 8 + 4 * t), vT1, OWNOFF + t * 1024))
L('L_ownj')
if F24:
    E('s_mov_b32 s92, 0x0c04000c')
    E('s_mov_b32 s93, 0x0402010c')
E('s_waitcnt vmcnt(0) lgkmcnt(0)')
ts(5)
for s_ in range(8):
    o = vS + 8 * (s_ >> 2)
    if BF:
        b = vRX + s_ * 4
        for d in range(4):
            E('v_lshlrev_b32 v%d, 16, v%d' % (vT2, b + d))
            E('v_and_b32 v%d, 0xffff0000, v%d' % (vT3, b + d))
            E('v_pk_add_f32 %s, %s, %s' % (vr(o + 2 * d, 2), vr(o + 2 * d, 2), vr(vT2, 2)))
    else:
        b = vRX + s_ * 8
        if F24:
            for t in range(2):
                d = b + 4 * t
                E('v_perm_b32 v%d, v%d, v%d, s92' % (d + 3, d + 1, d))
                E('v_perm_b32 v%d, v%d, v%d, s93' % (d + 3, d + 2, d + 3))
        for r in range(0, 8, 2):
            E('v_pk_add_f32 %s, %s, %s' % (vr(o + r, 2), vr(o + r, 2), vr(b + r, 2)))
E('v_mov_b32 v%d, 0' % vT1)
E('v_mov_b32 v%d, 0' % vT3)
for r in range(0, 16, 2):
    a, b = vS + r, vS + r + 1
    E('v_cvt_pk_bf16_f32 v%d, v%d, v%d' % (vT2, a, b))
    E('v_lshlrev_b32 v%d, 16, v%d' % (a, vT2))
    E('v_and_b32 v%d, 0xffff0000, v%d' % (b, vT2))
    E('v_pk_add_f32 %s, %s, %s' % (vr(a, 2), vr(a, 2), vr(vBf + r, 2)))
    E('v_cvt_pk_bf16_f32 v%d, v%d, v%d' % (vT2, a, b))
    E('v_lshlrev_b32 v%d, 16, v%d' % (a, vT2))
    E('v_and_b32 v%d, 0xffff0000, v%d' % (b, vT2))
    E('v_cmp_lt_f32 vcc, 0, v%d' % a)
    E('v_cmp_lt_f32 s[92:93], 0, v%d' % b)
    E('s_nop 0')
    E('v_cndmask_b32 v10, 0, 1.0, vcc')
    E('v_cndmask_b32 v11, 0, 1.0, s[92:93]')
    E('v_mul_f32 v%d, v%d, v10' % (a, a))
    E('v_mul_f32 v%d, v%d, v11' % (b, b))
    E('v_fmac_f32 v%d, v%d, v%d' % (vT1, a, vWf + r))
    E('v_fmac_f32 v%d, v%d, v%d' % (vT3, b, vWf + r + 1))
E('v_add_f32 v%d, v%d, v%d' % (vT1, vT1, vT3))
lane_reduce(vT1, vT2)
E('v_and_b32 v%d, 15, v%d' % (vT2, vL))
E('v_lshlrev_b32 v%d, 4, v%d' % (vT2, vT2))
E('s_lshl_b32 s%d, s%d, 2' % (sT2, sQ))
E('v_add_u32 v%d, s%d, v%d' % (vT3, sT2, vT2))
E('s_mov_b64 exec, 0xffff')
E('ds_write_b32 v%d, v%d offset:%d' % (vT3, vT1, SCROFF))
E('s_waitcnt lgkmcnt(0)')
E('s_barrier')
E('s_cmp_lg_u32 s%d, 0' % sQ)
E('s_cbranch_scc1 L_end')
E('ds_read_b128 %s, v%d offset:%d' % (vr(vS), vT2, SCROFF))
E('s_waitcnt lgkmcnt(0)')
E('v_add_f32 v%d, v%d, v%d' % (vS, vS, vS + 1))
E('v_add_f32 v%d, v%d, v%d' % (vS + 2, vS + 2, vS + 3))
E('v_add_f32 v%d, v%d, v%d' % (vS, vS, vS + 2))
rbf(vS)
E('v_add_f32 v%d, v%d, v%d' % (vS, vS, vSC + 1))
rbf(vS)
E('v_add_f32 v%d, v%d, v%d' % (vS, vS, vT0))
rbf(vS)
E('v_mul_f32 v%d, 0xbfb8aa3b, v%d' % (vS, vS))
E('v_exp_f32 v%d, v%d' % (vS, vS)); E('s_nop 0')
E('v_add_f32 v%d, 1.0, v%d' % (vS, vS))
E('v_rcp_f32 v%d, v%d' % (vS, vS)); E('s_nop 0')
E('v_cvt_pk_bf16_f32 v%d, v%d, v%d' % (vS, vS, vS))
E('v_lshlrev_b32 v%d, 1, v%d' % (vT2, vL))
E('s_lshl_b32 s%d, s%d, 5' % (sT2, sSELF))
for _ in range(P['SL1']): E('s_sleep 127')
if P['LEAK']:
    if P['LEAK'] == 6: E('s_memrealtime s[74:75]')
    E('s_memrealtime s[76:77]')
    E('s_waitcnt lgkmcnt(0)')
    E('s_sub_u32 s78, s74, s72')
    if P['LEAK'] == 9: E('s_mov_b32 s78, 0')
    E('s_add_u32 s78, s78, s76')
    L('L_leak')
    E('s_sleep 4')
    E('s_memrealtime s[76:77]')
    E('s_waitcnt lgkmcnt(0)')
    E('s_sub_u32 s79, s76, s78')
    E('s_cmp_lt_i32 s79, 0')
    E('s_cbranch_scc1 L_leak')
E('buffer_store_short v%d, v%d, %s, s%d offen %s' % (vS, vT2, sr(R_T1), sT2, P['OFL']))
if TS:
    ts(6); ts_store(0)
E('s_endpgm')

L('L_compute')
INC[0] = True
INC2[0] = True
if P['CPF']:
    E('v_lshlrev_b32 v2, 6, v0')
    for rnd in range(2):
        E('v_cmp_gt_u32 vcc, 0x%x, v2' % (P['CPF'] * 1024 - rnd * 16384))
        E('s_and_saveexec_b64 s[94:95], vcc')
        E('s_cbranch_execz L_nocpf%d' % rnd)
        if rnd: E('v_add_u32 v2, 0x4000, v2')
        E('global_load_dword v%d, v2, s[92:93]' % (20 + rnd))
        L('L_nocpf%d' % rnd)
        E('s_mov_b64 exec, s[94:95]')
cXo, cT0, cT1, cT2, cONE = 2, 3, 4, 5, 6
cB = [[8, 9], [10, 11]]
cW = [12, 13]
cRDY = 14
cFO = 16
cFR = 20
cACC = 180
def acc(X, nt): return cACC + (X * 2 + nt) * 4
def frB(p, X, kk): return cFR + p * 80 + (kk * 8 + X) * 4
def frW(p, nt, kk): return cFR + p * 80 + 64 + (kk * 2 + nt) * 4
E('v_and_b32 v%d, 15, v%d' % (cT0, vL))
E('v_lshrrev_b32 v%d, 4, v%d' % (cT1, vL))
E('v_lshrrev_b32 v%d, 1, v%d' % (cT2, cT0))
E('v_xor_b32 v%d, v%d, v%d' % (cT2, cT2, cT1))
E('v_lshlrev_b32 v%d, 4, v%d' % (cT2, cT2))
E('v_lshl_add_u32 v%d, v%d, 7, v%d' % (cB[0][0], cT0, cT2))
E('v_add_u32 v%d, 0x%x, v%d' % (cB[0][0], ABASE, cB[0][0]))
E('v_xor_b32 v%d, 64, v%d' % (cB[0][1], cB[0][0]))
E('v_add_u32 v%d, 0x10000, v%d' % (cB[1][0], cB[0][0]))
E('v_add_u32 v%d, 0x10000, v%d' % (cB[1][1], cB[0][1]))
E('v_bfe_u32 v%d, v%d, 2, 2' % (cT0, vL))
E('v_and_b32 v%d, 1, v%d' % (cT2, cT1))
E('v_lshl_or_b32 v%d, v%d, 2, v%d' % (cT2, cT2, cT0))
E('v_lshl_add_u32 v%d, v%d, 3, v%d' % (cT0, cT1, cT0))
E('v_lshlrev_b32 v%d, 8, v%d' % (cT0, cT0))
E('v_and_b32 v%d, 3, v%d' % (cT1, vL))
E('v_lshl_add_u32 v%d, v%d, 3, v%d' % (cT0, cT1, cT0))
E('s_lshl_b32 s%d, s%d, 1' % (sT0, sQ))
for nt in range(2):
    E('s_add_u32 s%d, s%d, %d' % (sT1, sT0, nt))
    E('v_xor_b32 v%d, s%d, v%d' % (cT1, sT1, cT2))
    E('v_lshl_add_u32 v%d, v%d, 5, v%d' % (cW[nt], cT1, cT0))
E(('v_mul_u32_u24 v%d, 12, v%d' if F24 else 'v_lshlrev_b32 v%d, 4, v%d') % (cXo, vL))
E('s_mul_i32 s%d, s%d, %d' % (sT0, sQ, PIECE // 4))
E('v_add_u32 v%d, s%d, v%d' % (cXo, sT0, cXo))
E('v_mov_b32 v%d, 1' % cONE)
E('s_add_u32 s%d, s%d, 1' % (sT0, sME))
E('v_add_u32 v%d, s%d, v%d' % (cT0, sT0, vL))
E('v_and_b32 v%d, 7, v%d' % (cT0, cT0))
E('v_mul_u32_u24 v%d, %d, v%d' % (cT0, 9 * PIECE, cT0))
E('s_mul_i32 s%d, s%d, %d' % (sT0, sGRP, 8 * PIECE))
E('s_lshl_b32 s%d, s%d, 7' % (sT1, sME))
E('s_add_u32 s%d, s%d, s%d' % (sT0, sT0, sT1))
E('v_add_u32 v%d, s%d, v%d' % (cFO, sT0, cT0))
for r in range(64): E('v_mov_b32 v%d, 0' % (cACC + r))
E('s_waitcnt lgkmcnt(0)')
srd(R_WS, 26, WS_BYTES)
srd(R_T0, 24, 512)
assert RW <= 4
def reads(u):
    p = u & 1
    l = []
    for kk in range(2):
        for nt in range(2):
            for h in range(2):
                l.append('ds_read_b64_tr_b16 %s, v%d offset:%d' % (vr(frW(p, nt, kk) + 2 * h, 2), cW[nt], (u % RW) * 16384 + kk * 8192 + h * 1024))
        s = u % RA
        for X in range(8):
            l.append('ds_read_b128 %s, v%d offset:%d' % (vr(frB(p, X, kk)), cB[s // 4][kk], (s % 4) * 16384 + X * 2048))
    return l
def stores(X):
    E('s_add_u32 s%d, s%d, %d' % (sT3, sME, X + 1))
    E('s_and_b32 s%d, s%d, 7' % (sT3, sT3))
    E('s_add_u32 s%d, s%d, s%d' % (sT2, sT3, sGRP))
    E('s_lshl_b32 s%d, s%d, 3' % (sT2, sT2))
    E('s_add_u32 s%d, s%d, s%d' % (sT2, sT2, sME))
    E('s_mul_i32 s%d, s%d, %d' % (sT2, sT2, PIECE))
    if BF:
        a0, a1 = acc(X, 0), acc(X, 1)
        E('v_cvt_pk_bf16_f32 v%d, v%d, v%d' % (a0, a0, a0 + 1))
        E('v_cvt_pk_bf16_f32 v%d, v%d, v%d' % (a0 + 1, a0 + 2, a0 + 3))
        E('v_cvt_pk_bf16_f32 v%d, v%d, v%d' % (a0 + 2, a1, a1 + 1))
        E('v_cvt_pk_bf16_f32 v%d, v%d, v%d' % (a0 + 3, a1 + 2, a1 + 3))
        E('buffer_store_dwordx4 %s, v%d, %s, s%d offen %s' % (vr(a0), cXo, sr(R_WS), sT2, P['SFL'].replace('+', ' ')))
    elif F24:
        for nt in range(2):
            a = acc(X, nt)
            E('v_add_u32 v%d, 0x80, v%d' % (a + 3, a + 3))
            for r in range(3):
                E('v_perm_b32 v%d, v%d, v%d, s%d' % (a + r, a + r, a + 3, 92 + r))
            E('buffer_store_dwordx3 %s, v%d, %s, s%d offen offset:%d sc1' % (vr(a, 3), cXo, sr(R_WS), sT2, nt * TB))
    else:
        for nt in range(2):
            E('buffer_store_dwordx4 %s, v%d, %s, s%d offen offset:%d %s' % (vr(acc(X, nt)), cXo, sr(R_WS), sT2, nt * 1024, P['SFL'].replace('+', ' ')))
if F24:
    for r in range(3): E('s_mov_b32 s%d, 0x%08x' % (92 + r, 0x07060500 + r + 1))
est_done = [0]
if P['CPF']: E('s_waitcnt vmcnt(0)')
E('s_barrier')
ts(2)
for x in reads(0): E(x)
for u in range(NSTEP - 2 if P['MRG'] else NSTEP):
    p = u & 1
    E('; ---- step %d' % u)
    E('s_waitcnt lgkmcnt(0)')
    E('s_barrier')
    if u < NSTEP - 1:
        mf = ['v_mfma_f32_16x16x32_bf16 %s, %s, %s, %s' % (vr(acc(X, nt)), vr(frW(p, nt, kk)), vr(frB(p, X, kk)), vr(acc(X, nt)))
              for kk in range(2) for X in range(8) for nt in range(2)]
        if P['MORD']:
            mf = ['v_mfma_f32_16x16x32_bf16 %s, %s, %s, %s' % (vr(acc(X, nt)), vr(frW(p, nt, kk)), vr(frB(p, X, kk)), vr(acc(X, nt)))
                  for kk in range(2) for nt in range(2) for X in range(8)]
    else:
        mf = ['v_mfma_f32_16x16x32_bf16 %s, %s, %s, %s' % (vr(acc(X, nt)), vr(frW(p, nt, kk)), vr(frB(p, X, kk)), vr(acc(X, nt)))
              for X in range(8) for kk in range(2) for nt in range(2)]
    rd = reads(u + 1) if u + 1 < NSTEP else []
    if P['M32'] and u < NSTEP - 1:
        mf2 = []
        for kk in range(2):
            for X in range(8):
                a = cACC + (X % 4) * 16
                mf2.append('v_mfma_f32_32x32x16_bf16 %s, %s, %s, %s' % (vr(a, 16), vr(frW(p, X & 1, kk)), vr(frB(p, X, kk)), vr(a, 16)))
        for m, x in enumerate(mf2):
            E(x)
            for r in rd[2 * m:2 * m + 2]: E(r)
        mf = []
    for m, x in enumerate(mf):
        E(x)
        if m < len(rd): E(rd[m])
        if P['MNOP'] >= 0 and u < NSTEP - 1: E('s_nop %d' % P['MNOP'])
        if P['EST'] and u == NSTEP - 1 and m % 4 == 3 and m // 4 >= 2:
            stores(m // 4 - 2); est_done[0] += 1
    if u == NSTEP - 5:
        if P['DBG']:
            E('s_lshl_b32 s%d, s%d, 2' % (sT2, sMT))
            E('s_add_u32 s%d, s%d, 128' % (sT2, sT2))
            E('v_mov_b32 v%d, s%d' % (cT0, sT2))
        else:
            E('v_mov_b32 v%d, s%d' % (cT0, sGRP))
        if P['RDY1']:
            E('s_cmp_lg_u32 s%d, 0' % sQ)
            E('s_cbranch_scc1 L_nord1')
            E('s_mov_b64 exec, 1')
        E('buffer_load_dwordx2 %s, v%d, %s, 0 offen sc1' % (vr(cRDY, 2), cT0, sr(R_T0)))
        if P['RDY1']:
            E('s_mov_b64 exec, -1')
            L('L_nord1')
if P['MRG']:
    u = NSTEP - 2; p = u & 1; q_ = 1 - p; v = u + 1
    E('; ---- steps %d+%d merged' % (u, v))
    E('s_waitcnt lgkmcnt(0)')
    E('s_barrier')
    rdl = []
    for kk in range(2):
        for nt in range(2):
            for h in range(2):
                rdl.append(('W', 'ds_read_b64_tr_b16 %s, v%d offset:%d' % (vr(frW(q_, nt, kk) + 2 * h, 2), cW[nt], (v % RW) * 16384 + kk * 8192 + h * 1024)))
    sl = v % RA
    for X in range(8):
        for kk in range(2):
            rdl.append((X, 'ds_read_b128 %s, v%d offset:%d' % (vr(frB(q_, X, kk)), cB[sl // 4][kk], (sl % 4) * 16384 + X * 2048)))
    issued = []
    def mm(pp, X):
        return ['v_mfma_f32_16x16x32_bf16 %s, %s, %s, %s' % (vr(acc(X, nt)), vr(frW(pp, nt, kk)), vr(frB(pp, X, kk)), vr(acc(X, nt))) for kk in range(2) for nt in range(2)]
    def put(x, n=2):
        E(x)
        for _ in range(n):
            if len(issued) < len(rdl):
                t, ins = rdl[len(issued)]; issued.append(t); E(ins)
    for X in (0, 1):
        for x in mm(p, X): put(x)
    for X in range(8):
        while X not in issued or issued.count(X) < 2:
            t, ins = rdl[len(issued)]; issued.append(t); E(ins)
        last = max(i for i, t in enumerate(issued) if t == X)
        if X < 2:
            E('s_waitcnt lgkmcnt(%d)' % min(len(issued) - 1 - last, 15))
        elif X == 2:
            assert len(issued) == len(rdl)
            E('s_waitcnt lgkmcnt(0)')
            E('s_barrier')
        for x in mm(q_, X): put(x)
        if X + 2 < 8:
            for x in mm(p, X + 2): put(x)
        if X >= 1:
            stores(X - 1); est_done[0] += 1
ts(3)
INC[0] = False
E('s_mov_b32 s%d, 0' % sSPIN)
if F24:
    for r in range(3): E('s_mov_b32 s%d, 0x%08x' % (92 + r, 0x07060500 + r + 1))
if P['SL2']: E('s_sleep %d' % P['SL2'])
for X in range(est_done[0], 7):
    stores(X)
    if P['PACE'] and X < 6: E('s_sleep %d' % P['PACE'])
ts(4)
E('v_lshlrev_b32 v%d, 4, v%d' % (cT1, vL))
E('s_lshl_b32 s%d, s%d, 11' % (sT2, sQ))
E('v_add_u32 v%d, s%d, v%d' % (cT1, sT2, cT1))
for nt in range(2): E('ds_write_b128 v%d, %s offset:%d' % (cT1, vr(acc(7, nt)), OWNOFF + nt * 1024))
if P['RDY1']:
    E('s_cmp_lg_u32 s%d, 0' % sQ)
    E('s_cbranch_scc1 L_rdyok')
E('s_waitcnt vmcnt(%d)' % (7 * NST))
L('L_rdychk')
E('v_and_b32 v%d, v%d, v%d' % (cT1, cRDY, cRDY + (0 if P['DBG'] else 1)))
E('s_nop 0')
E('v_readfirstlane_b32 s%d, v%d' % (sT2, cT1))
E('s_cmp_eq_u32 s%d, %s' % (sT2, '0xff' if P['DBG'] else '0x01010101'))
E('s_cbranch_scc1 L_rdyok')
E('s_add_u32 s%d, s%d, 1' % (sSPIN, sSPIN))
E('s_cmp_gt_u32 s%d, 0x8000' % sSPIN)
E('s_cbranch_scc1 L_rdyok')
E('s_sleep 2')
E('buffer_load_dwordx2 %s, v%d, %s, 0 offen sc1' % (vr(cRDY, 2), cT0, sr(R_T0)))
E('s_waitcnt vmcnt(0)')
E('s_branch L_rdychk')
L('L_rdyok')
E('s_waitcnt vmcnt(0) lgkmcnt(0)')
ts(5)
E('s_barrier')
if P['POLL'] != 'dma':
    E('s_sub_u32 s%d, s%d, 1' % (sT0, sQ))
    E('s_cmp_ge_u32 s%d, %d' % (sT0, P['NPOLL']))
    E('s_cbranch_scc1 L_notpoller')
    if P['NPOLL'] > 1:
        E('s_cmp_eq_u32 s%d, 0' % sT0)
        E('s_cbranch_scc1 L_pst')
        E('s_sleep %d' % (20 // P['NPOLL']))
        E('s_cmp_eq_u32 s%d, 1' % sT0)
        E('s_cbranch_scc1 L_pst')
        E('s_sleep %d' % (20 // P['NPOLL']))
        L('L_pst')
    E('s_lshl_b32 s%d, s%d, 3' % (sT0, sSELF))
    E('s_add_u32 s%d, s%d, s%d' % (sT0, sT0, sME))
    E('s_mul_i32 s%d, s%d, %d' % (sT0, sT0, PIECE))
    E('v_lshlrev_b32 v%d, 7, v%d' % (cT0, vL))
    E('v_add_u32 v%d, s%d, v%d' % (cT0, sT0, cT0))
    E('v_lshlrev_b32 v%d, 2, v%d' % (cT1, vL))
    E('v_add_u32 v%d, 0x%x, v%d' % (cT1, SCROFF + 1024, cT1))
    E('s_lshl_b32 s%d, 1, s%d' % (sMASK, sME))
    E('s_mov_b32 exec_hi, 0')
    L('L_cpoll')
    E('s_andn2_b32 exec_lo, 0xff, s%d' % sMASK)
    if P['POLL'] == 'atom':
        E('v_mov_b32 v%d, 0' % cT2)
        E('buffer_atomic_or v%d, v%d, %s, 0 offen sc0 sc1' % (cT2, cT0, sr(R_WS)))
    else:
        E('buffer_load_dword v%d, v%d, %s, 0 offen sc1' % (cT2, cT0, sr(R_WS)))
    E('s_add_u32 s%d, s%d, 1' % (sSPIN, sSPIN))
    E('s_cmp_gt_u32 s%d, 0x20000' % sSPIN)
    E('s_cbranch_scc1 L_end')
    E('s_waitcnt vmcnt(0)')
    E('v_cmp_ne_u32 vcc, 0, v%d' % cT2)
    E('s_nop 1')
    E('s_mov_b32 exec_lo, vcc_lo')
    E('ds_write_b32 v%d, v%d' % (cT1, cT2))
    E('s_or_b32 s%d, s%d, vcc_lo' % (sMASK, sMASK))
    if P['PSL']: E('s_sleep %d' % P['PSL'])
    E('s_cmp_lg_u32 s%d, 0xff' % sMASK)
    E('s_cbranch_scc1 L_cpoll')
    E('s_endpgm')
    L('L_notpoller')
E('s_cmp_lg_u32 s%d, 0' % sQ)
E('s_cbranch_scc1 L_end')
E('s_mov_b64 exec, 0x7f')
E(('buffer_atomic_or v%d, v%d, %s, 0 offen sc1' if P['FAT'] else 'buffer_store_dword v%d, v%d, %s, 0 offen sc1') % (cONE, cFO, sr(R_WS)))
E('s_mov_b64 exec, -1')
if TS:
    ts(6)
    E('s_cmp_lg_u32 s%d, 0' % sQ)
    E('s_cbranch_scc1 L_end')
    ts_store(1)
L('L_end')
E('s_endpgm')
out += ['.section .rodata,"a"', '.p2align 6', '.amdhsa_kernel ' + KN, '  .amdhsa_next_free_vgpr 248', '  .amdhsa_next_free_sgpr 102',
        '  .amdhsa_accum_offset 248', '  .amdhsa_group_segment_fixed_size 0', '  .amdhsa_kernarg_size 96', '  .amdhsa_user_sgpr_count 2',
        '  .amdhsa_user_sgpr_kernarg_segment_ptr 1', '  .amdhsa_system_sgpr_workgroup_id_x 1', '  .amdhsa_float_denorm_mode_32 3', '.end_amdhsa_kernel']
open(sys.argv[1], 'w').write('\n'.join(out) + '\n')
print('lds', LDS_BYTES, 'lines', len(out))
```

```python
import sys, copy
P = dict(XFMT='f24', TS=0, RA=6, RW=4, PF=0, LPRIO=2, COOP=1, SLP=0, NOMF=0, NORD=0, ORD='AAWW', PH=0, Q=8, Q0=12, FG=2, IDXL=1, PFPOS=0, CPF=0, DBG=0, DELAY=0, SL0=0, SL1=0, LEAK=0, POLL='atom', PSL=0, FAT=0, SL2=0, PACE=0, SFL='sc1', LFL='sc1', RDY1=1, ROT=1, L1ST=1, NPOLL=1, MNOP=-1, MORD=0, EST=1, OTOUCH=0, OFL='sc1', M32=0, MRG=0, STG=1, MID=3, TRK=0, NODMA=0)
for a in sys.argv[2:]:
    k, v = a.split('=')
    P[k] = int(v) if v.lstrip('-').isdigit() else v
BF = P['XFMT'] == 'bf16'
TS = P['TS']
RA, RW = P['RA'], P['RW']
NSTEP = 25
WBASE = 0
ABASE = RW * 16384
LDS_BYTES = (RA + RW) * 16384
F24 = P['XFMT'] == 'f24'
NST = 1 if BF else 2
PIECE = 6144 if F24 else NST * 4096
TB = 768 if F24 else 1024
TSOFF = 56 << 20
WS_BYTES = 64 << 20
out = []
INC = [False]
INC2 = [False]
def E(s=''):
    if P['NOMF'] and s.startswith('v_mfma'): return
    if P['NORD'] and INC[0] and s.startswith('ds_read'): return
    if P['NODMA'] and s.endswith('offen lds') and ('s[28:31]' in s or 's[32:35]' in s) and len(out) > 420: return
    out.append('    ' + s)
def L(s): out.append(s + ':')
def vr(b, n=4): return 'v[%d:%d]' % (b, b + n - 1)
def sr(b, n=4): return 's[%d:%d]' % (b, b + n - 1)
R_TAB, R_W1, R_IDX, R_WS, R_T0, R_T1, R_T2 = 28, 32, 36, 40, 44, 48, 96
sW, sMT, sME, sQ, sLOFF, sWp, sWm, sT0, sT1, sT2, sT3, sSELF, sPREV, sMASK, sGRP, sSPIN, sNH, sFB, sKQ, sFLG = range(52, 72)
sTS = 72
sW0 = 94
def ts(i):
    if P['LEAK'] and not INC2[0] and i == P['LEAK']:
        E('s_memrealtime s[74:75]')
    if TS:
        E('s_memrealtime s[%d:%d]' % (sTS + 2 * i, sTS + 2 * i + 1))
        if i == 2: E('s_memtime s[88:89]')
        if i == 3: E('s_memtime s[90:91]')
def srd(r, p, nbytes):
    E('s_mov_b32 s%d, s%d' % (r, p))
    E('s_and_b32 s%d, s%d, 0xffff' % (r + 1, p + 1))
    E('s_mov_b32 s%d, 0x%x' % (r + 2, nbytes))
    E('s_mov_b32 s%d, 0x00020000' % (r + 3))
def ts_store(role):
    if P['DBG']:
        E('s_waitcnt lgkmcnt(0)')
        E('s_mov_b64 exec, 1')
        E('v_mov_b32 v2, 0')
        if role == 0:
            E('s_not_b32 s%d, s%d' % (sT2, sTS))
            E('v_mov_b32 v4, s%d' % sT2)
            E('buffer_atomic_umax v4, v2, %s, 0 offen offset:28 sc1' % sr(R_T0))
            E('v_mov_b32 v5, s%d' % (sTS + 12))
            E('buffer_atomic_umax v5, v2, %s, 0 offen offset:60 sc1' % sr(R_T0))
        E('s_cmp_lg_u32 s2, %d' % P['DBG'])
        E('s_cbranch_scc1 L_end')
        for i in range(7):
            if i == 0: E('s_mov_b32 s%d, s%d' % (sT2, sTS))
            else: E('s_sub_u32 s%d, s%d, s%d' % (sT2, sTS + 2 * i, sTS))
            E('v_mov_b32 v%d, s%d' % (6 + i, sT2))
            E('buffer_store_dword v%d, v2, %s, 0 offen offset:%d sc1' % (6 + i, sr(R_T0), role * 32 + 4 * i))
        return
    E('s_waitcnt lgkmcnt(0)')
    E('s_mov_b64 exec, 1')
    E('s_lshl_b32 s%d, s2, 7' % sT2)
    E('s_add_u32 s%d, s%d, 0x%x' % (sT2, sT2, TSOFF + role * 64))
    E('v_mov_b32 v2, 0')
    E('s_sub_u32 s86, s90, s88')
    E('s_subb_u32 s87, s91, s89')
    for i in range(8):
        E('v_mov_b32 v4, s%d' % (sTS + 2 * i))
        E('v_mov_b32 v5, s%d' % (sTS + 2 * i + 1))
        E('buffer_store_dwordx2 v[4:5], v2, %s, s%d offen offset:%d' % (sr(R_WS), sT2, 8 * i))
        E('s_nop 1')
hdr = open('standalone__deep_cross_wide_deep__recsys.s.ref').read().split('\n')
for line in hdr:
    if line.startswith('; @launch'):
        out.append('; @launch grid=(256,1,1) block=(512,1,1) lds=%d' % LDS_BYTES)
    elif line.startswith(';'):
        out.append(line)
    else:
        break
out.append('; generated v2-style v4: ' + ' '.join('%s=%s' % kv for kv in sorted(P.items())))
out.append('.amdgcn_target "amdgcn-amd-amdhsa--gfx950"')
out.append('.text')
KN = 'standalone__deep_cross_wide_deep__recsys_kernel'
out += ['.globl ' + KN, '.p2align 8', '.type %s,@function' % KN]
L(KN)
E('s_cmp_ge_u32 s2, 256')
E('s_cbranch_scc1 L_end')
E('s_load_dwordx16 s[4:19], s[0:1], 0')
E('s_load_dwordx8 s[20:27], s[0:1], 64')
if TS:
    for i in range(1, 8): E('s_mov_b64 s[%d:%d], 0' % (sTS + 2 * i, sTS + 2 * i + 1))
    E('s_mov_b64 s[88:89], 0'); E('s_mov_b64 s[90:91], 0')
ts(0)
vL = 1
if P['DELAY']:
    E('s_memrealtime s[92:93]')
    E('s_waitcnt lgkmcnt(0)')
    E('s_add_u32 s94, s92, %d' % P['DELAY'])
    L('L_dly')
    E('s_memrealtime s[92:93]')
    E('s_waitcnt lgkmcnt(0)')
    E('s_sub_u32 s95, s92, s94')
    E('s_cmp_lt_i32 s95, 0')
    E('s_cbranch_scc1 L_dly')
for _ in range(P['SL0']): E('s_sleep 127')
E('v_lshrrev_b32 v2, 6, v0')
E('v_and_b32 v%d, 63, v0' % vL)
E('v_readfirstlane_b32 s%d, v2' % sW)
E('s_lshr_b32 s%d, s2, 3' % sT0)
E('s_and_b32 s%d, s%d, 1' % (sNH, sT0))
E('s_lshr_b32 s%d, s%d, 1' % (sMT, sT0))
E('s_bfe_u32 s%d, s2, 0x10002' % sT1)
E('s_lshl_b32 s%d, s%d, 4' % (sT1, sT1))
E('s_add_u32 s%d, s%d, s%d' % (sMT, sMT, sT1))
E('s_and_b32 s%d, s2, 3' % sKQ)
E('s_lshl_b32 s%d, s%d, 2' % (sME, sNH))
E('s_add_u32 s%d, s%d, s%d' % (sME, sME, sKQ))
E('s_lshl_b32 s%d, s%d, 3' % (sGRP, sMT))
E('s_add_u32 s%d, s%d, s%d' % (sSELF, sGRP, sME))
E('s_and_b32 s%d, s%d, 3' % (sQ, sW))
if P['CPF']: E('s_getpc_b64 s[92:93]')
E('s_cmp_lt_u32 s%d, 4' % sW)
E('s_cbranch_scc1 L_compute')
def wslot(u): return WBASE + (u % RW) * 16384
def aslot(c): return ABASE + (c % RA) * 16384
OWNOFF, SCROFF = 0, 16384
def need_at(b):
    u = b + 1
    return [('W', u), ('A', u)] if u < NSTEP else []

vT0, vT1, vT2, vT3 = 2, 3, 4, 5
vWd = [6, 7, 8, 9]
vIDX = [12 + 28 * i for i in range(4)]
vB1v, vW2v, vXW, vWW, vSC, vFo, vXc, vONE = 124, 132, 140, 144, 148, 150, 151, 152
vS = 156
vRX = 176
vBf, vWf = 12, 28
vmq = []
def vm(t): vmq.append(t)
def wait_for(tags, cnt):
    last = -1
    for t in tags:
        if isinstance(t, tuple): assert vmq.count(t) == cnt, ('needed DMA not issued', t, vmq.count(t))
    for i, t in enumerate(vmq):
        if t in tags: last = i
    return min(len(vmq) - 1 - last, 63)
if P['LPRIO']: E('s_setprio %d' % P['LPRIO'])
if P['LEAK']: E('s_memrealtime s[72:73]')
E('s_mul_i32 s%d, s%d, 25' % (sFB, sKQ))
E('s_lshl_b32 s%d, s%d, 15' % (sW0, sFB))
E('s_lshl_b32 s%d, s%d, 16' % (sT0, sNH))
if not P['COOP']: E('s_mov_b32 s%d, 0' % sT0)
E('s_add_u32 s%d, s%d, s%d' % (sWp, sW0, sT0))
E('s_sub_u32 s%d, s%d, s%d' % (sWm, sW0, sT0))
E('s_lshl_b32 s%d, s%d, 2' % (sFB, sFB))
E('s_lshl_b32 s%d, s%d, 12' % (sLOFF, sQ))
if P['ROT']:
    E('s_mul_i32 s100, s%d, 43' % sMT)
    E('s_lshr_b32 s100, s100, 8')
    E('s_mul_i32 s100, s100, 6')
    E('s_sub_u32 s100, s%d, s100' % sMT)
    E('s_lshl_b32 s100, s100, 17')
E('v_lshrrev_b32 v%d, 3, v%d' % (vT2, vL))
for j in range(2):
    E('s_lshl_b32 s%d, s%d, 1' % (sT0, sQ))
    E('s_add_u32 s%d, s%d, s%d' % (sT0, sT0, sME))
    E('s_add_u32 s%d, s%d, %d' % (sT0, sT0, 1 + j))
    E('s_and_b32 s%d, s%d, 7' % (sT0, sT0))
    E('s_add_u32 s%d, s%d, s%d' % (sT0, sT0, sGRP))
    E('s_lshl_b32 s%d, s%d, 4' % (sT0, sT0))
    E('v_add_u32 v%d, s%d, v%d' % (vT0 + j, sT0, vT2))
    E('v_mul_u32_u24 v%d, 400, v%d' % (vT0 + j, vT0 + j))
if P['IDXL']:
    E('v_and_b32 v10, 7, v%d' % vL)
    for j in range(2): E('v_lshl_add_u32 v%d, v10, 4, v%d' % (vT0 + j, vT0 + j))
    E('v_add_u32 v%d, 3200, v%d' % (vS, vT0))
    E('v_add_u32 v%d, 3200, v%d' % (vS + 1, vT1))
E('v_lshrrev_b32 v%d, 4, v%d' % (vT2, vL))
E('v_lshlrev_b32 v%d, 1, v%d' % (vT3, vT2))
E('v_and_b32 v10, 15, v%d' % vL)
E('v_xor_b32 v%d, v%d, v10' % (vT3, vT3))
E('v_lshlrev_b32 v%d, 9, v%d' % (vT2, vT2))
E('s_lshl_b32 s%d, s%d, 13' % (sT0, sQ))
E('s_lshl_b32 s%d, s%d, 8' % (sT1, sNH))
E('s_add_u32 s%d, s%d, s%d' % (sT0, sT0, sT1))
E('v_add_u32 v%d, s%d, v%d' % (vT2, sT0, vT2))
E('v_lshl_add_u32 v%d, v%d, 4, v%d' % (vWd[0], vT3, vT2))
E('v_add_u32 v%d, 2048, v%d' % (vWd[1], vWd[0]))
E('v_xor_b32 v%d, 8, v%d' % (vT3, vT3))
E('v_lshl_add_u32 v%d, v%d, 4, v%d' % (vWd[2], vT3, vT2))
E('v_add_u32 v%d, 4096, v%d' % (vWd[2], vWd[2]))
E('v_add_u32 v%d, 2048, v%d' % (vWd[3], vWd[2]))
E('s_waitcnt lgkmcnt(0)')
srd(R_IDX, 4, 4096 * 400)
srd(R_W1, 14, 6400 * 512)
IDXL_OFF = aslot(RA - 1)
if P['IDXL']:
    for i in range(4):
        E('s_add_u32 m0, s%d, 0x%x' % (sLOFF, IDXL_OFF + i * 1024))
        E('s_nop 0')
        E('buffer_load_dwordx4 v%d, %s, s%d offen lds' % ([vT0, vS, vT1, vS + 1][i], sr(R_IDX), sFB)); vm('idx0')
else:
    for c in range(7):
        for i in range(4):
            if c < 6:
                E('buffer_load_dwordx4 %s, v%d, %s, s%d offen offset:%d' % (vr(vIDX[i] + 4 * c), vT0 + (i >> 1), sr(R_IDX), sFB, (i & 1) * 3200 + c * 16))
            else:
                E('buffer_load_dword v%d, v%d, %s, s%d offen offset:%d' % (vIDX[i] + 24, vT0 + (i >> 1), sr(R_IDX), sFB, (i & 1) * 3200 + 96))
            vm('idx0' if c == 0 else 'idx')
CUR = dict(seq=None)
def mkseq(v, nh):
    rounds = [2] * 6 if (v & 1) == 0 else [1] + [2] * 5 + [1]
    at = 0 if (v & 2) == 0 else P['MID']
    seq = []; grp = []
    p = 0
    for ri, g in enumerate(rounds):
        if ri == at:
            grp.append([len(seq)]); seq.append(24)
        a = list(range(p, p + g)); b = list(range(p + g, p + 2 * g)); p += 2 * g
        own, oth = (a, b) if nh == 0 else (b, a)
        for part in (own, oth):
            grp.append(list(range(len(seq), len(seq) + g))); seq += part
    return seq, grp
def pos(t):
    if P['STG']: return CUR['seq'][t]
    if not P['L1ST']: return t
    return 24 if t == 0 else t - 1
def dmaW(t, i):
    u = pos(t)
    if i == 0:
        base = sW0 if (u == 24 or P['STG']) else (sWp if ((u >> 1) & 1) == 0 else sWm)
        if P['ROT'] and u < 24:
            r = u >> 2
            E('s_add_u32 s%d, s100, 0x%x' % (sT3, r * 131072))
            E('s_sub_u32 s101, s%d, 0x%x' % (sT3, 6 * 131072))
            E('s_cselect_b32 s%d, s%d, s101' % (sT3, sT3))
            E('s_add_u32 s%d, s%d, s%d' % (sT3, sT3, base))
            if u & 3: E('s_add_u32 s%d, s%d, 0x%x' % (sT3, sT3, (u & 3) * 32768))
        else:
            E('s_add_u32 s%d, s%d, 0x%x' % (sT3, base, u * 32768))
    E('s_add_u32 m0, s%d, 0x%x' % (sLOFF, wslot(t) + i * 1024))
    E('s_nop 0')
    E('buffer_load_dwordx4 v%d, %s, s%d offen lds' % (vWd[i], sr(R_W1), sT3)); vm(('W', t))
def dmaA(c, i):
    E('s_add_u32 m0, s%d, 0x%x' % (sLOFF, aslot(c) + i * 1024))
    E('s_nop 0')
    E('buffer_load_dwordx4 v%d, %s, 0 offen lds' % (vIDX[i] + pos(c), sr(R_TAB))); vm(('A', c))
def chunk(k, c):
    for i in range(4): (dmaW if k == 'W' else dmaA)(c, i)
if P['STG']: CUR['seq'] = [24]
if P['STG'] == 3:
    E('s_bitcmp1_b32 s%d, 0' % sMT)
    E('s_cselect_b32 s%d, 15, 16' % sT0)
    E('s_lshl_b32 s%d, s%d, s%d' % (sT0, sNH, sT0))
    E('s_add_u32 s%d, s%d, s100' % (sT0, sT0))
    E('s_bitcmp1_b32 s%d, 1' % sMT)
    E('s_cselect_b32 s%d, s%d, 0x%x' % (sT3, sT0, 24 * 32768))
    E('s_add_u32 s%d, s%d, s%d' % (sT3, sT3, sW0))
    for i in range(4):
        E('s_add_u32 m0, s%d, 0x%x' % (sLOFF, wslot(0) + i * 1024))
        E('s_nop 0')
        E('buffer_load_dwordx4 v%d, %s, s%d offen lds' % (vWd[i], sr(R_W1), sT3)); vm(('W', 0))
else:
    chunk('W', 0)
def wpf():
    if not P['PF']: return
    if P['PF'] == 2:
        E('v_lshlrev_b32 v%d, 4, v%d' % (vT2, vL))
        E('s_lshr_b32 s%d, s2, 3' % sT0)
        E('s_lshl_b32 s%d, s%d, 10' % (sT0, sT0))
        E('s_lshl_b32 s%d, s%d, 8' % (sT1, sQ))
        E('s_add_u32 s%d, s%d, s%d' % (sT0, sT0, sT1))
        E('s_add_u32 s%d, s%d, s%d' % (sT0, sT0, sW0))
        E('s_add_u32 s%d, s%d, 0x%x' % (sT0, sT0, 24 * 32768))
        E('s_mov_b64 exec, 0xffff')
        E('buffer_load_dwordx4 %s, v%d, %s, s%d offen' % (vr(vRX), vT2, sr(R_W1), sT0)); vm('pf')
        E('s_mov_b64 exec, -1')
        return
    E('v_lshlrev_b32 v%d, 4, v%d' % (vT2, vL))
    E('s_lshl_b32 s%d, s%d, 10' % (sT0, sQ))
    E('v_add_u32 v%d, s%d, v%d' % (vT2, sT0, vT2))
    E('s_lshr_b32 s%d, s2, 3' % sT0)
    E('s_mul_i32 s%d, s%d, 25600' % (sT0, sT0))
    E('s_add_u32 s%d, s%d, s%d' % (sT0, sT0, sW0))
    for j in range(7):
        if j == 6:
            E('v_cmp_gt_u32 vcc, 1024, v%d' % vT2)
            E('v_mov_b32 v%d, 0x40000000' % (vS + 2))
            E('s_nop 0')
            E('v_cndmask_b32 v%d, v%d, v%d, vcc' % (vT2, vS + 2, vT2))
        E('buffer_load_dwordx4 %s, v%d, %s, s%d offen' % (vr(vRX + 4 * j), vT2, sr(R_W1), sT0)); vm('pf')
        if j < 6: E('s_add_u32 s%d, s%d, 4096' % (sT0, sT0))
if P['PFPOS'] == 0: wpf()
srd(R_TAB, 6, 100000 * 128)
srd(R_WS, 26, WS_BYTES)
srd(R_T0, 24, 512)
srd(R_T1, 22, 16384)
E('s_lshl_b32 s%d, s%d, 3' % (sFLG, sSELF))
E('s_add_u32 s%d, s%d, s%d' % (sFLG, sFLG, sME))
E('s_mul_i32 s%d, s%d, %d' % (sFLG, sFLG, PIECE))
E('s_lshl_b32 s%d, s%d, 8' % (sT0, sQ))
E('s_add_u32 s%d, s%d, s%d' % (sT0, sT0, sFLG))
E('v_mov_b32 v%d, 0' % vT2)
E('v_lshlrev_b32 v%d, 7, v%d' % (vT3, vL))
E('s_mov_b64 exec, 3')
E('buffer_store_dword v%d, v%d, %s, s%d offen sc1' % (vT2, vT3, sr(R_WS), sT0)); vm('clr')
E('s_mov_b64 exec, -1')
E('v_and_b32 v%d, 7, v%d' % (vFo, vL))
E('v_lshlrev_b32 v%d, 7, v%d' % (vFo, vFo))
E('v_add_u32 v%d, s%d, v%d' % (vFo, sFLG, vFo))
E(('v_mul_u32_u24 v%d, 12, v%d' if F24 else 'v_lshlrev_b32 v%d, 4, v%d') % (vXc, vL))
E('s_mul_i32 s%d, s%d, %d' % (sT0, sQ, PIECE // 4))
E('v_add_u32 v%d, s%d, v%d' % (vXc, sT0, vXc))
E('v_mov_b32 v%d, 1' % vONE)
E('v_lshrrev_b32 v10, 4, v%d' % vL)
E('v_and_b32 v11, 7, v%d' % vL)
E('v_xor_b32 v10, v10, v11')
E('v_lshlrev_b32 v10, 4, v10')
E('v_xor_b32 v11, 64, v10')
def conv(cs, tag):
    if P['COOP'] and not P['STG']:
        E('s_cmp_eq_u32 s%d, 0' % sNH)
        E('s_cbranch_scc1 L_nosw%s' % tag)
        for i in range(4):
            for c in cs:
                if c % 4 < 2 and c < 24:
                    E('v_swap_b32 v%d, v%d' % (vIDX[i] + c, vIDX[i] + c + 2))
        L('L_nosw%s' % tag)
    for c in cs:
        for i in range(4):
            E('v_lshl_or_b32 v%d, v%d, 7, v%d' % (vIDX[i] + c, vIDX[i] + c, 10 + (i & 1)))
E('s_waitcnt vmcnt(%d)' % wait_for(['idx0'], 0))
ts(1)
if P['IDXL']:
    E('v_lshrrev_b32 v%d, 3, v%d' % (vT2, vL))
    E('v_lshlrev_b32 v%d, 7, v%d' % (vT2, vT2))
    E('v_add_u32 v%d, s%d, v%d' % (vT2, sLOFF, vT2))
    E('v_add_u32 v%d, 0x%x, v%d' % (vT2, IDXL_OFF, vT2))
    corder = [6, 0, 1, 2, 3, 4, 5] if P['L1ST'] else list(range(7))
    for ci, c in enumerate(corder):
        if P['ROT'] and c < 6:
            E('s_lshr_b32 s%d, s100, 13' % sT0)
            E('s_add_u32 s%d, s%d, %d' % (sT0, sT0, c * 16))
            E('s_sub_u32 s101, s%d, 96' % sT0)
            E('s_cselect_b32 s%d, s%d, s101' % (sT0, sT0))
            E('v_add_u32 v%d, s%d, v%d' % (vT3, sT0, vT2))
        for i in range(4):
            if c < 6 and P['ROT']: E('ds_read_b128 %s, v%d offset:%d' % (vr(vIDX[i] + 4 * c), vT3, i * 1024))
            elif c < 6: E('ds_read_b128 %s, v%d offset:%d' % (vr(vIDX[i] + 4 * c), vT2, i * 1024 + c * 16))
            else: E('ds_read_b32 v%d, v%d offset:%d' % (vIDX[i] + 24, vT2, i * 1024 + 96))
        if c == 0:
            E('s_waitcnt lgkmcnt(0)')
            conv(([24] if P['L1ST'] else []) + list(range(4)), 'a')
            if P['STG'] != 3: chunk('A', 0)
    if not P['STG']:
        chunk('A', 1)
        if P['L1ST']: chunk('A', 2)
    if P['STG'] != 3:
        E('s_waitcnt lgkmcnt(0)')
        conv(range(4, 24 if P['L1ST'] else 25), 'b')
else:
    conv(range(4), 'a')
    chunk('A', 0); chunk('A', 1)
    E('s_waitcnt vmcnt(%d)' % wait_for(['idx'], 0))
    conv(range(4, 25), 'b')
if P['PFPOS'] == 1: wpf()
def earliest(k, ch):
    R = RW if k == 'W' else RA
    return -1 if ch < R else ch - R
order = []
if P['L1ST']:
    order = [('W', 1), ('W', 2)]
    for p in range(1, 12):
        order += [('A', 2 * p + 1), ('A', 2 * p + 2), ('W', 2 * p + 1), ('W', 2 * p + 2)]
elif P['ORD'] == 'AAWW':
    order = [('W', 1)]
    for p in range(1, 13):
        order += [('A', c) for c in (2 * p, 2 * p + 1) if c < 25] + [('W', c) for c in (2 * p, 2 * p + 1) if c < 25]
elif P['ORD'] == 'A2':
    order = [('W', 1), ('A', 2), ('A', 3)]
    for p in range(1, 13):
        order += [('A', c) for c in (2 * p + 2, 2 * p + 3) if c < 25] + [('W', c) for c in (2 * p, 2 * p + 1) if c < 25]
else:
    order = [('W', 1)]
    for c in range(2, 25): order += [('A', c), ('W', c)]
pend = list(order)
def loader_loop(var):
    for b in range(-1, NSTEP):
        nd = need_at(b)
        while any(vmq.count(t) < 4 for t in nd):
            d = pend[0]
            if earliest(*d) > b - 1:
                d = [x for x in pend if x in nd][0]
                assert earliest(*d) <= b - 1
            pend.remove(d); chunk(*d)
        if nd: E('s_waitcnt vmcnt(%d)' % wait_for(nd, 4))
        E('s_barrier')
        if b == -1: ts(2)
        q = (P['Q0'] if b < 4 else P['Q']) // 4
        n = 0
        while pend and n < q:
            d = pend[0]
            if earliest(*d) > b: break
            if P['STG']:
                if d[0] == 'A' and len(pend) > 1 and pend[1][0] == 'A' and earliest(*pend[1]) > b: break
            elif d[0] == 'A' and len(pend) > 1 and pend[1][0] == 'A' and d[1] % 2 == P['L1ST'] and earliest(*pend[1]) > b: break
            pend.pop(0); chunk(*d); n += 1
        if b == 2:
            E('s_cmp_lg_u32 s%d, 0' % sQ)
            E('s_cbranch_scc1 L_nordy%d' % var)
            if P['DBG']:
                E('s_lshl_b32 s%d, s%d, 2' % (sT2, sMT))
                E('s_add_u32 s%d, s%d, 128' % (sT2, sT2))
                E('v_mov_b32 v%d, s%d' % (vT0, sT2))
                E('s_lshl_b32 s%d, 1, s%d' % (sT2, sME))
                E('v_mov_b32 v%d, s%d' % (vT1, sT2))
                E('s_mov_b64 exec, 1')
                E('buffer_atomic_or v%d, v%d, %s, 0 offen sc1' % (vT1, vT0, sr(R_T0)))
            else:
                E('v_mov_b32 v%d, s%d' % (vT0, sSELF))
                E('s_mov_b64 exec, 1')
                E('buffer_store_byte v%d, v%d, %s, 0 offen sc1' % (vONE, vT0, sr(R_T0)))
            E('s_mov_b64 exec, -1')
            L('L_nordy%d' % var)
        if b == NSTEP - 4: small_loads()
def loader_loop_trk(var, grp):
    lst = []
    rounds = [(grp[i], grp[i + 1]) for i in range(1, len(grp), 2)]
    for ri, (own, oth) in enumerate(rounds):
        H = []
        for t in own: H += [('W', t, i) for i in range(4)]
        for t in oth: H += [('A', t, i) for i in range(4)] + [('W', t, i) for i in range(4)]
        M = []
        if ri + 1 < len(rounds):
            for t in rounds[ri + 1][0]: M += [('A', t, i) for i in range(4)]
        step = max(1, len(H) // max(1, len(M))) if M else 0
        mi = 0
        for k, h in enumerate(H):
            lst.append(h)
            if M and (k % step) == step - 1 and mi < len(M):
                lst.append(M[mi]); mi += 1
        lst += M[mi:]
    def iss(d): (dmaW if d[0] == 'W' else dmaA)(d[1], d[2])
    for b in range(-1, NSTEP):
        nd = need_at(b)
        while any(vmq.count(t) < 4 for t in nd):
            c = [x for x in lst if earliest(x[0], x[1]) <= b - 1]
            d = c[0]; lst.remove(d); iss(d)
        if nd: E('s_waitcnt vmcnt(%d)' % wait_for(nd, 4))
        E('s_barrier')
        if b == -1: ts(2)
        q = P['Q0'] if b < 4 else P['Q']
        n = 0; i = 0
        while i < len(lst) and n < q:
            d = lst[i]
            if earliest(d[0], d[1]) <= b:
                lst.pop(i); iss(d); n += 1
            else:
                if d[0] == 'W' or P['TRK'] == 2: break
                i += 1
        if b == 2:
            E('s_cmp_lg_u32 s%d, 0' % sQ)
            E('s_cbranch_scc1 L_nordy%d' % var)
            E('v_mov_b32 v%d, s%d' % (vT0, sSELF))
            E('s_mov_b64 exec, 1')
            E('buffer_store_byte v%d, v%d, %s, 0 offen sc1' % (vONE, vT0, sr(R_T0)))
            E('s_mov_b64 exec, -1')
            L('L_nordy%d' % var)
        if b == NSTEP - 4: small_loads()
    assert not lst, lst
def small_loads():
    srd(R_IDX, 16, 512); srd(R_T2, 18, 512)
    E('s_lshl_b32 s%d, s%d, 6' % (sT0, sQ))
    E('v_lshrrev_b32 v%d, 4, v%d' % (vT0, vL))
    E('v_lshlrev_b32 v%d, 3, v%d' % (vT0, vT0))
    for t in range(4):
        off = 256 * (t >> 1) + 32 * (t & 1)
        E('buffer_load_dwordx2 %s, v%d, %s, s%d offen offset:%d' % (vr(vB1v + 2 * t, 2), vT0, sr(R_IDX), sT0, off)); vm('ep')
        E('buffer_load_dwordx2 %s, v%d, %s, s%d offen offset:%d' % (vr(vW2v + 2 * t, 2), vT0, sr(R_T2), sT0, off)); vm('ep')
    E('s_nop 0')
    srd(R_IDX, 8, 4096 * 26 + 64); srd(R_T2, 10, 64)
    E('v_and_b32 v%d, 15, v%d' % (vT1, vL))
    E('s_lshl_b32 s%d, s%d, 4' % (sT0, sSELF))
    E('v_add_u32 v%d, s%d, v%d' % (vT1, sT0, vT1))
    E('v_mul_u32_u24 v%d, 26, v%d' % (vT1, vT1))
    E('v_lshrrev_b32 v%d, 2, v%d' % (vT0, vT0))
    E('v_add_u32 v%d, v%d, v%d' % (vT1, vT1, vT0))
    for m in range(4):
        if m == 3:
            E('v_mov_b32 v%d, 0' % (vXW + 3)); E('v_mov_b32 v%d, 0' % (vWW + 3))
            E('s_mov_b64 exec, 0xffff')
        E('buffer_load_ushort v%d, v%d, %s, 0 offen offset:%d' % (vXW + m, vT1, sr(R_IDX), 8 * m)); vm('ep')
        E('buffer_load_ushort v%d, v%d, %s, 0 offen offset:%d' % (vWW + m, vT0, sr(R_T2), 8 * m)); vm('ep')
    E('s_mov_b64 exec, -1')
    E('s_nop 0')
    srd(R_IDX, 12, 64); srd(R_T2, 20, 64)
    E('v_mov_b32 v%d, 0' % vT2)
    E('buffer_load_ushort v%d, v%d, %s, 0 offen' % (vSC, vT2, sr(R_IDX))); vm('ep')
    E('buffer_load_ushort v%d, v%d, %s, 0 offen' % (vSC + 1, vT2, sr(R_T2))); vm('ep')
    if P['OTOUCH']:
        E('s_lshl_b32 s%d, s%d, 5' % (sT0, sSELF))
        E('s_mov_b64 exec, 1')
        E('buffer_load_ushort v%d, v%d, %s, s%d offen sc1' % (vS + 3, vT2, sr(R_T1), sT0)); vm('ep')
        E('s_mov_b64 exec, -1')
if P['STG']:
    sv = list(vmq)
    NV = 8 if P['STG'] == 3 else 4
    E('s_and_b32 s%d, s%d, %d' % (sT0, sMT, NV // 2 - 1))
    E('s_lshl_b32 s%d, s%d, 1' % (sT0, sT0))
    E('s_or_b32 s%d, s%d, s%d' % (sT0, sT0, sNH))
    for var in range(1, NV):
        E('s_cmp_eq_u32 s%d, %d' % (sT0, var))
        E('s_cbranch_scc1 L_var%d' % var)
    for var in range(NV):
        L('L_var%d' % var)
        seq, grp = mkseq((var >> 1) if P['STG'] != 2 else 0, var & 1)
        CUR['seq'] = seq; CUR['grp'] = grp
        vmq[:] = sv
        pend[:] = []
        for gi, g in enumerate(grp):
            pend.extend([('A', t) for t in g]); pend.extend([('W', t) for t in g])
        pend.remove(('W', 0))
        first = grp[0] + (grp[1] if seq[0] == 24 else [])
        for t in first:
            pend.remove(('A', t))
            if t > 0 or P['STG'] == 3: chunk('A', t)
        if P['STG'] == 3:
            E('s_waitcnt lgkmcnt(0)')
            conv(range(4, 24), 'b%d' % var)
        if P['TRK']:
            pend[:] = []
            loader_loop_trk(var, grp)
        else:
            loader_loop(var)
        assert not pend, pend
        if var < NV - 1: E('s_branch L_varj')
    L('L_varj')
else:
    loader_loop(0)
    assert not pend, pend
ts(3)
def lane_reduce(v, tmp):
    E('v_mov_b32 v%d, v%d' % (tmp, v)); E('s_nop 1')
    E('v_permlane32_swap_b32 v%d, v%d' % (v, tmp)); E('s_nop 1')
    E('v_add_f32 v%d, v%d, v%d' % (v, v, tmp))
    E('v_mov_b32 v%d, v%d' % (tmp, v)); E('s_nop 1')
    E('v_permlane16_swap_b32 v%d, v%d' % (v, tmp)); E('s_nop 1')
    E('v_add_f32 v%d, v%d, v%d' % (v, v, tmp))
def rbf(v):
    E('v_cvt_pk_bf16_f32 v%d, v%d, v%d' % (v, v, v))
    E('v_lshlrev_b32 v%d, 16, v%d' % (v, v))
E('s_waitcnt vmcnt(0)')
for m in range(4):
    E('v_lshlrev_b32 v%d, 16, v%d' % (vXW + m, vXW + m))
    E('v_lshlrev_b32 v%d, 16, v%d' % (vWW + m, vWW + m))
E('v_mul_f32 v%d, v%d, v%d' % (vT0, vXW, vWW))
for m in range(1, 4): E('v_fmac_f32 v%d, v%d, v%d' % (vT0, vXW + m, vWW + m))
lane_reduce(vT0, vT1)
rbf(vT0)
E('v_lshlrev_b32 v%d, 16, v%d' % (vSC, vSC))
E('v_lshlrev_b32 v%d, 16, v%d' % (vSC + 1, vSC + 1))
E('v_add_f32 v%d, v%d, v%d' % (vT0, vT0, vSC))
rbf(vT0)
for t in range(4):
    for d in range(2):
        E('v_lshlrev_b32 v%d, 16, v%d' % (vBf + 4 * t + 2 * d, vB1v + 2 * t + d))
        E('v_and_b32 v%d, 0xffff0000, v%d' % (vBf + 4 * t + 2 * d + 1, vB1v + 2 * t + d))
        E('v_lshlrev_b32 v%d, 16, v%d' % (vWf + 4 * t + 2 * d, vW2v + 2 * t + d))
        E('v_and_b32 v%d, 0xffff0000, v%d' % (vWf + 4 * t + 2 * d + 1, vW2v + 2 * t + d))
for r in range(8 * 4 * NST): E('v_mov_b32 v%d, 0' % (vRX + r))
E('s_mov_b32 s%d, 0' % sSPIN)
E('s_lshl_b32 s%d, 1, s%d' % (sMASK, sME))
E('s_lshl_b32 s%d, s%d, 3' % (sT1, sSELF))
FLDS = SCROFF + 1024
E('v_lshlrev_b32 v%d, 2, v%d' % (vT3, vL))
E('v_add_u32 v%d, 0x%x, v%d' % (vT3, FLDS, vT3))
E('v_mov_b32 v%d, 0' % vT2)
E('ds_write_b32 v%d, v%d' % (vT3, vT2))
E('s_mov_b32 m0, 0x%x' % FLDS)
E('s_waitcnt lgkmcnt(0)')
E('s_barrier')
E('v_lshlrev_b32 v%d, 4, v%d' % (vT1, vL))
E('s_lshl_b32 s%d, s%d, 11' % (sT2, sQ))
E('v_add_u32 v%d, s%d, v%d' % (vT1, sT2, vT1))
for r in range(16): E('v_mov_b32 v%d, 0' % (vS + r))
E('s_cmp_eq_u32 s%d, 0' % sNH)
E('s_cbranch_scc0 L_own1')
for t in range(2): E('ds_read_b128 %s, v%d offset:%d' % (vr(vS + 4 * t), vT1, OWNOFF + t * 1024))
E('s_branch L_ownj')
L('L_own1')
for t in range(2): E('ds_read_b128 %s, v%d offset:%d' % (vr(vS + 8 + 4 * t), vT1, OWNOFF + t * 1024))
L('L_ownj')
if F24:
    E('s_mov_b32 s92, 0x0c04000c')
    E('s_mov_b32 s93, 0x0402010c')
L('L_rxloop')
if P['POLL'] == 'dma':
    E('s_cmp_lg_u32 s%d, 0' % sQ)
    E('s_cbranch_scc1 L_nopoll')
    E('s_not_b32 s%d, s%d' % (sT2, sMASK))
    E('s_and_b32 exec_lo, s%d, 0xff' % sT2)
    E('s_mov_b32 exec_hi, 0')
    E('buffer_load_dword v%d, %s, 0 offen sc1 lds' % (vFo, sr(R_WS)))
    E('s_mov_b64 exec, -1')
    L('L_nopoll')
if P['SLP']: E('s_sleep %d' % P['SLP'])
E('ds_read_b32 v%d, v%d' % (vT2, vT3))
E('s_add_u32 s%d, s%d, 1' % (sSPIN, sSPIN))
E('s_cmp_gt_u32 s%d, 0x20000' % sSPIN)
E('s_cbranch_scc1 L_rxdone')
E('s_waitcnt vmcnt(30) lgkmcnt(0)')
E('v_cmp_ne_u32 vcc, 0, v%d' % vT2)
E('s_nop 1')
E('s_andn2_b32 s%d, vcc_lo, s%d' % (sPREV, sMASK))
E('s_cbranch_scc0 L_rxloop')
E('s_or_b32 s%d, s%d, s%d' % (sMASK, sMASK, sPREV))
for s_ in range(8):
    E('s_bitcmp1_b32 s%d, %d' % (sPREV, s_))
    E('s_cbranch_scc0 L_rxs%d' % s_)
    E('s_add_u32 s%d, s%d, %d' % (sT2, sT1, s_))
    E('s_mul_i32 s%d, s%d, %d' % (sT2, sT2, PIECE))
    for j in range(NST):
        if F24:
            E('buffer_load_dwordx3 %s, v%d, %s, s%d offen offset:%d sc1' % (vr(vRX + (s_ * NST + j) * 4, 3), vXc, sr(R_WS), sT2, j * TB))
        else:
            E('buffer_load_dwordx4 %s, v%d, %s, s%d offen offset:%d %s' % (vr(vRX + (s_ * NST + j) * 4), vXc, sr(R_WS), sT2, j * 1024, P['LFL'].replace('+', ' ')))
    L('L_rxs%d' % s_)
E('s_cmp_lg_u32 s%d, 0xff' % sMASK)
E('s_cbranch_scc1 L_rxloop')
L('L_rxdone')
ts(4)
E('s_waitcnt vmcnt(0) lgkmcnt(0)')
ts(5)
for s_ in range(8):
    o = vS + 8 * (s_ >> 2)
    if BF:
        b = vRX + s_ * 4
        for d in range(4):
            E('v_lshlrev_b32 v%d, 16, v%d' % (vT2, b + d))
            E('v_and_b32 v%d, 0xffff0000, v%d' % (vT3, b + d))
            E('v_pk_add_f32 %s, %s, %s' % (vr(o + 2 * d, 2), vr(o + 2 * d, 2), vr(vT2, 2)))
    else:
        b = vRX + s_ * 8
        if F24:
            for t in range(2):
                d = b + 4 * t
                E('v_perm_b32 v%d, v%d, v%d, s92' % (d + 3, d + 1, d))
                E('v_perm_b32 v%d, v%d, v%d, s93' % (d + 3, d + 2, d + 3))
        for r in range(0, 8, 2):
            E('v_pk_add_f32 %s, %s, %s' % (vr(o + r, 2), vr(o + r, 2), vr(b + r, 2)))
E('v_mov_b32 v%d, 0' % vT1)
E('v_mov_b32 v%d, 0' % vT3)
for r in range(0, 16, 2):
    a, b = vS + r, vS + r + 1
    E('v_cvt_pk_bf16_f32 v%d, v%d, v%d' % (vT2, a, b))
    E('v_lshlrev_b32 v%d, 16, v%d' % (a, vT2))
    E('v_and_b32 v%d, 0xffff0000, v%d' % (b, vT2))
    E('v_pk_add_f32 %s, %s, %s' % (vr(a, 2), vr(a, 2), vr(vBf + r, 2)))
    E('v_cvt_pk_bf16_f32 v%d, v%d, v%d' % (vT2, a, b))
    E('v_lshlrev_b32 v%d, 16, v%d' % (a, vT2))
    E('v_and_b32 v%d, 0xffff0000, v%d' % (b, vT2))
    E('v_cmp_lt_f32 vcc, 0, v%d' % a)
    E('v_cmp_lt_f32 s[92:93], 0, v%d' % b)
    E('s_nop 0')
    E('v_cndmask_b32 v10, 0, 1.0, vcc')
    E('v_cndmask_b32 v11, 0, 1.0, s[92:93]')
    E('v_mul_f32 v%d, v%d, v10' % (a, a))
    E('v_mul_f32 v%d, v%d, v11' % (b, b))
    E('v_fmac_f32 v%d, v%d, v%d' % (vT1, a, vWf + r))
    E('v_fmac_f32 v%d, v%d, v%d' % (vT3, b, vWf + r + 1))
E('v_add_f32 v%d, v%d, v%d' % (vT1, vT1, vT3))
lane_reduce(vT1, vT2)
E('v_and_b32 v%d, 15, v%d' % (vT2, vL))
E('v_lshlrev_b32 v%d, 4, v%d' % (vT2, vT2))
E('s_lshl_b32 s%d, s%d, 2' % (sT2, sQ))
E('v_add_u32 v%d, s%d, v%d' % (vT3, sT2, vT2))
E('s_mov_b64 exec, 0xffff')
E('ds_write_b32 v%d, v%d offset:%d' % (vT3, vT1, SCROFF))
E('s_waitcnt lgkmcnt(0)')
E('s_barrier')
E('s_cmp_lg_u32 s%d, 0' % sQ)
E('s_cbranch_scc1 L_end')
E('ds_read_b128 %s, v%d offset:%d' % (vr(vS), vT2, SCROFF))
E('s_waitcnt lgkmcnt(0)')
E('v_add_f32 v%d, v%d, v%d' % (vS, vS, vS + 1))
E('v_add_f32 v%d, v%d, v%d' % (vS + 2, vS + 2, vS + 3))
E('v_add_f32 v%d, v%d, v%d' % (vS, vS, vS + 2))
rbf(vS)
E('v_add_f32 v%d, v%d, v%d' % (vS, vS, vSC + 1))
rbf(vS)
E('v_add_f32 v%d, v%d, v%d' % (vS, vS, vT0))
rbf(vS)
E('v_mul_f32 v%d, 0xbfb8aa3b, v%d' % (vS, vS))
E('v_exp_f32 v%d, v%d' % (vS, vS)); E('s_nop 0')
E('v_add_f32 v%d, 1.0, v%d' % (vS, vS))
E('v_rcp_f32 v%d, v%d' % (vS, vS)); E('s_nop 0')
E('v_cvt_pk_bf16_f32 v%d, v%d, v%d' % (vS, vS, vS))
E('v_lshlrev_b32 v%d, 1, v%d' % (vT2, vL))
E('s_lshl_b32 s%d, s%d, 5' % (sT2, sSELF))
for _ in range(P['SL1']): E('s_sleep 127')
if P['LEAK']:
    if P['LEAK'] == 6: E('s_memrealtime s[74:75]')
    E('s_memrealtime s[76:77]')
    E('s_waitcnt lgkmcnt(0)')
    E('s_sub_u32 s78, s74, s72')
    if P['LEAK'] == 9: E('s_mov_b32 s78, 0')
    E('s_add_u32 s78, s78, s76')
    L('L_leak')
    E('s_sleep 4')
    E('s_memrealtime s[76:77]')
    E('s_waitcnt lgkmcnt(0)')
    E('s_sub_u32 s79, s76, s78')
    E('s_cmp_lt_i32 s79, 0')
    E('s_cbranch_scc1 L_leak')
E('buffer_store_short v%d, v%d, %s, s%d offen %s' % (vS, vT2, sr(R_T1), sT2, P['OFL']))
if TS:
    ts(6); ts_store(0)
E('s_endpgm')

L('L_compute')
INC[0] = True
INC2[0] = True
if P['CPF']:
    E('v_lshlrev_b32 v2, 6, v0')
    for rnd in range(2):
        E('v_cmp_gt_u32 vcc, 0x%x, v2' % (P['CPF'] * 1024 - rnd * 16384))
        E('s_and_saveexec_b64 s[94:95], vcc')
        E('s_cbranch_execz L_nocpf%d' % rnd)
        if rnd: E('v_add_u32 v2, 0x4000, v2')
        E('global_load_dword v%d, v2, s[92:93]' % (20 + rnd))
        L('L_nocpf%d' % rnd)
        E('s_mov_b64 exec, s[94:95]')
cXo, cT0, cT1, cT2, cONE = 2, 3, 4, 5, 6
cB = [[8, 9], [10, 11]]
cW = [12, 13]
cRDY = 14
cFO = 16
cFR = 20
cACC = 180
def acc(X, nt): return cACC + (X * 2 + nt) * 4
def frB(p, X, kk): return cFR + p * 80 + (kk * 8 + X) * 4
def frW(p, nt, kk): return cFR + p * 80 + 64 + (kk * 2 + nt) * 4
E('v_and_b32 v%d, 15, v%d' % (cT0, vL))
E('v_lshrrev_b32 v%d, 4, v%d' % (cT1, vL))
E('v_lshrrev_b32 v%d, 1, v%d' % (cT2, cT0))
E('v_xor_b32 v%d, v%d, v%d' % (cT2, cT2, cT1))
E('v_lshlrev_b32 v%d, 4, v%d' % (cT2, cT2))
E('v_lshl_add_u32 v%d, v%d, 7, v%d' % (cB[0][0], cT0, cT2))
E('v_add_u32 v%d, 0x%x, v%d' % (cB[0][0], ABASE, cB[0][0]))
E('v_xor_b32 v%d, 64, v%d' % (cB[0][1], cB[0][0]))
E('v_add_u32 v%d, 0x10000, v%d' % (cB[1][0], cB[0][0]))
E('v_add_u32 v%d, 0x10000, v%d' % (cB[1][1], cB[0][1]))
E('v_bfe_u32 v%d, v%d, 2, 2' % (cT0, vL))
E('v_and_b32 v%d, 1, v%d' % (cT2, cT1))
E('v_lshl_or_b32 v%d, v%d, 2, v%d' % (cT2, cT2, cT0))
E('v_lshl_add_u32 v%d, v%d, 3, v%d' % (cT0, cT1, cT0))
E('v_lshlrev_b32 v%d, 8, v%d' % (cT0, cT0))
E('v_and_b32 v%d, 3, v%d' % (cT1, vL))
E('v_lshl_add_u32 v%d, v%d, 3, v%d' % (cT0, cT1, cT0))
E('s_lshl_b32 s%d, s%d, 1' % (sT0, sQ))
for nt in range(2):
    E('s_add_u32 s%d, s%d, %d' % (sT1, sT0, nt))
    E('v_xor_b32 v%d, s%d, v%d' % (cT1, sT1, cT2))
    E('v_lshl_add_u32 v%d, v%d, 5, v%d' % (cW[nt], cT1, cT0))
E(('v_mul_u32_u24 v%d, 12, v%d' if F24 else 'v_lshlrev_b32 v%d, 4, v%d') % (cXo, vL))
E('s_mul_i32 s%d, s%d, %d' % (sT0, sQ, PIECE // 4))
E('v_add_u32 v%d, s%d, v%d' % (cXo, sT0, cXo))
E('v_mov_b32 v%d, 1' % cONE)
E('s_add_u32 s%d, s%d, 1' % (sT0, sME))
E('v_add_u32 v%d, s%d, v%d' % (cT0, sT0, vL))
E('v_and_b32 v%d, 7, v%d' % (cT0, cT0))
E('v_mul_u32_u24 v%d, %d, v%d' % (cT0, 9 * PIECE, cT0))
E('s_mul_i32 s%d, s%d, %d' % (sT0, sGRP, 8 * PIECE))
E('s_lshl_b32 s%d, s%d, 7' % (sT1, sME))
E('s_add_u32 s%d, s%d, s%d' % (sT0, sT0, sT1))
E('v_add_u32 v%d, s%d, v%d' % (cFO, sT0, cT0))
for r in range(64): E('v_mov_b32 v%d, 0' % (cACC + r))
E('s_waitcnt lgkmcnt(0)')
srd(R_WS, 26, WS_BYTES)
srd(R_T0, 24, 512)
assert RW <= 4
def reads(u):
    p = u & 1
    l = []
    for kk in range(2):
        for nt in range(2):
            for h in range(2):
                l.append('ds_read_b64_tr_b16 %s, v%d offset:%d' % (vr(frW(p, nt, kk) + 2 * h, 2), cW[nt], (u % RW) * 16384 + kk * 8192 + h * 1024))
        s = u % RA
        for X in range(8):
            l.append('ds_read_b128 %s, v%d offset:%d' % (vr(frB(p, X, kk)), cB[s // 4][kk], (s % 4) * 16384 + X * 2048))
    return l
def stores(X):
    E('s_add_u32 s%d, s%d, %d' % (sT3, sME, X + 1))
    E('s_and_b32 s%d, s%d, 7' % (sT3, sT3))
    E('s_add_u32 s%d, s%d, s%d' % (sT2, sT3, sGRP))
    E('s_lshl_b32 s%d, s%d, 3' % (sT2, sT2))
    E('s_add_u32 s%d, s%d, s%d' % (sT2, sT2, sME))
    E('s_mul_i32 s%d, s%d, %d' % (sT2, sT2, PIECE))
    if BF:
        a0, a1 = acc(X, 0), acc(X, 1)
        E('v_cvt_pk_bf16_f32 v%d, v%d, v%d' % (a0, a0, a0 + 1))
        E('v_cvt_pk_bf16_f32 v%d, v%d, v%d' % (a0 + 1, a0 + 2, a0 + 3))
        E('v_cvt_pk_bf16_f32 v%d, v%d, v%d' % (a0 + 2, a1, a1 + 1))
        E('v_cvt_pk_bf16_f32 v%d, v%d, v%d' % (a0 + 3, a1 + 2, a1 + 3))
        E('buffer_store_dwordx4 %s, v%d, %s, s%d offen %s' % (vr(a0), cXo, sr(R_WS), sT2, P['SFL'].replace('+', ' ')))
    elif F24:
        for nt in range(2):
            a = acc(X, nt)
            E('v_add_u32 v%d, 0x80, v%d' % (a + 3, a + 3))
            for r in range(3):
                E('v_perm_b32 v%d, v%d, v%d, s%d' % (a + r, a + r, a + 3, 92 + r))
            E('buffer_store_dwordx3 %s, v%d, %s, s%d offen offset:%d sc1' % (vr(a, 3), cXo, sr(R_WS), sT2, nt * TB))
    else:
        for nt in range(2):
            E('buffer_store_dwordx4 %s, v%d, %s, s%d offen offset:%d %s' % (vr(acc(X, nt)), cXo, sr(R_WS), sT2, nt * 1024, P['SFL'].replace('+', ' ')))
if F24:
    for r in range(3): E('s_mov_b32 s%d, 0x%08x' % (92 + r, 0x07060500 + r + 1))
est_done = [0]
if P['CPF']: E('s_waitcnt vmcnt(0)')
E('s_barrier')
ts(2)
for x in reads(0): E(x)
for u in range(NSTEP - 2 if P['MRG'] else NSTEP):
    p = u & 1
    E('; ---- step %d' % u)
    E('s_waitcnt lgkmcnt(0)')
    E('s_barrier')
    if u < NSTEP - 1:
        mf = ['v_mfma_f32_16x16x32_bf16 %s, %s, %s, %s' % (vr(acc(X, nt)), vr(frW(p, nt, kk)), vr(frB(p, X, kk)), vr(acc(X, nt)))
              for kk in range(2) for X in range(8) for nt in range(2)]
        if P['MORD']:
            mf = ['v_mfma_f32_16x16x32_bf16 %s, %s, %s, %s' % (vr(acc(X, nt)), vr(frW(p, nt, kk)), vr(frB(p, X, kk)), vr(acc(X, nt)))
                  for kk in range(2) for nt in range(2) for X in range(8)]
    else:
        mf = ['v_mfma_f32_16x16x32_bf16 %s, %s, %s, %s' % (vr(acc(X, nt)), vr(frW(p, nt, kk)), vr(frB(p, X, kk)), vr(acc(X, nt)))
              for X in range(8) for kk in range(2) for nt in range(2)]
    rd = reads(u + 1) if u + 1 < NSTEP else []
    if P['M32'] and u < NSTEP - 1:
        mf2 = []
        for kk in range(2):
            for X in range(8):
                a = cACC + (X % 4) * 16
                mf2.append('v_mfma_f32_32x32x16_bf16 %s, %s, %s, %s' % (vr(a, 16), vr(frW(p, X & 1, kk)), vr(frB(p, X, kk)), vr(a, 16)))
        for m, x in enumerate(mf2):
            E(x)
            for r in rd[2 * m:2 * m + 2]: E(r)
        mf = []
    for m, x in enumerate(mf):
        E(x)
        if m < len(rd): E(rd[m])
        if P['MNOP'] >= 0 and u < NSTEP - 1: E('s_nop %d' % P['MNOP'])
        if P['EST'] and u == NSTEP - 1 and m % 4 == 3 and m // 4 >= 2:
            stores(m // 4 - 2); est_done[0] += 1
    if u == NSTEP - 5:
        if P['DBG']:
            E('s_lshl_b32 s%d, s%d, 2' % (sT2, sMT))
            E('s_add_u32 s%d, s%d, 128' % (sT2, sT2))
            E('v_mov_b32 v%d, s%d' % (cT0, sT2))
        else:
            E('v_mov_b32 v%d, s%d' % (cT0, sGRP))
        if P['RDY1']:
            E('s_cmp_lg_u32 s%d, 0' % sQ)
            E('s_cbranch_scc1 L_nord1')
            E('s_mov_b64 exec, 1')
        E('buffer_load_dwordx2 %s, v%d, %s, 0 offen sc1' % (vr(cRDY, 2), cT0, sr(R_T0)))
        if P['RDY1']:
            E('s_mov_b64 exec, -1')
            L('L_nord1')
if P['MRG']:
    u = NSTEP - 2; p = u & 1; q_ = 1 - p; v = u + 1
    E('; ---- steps %d+%d merged' % (u, v))
    E('s_waitcnt lgkmcnt(0)')
    E('s_barrier')
    rdl = []
    for kk in range(2):
        for nt in range(2):
            for h in range(2):
                rdl.append(('W', 'ds_read_b64_tr_b16 %s, v%d offset:%d' % (vr(frW(q_, nt, kk) + 2 * h, 2), cW[nt], (v % RW) * 16384 + kk * 8192 + h * 1024)))
    sl = v % RA
    for X in range(8):
        for kk in range(2):
            rdl.append((X, 'ds_read_b128 %s, v%d offset:%d' % (vr(frB(q_, X, kk)), cB[sl // 4][kk], (sl % 4) * 16384 + X * 2048)))
    issued = []
    def mm(pp, X):
        return ['v_mfma_f32_16x16x32_bf16 %s, %s, %s, %s' % (vr(acc(X, nt)), vr(frW(pp, nt, kk)), vr(frB(pp, X, kk)), vr(acc(X, nt))) for kk in range(2) for nt in range(2)]
    def put(x, n=2):
        E(x)
        for _ in range(n):
            if len(issued) < len(rdl):
                t, ins = rdl[len(issued)]; issued.append(t); E(ins)
    for X in (0, 1):
        for x in mm(p, X): put(x)
    for X in range(8):
        while X not in issued or issued.count(X) < 2:
            t, ins = rdl[len(issued)]; issued.append(t); E(ins)
        last = max(i for i, t in enumerate(issued) if t == X)
        if X < 2:
            E('s_waitcnt lgkmcnt(%d)' % min(len(issued) - 1 - last, 15))
        elif X == 2:
            assert len(issued) == len(rdl)
            E('s_waitcnt lgkmcnt(0)')
            E('s_barrier')
        for x in mm(q_, X): put(x)
        if X + 2 < 8:
            for x in mm(p, X + 2): put(x)
        if X >= 1:
            stores(X - 1); est_done[0] += 1
ts(3)
INC[0] = False
E('s_mov_b32 s%d, 0' % sSPIN)
if F24:
    for r in range(3): E('s_mov_b32 s%d, 0x%08x' % (92 + r, 0x07060500 + r + 1))
if P['SL2']: E('s_sleep %d' % P['SL2'])
for X in range(est_done[0], 7):
    stores(X)
    if P['PACE'] and X < 6: E('s_sleep %d' % P['PACE'])
ts(4)
E('v_lshlrev_b32 v%d, 4, v%d' % (cT1, vL))
E('s_lshl_b32 s%d, s%d, 11' % (sT2, sQ))
E('v_add_u32 v%d, s%d, v%d' % (cT1, sT2, cT1))
for nt in range(2): E('ds_write_b128 v%d, %s offset:%d' % (cT1, vr(acc(7, nt)), OWNOFF + nt * 1024))
if P['RDY1']:
    E('s_cmp_lg_u32 s%d, 0' % sQ)
    E('s_cbranch_scc1 L_rdyok')
E('s_waitcnt vmcnt(%d)' % (7 * NST))
L('L_rdychk')
E('v_and_b32 v%d, v%d, v%d' % (cT1, cRDY, cRDY + (0 if P['DBG'] else 1)))
E('s_nop 0')
E('v_readfirstlane_b32 s%d, v%d' % (sT2, cT1))
E('s_cmp_eq_u32 s%d, %s' % (sT2, '0xff' if P['DBG'] else '0x01010101'))
E('s_cbranch_scc1 L_rdyok')
E('s_add_u32 s%d, s%d, 1' % (sSPIN, sSPIN))
E('s_cmp_gt_u32 s%d, 0x8000' % sSPIN)
E('s_cbranch_scc1 L_rdyok')
E('s_sleep 2')
E('buffer_load_dwordx2 %s, v%d, %s, 0 offen sc1' % (vr(cRDY, 2), cT0, sr(R_T0)))
E('s_waitcnt vmcnt(0)')
E('s_branch L_rdychk')
L('L_rdyok')
E('s_waitcnt vmcnt(0) lgkmcnt(0)')
ts(5)
E('s_barrier')
if P['POLL'] != 'dma':
    E('s_sub_u32 s%d, s%d, 1' % (sT0, sQ))
    E('s_cmp_ge_u32 s%d, %d' % (sT0, P['NPOLL']))
    E('s_cbranch_scc1 L_notpoller')
    if P['NPOLL'] > 1:
        E('s_cmp_eq_u32 s%d, 0' % sT0)
        E('s_cbranch_scc1 L_pst')
        E('s_sleep %d' % (20 // P['NPOLL']))
        E('s_cmp_eq_u32 s%d, 1' % sT0)
        E('s_cbranch_scc1 L_pst')
        E('s_sleep %d' % (20 // P['NPOLL']))
        L('L_pst')
    E('s_lshl_b32 s%d, s%d, 3' % (sT0, sSELF))
    E('s_add_u32 s%d, s%d, s%d' % (sT0, sT0, sME))
    E('s_mul_i32 s%d, s%d, %d' % (sT0, sT0, PIECE))
    E('v_lshlrev_b32 v%d, 7, v%d' % (cT0, vL))
    E('v_add_u32 v%d, s%d, v%d' % (cT0, sT0, cT0))
    E('v_lshlrev_b32 v%d, 2, v%d' % (cT1, vL))
    E('v_add_u32 v%d, 0x%x, v%d' % (cT1, SCROFF + 1024, cT1))
    E('s_lshl_b32 s%d, 1, s%d' % (sMASK, sME))
    E('s_mov_b32 exec_hi, 0')
    L('L_cpoll')
    E('s_andn2_b32 exec_lo, 0xff, s%d' % sMASK)
    if P['POLL'] == 'atom':
        E('v_mov_b32 v%d, 0' % cT2)
        E('buffer_atomic_or v%d, v%d, %s, 0 offen sc0 sc1' % (cT2, cT0, sr(R_WS)))
    else:
        E('buffer_load_dword v%d, v%d, %s, 0 offen sc1' % (cT2, cT0, sr(R_WS)))
    E('s_add_u32 s%d, s%d, 1' % (sSPIN, sSPIN))
    E('s_cmp_gt_u32 s%d, 0x20000' % sSPIN)
    E('s_cbranch_scc1 L_end')
    E('s_waitcnt vmcnt(0)')
    E('v_cmp_ne_u32 vcc, 0, v%d' % cT2)
    E('s_nop 1')
    E('s_mov_b32 exec_lo, vcc_lo')
    E('ds_write_b32 v%d, v%d' % (cT1, cT2))
    E('s_or_b32 s%d, s%d, vcc_lo' % (sMASK, sMASK))
    if P['PSL']: E('s_sleep %d' % P['PSL'])
    E('s_cmp_lg_u32 s%d, 0xff' % sMASK)
    E('s_cbranch_scc1 L_cpoll')
    E('s_endpgm')
    L('L_notpoller')
E('s_cmp_lg_u32 s%d, 0' % sQ)
E('s_cbranch_scc1 L_end')
E('s_mov_b64 exec, 0x7f')
E(('buffer_atomic_or v%d, v%d, %s, 0 offen sc1' if P['FAT'] else 'buffer_store_dword v%d, v%d, %s, 0 offen sc1') % (cONE, cFO, sr(R_WS)))
E('s_mov_b64 exec, -1')
if TS:
    ts(6)
    E('s_cmp_lg_u32 s%d, 0' % sQ)
    E('s_cbranch_scc1 L_end')
    ts_store(1)
L('L_end')
E('s_endpgm')
out += ['.section .rodata,"a"', '.p2align 6', '.amdhsa_kernel ' + KN, '  .amdhsa_next_free_vgpr 248', '  .amdhsa_next_free_sgpr 102',
        '  .amdhsa_accum_offset 248', '  .amdhsa_group_segment_fixed_size 0', '  .amdhsa_kernarg_size 96', '  .amdhsa_user_sgpr_count 2',
        '  .amdhsa_user_sgpr_kernarg_segment_ptr 1', '  .amdhsa_system_sgpr_workgroup_id_x 1', '  .amdhsa_float_denorm_mode_32 3', '.end_amdhsa_kernel']
open(sys.argv[1], 'w').write('\n'.join(out) + '\n')
print('lds', LDS_BYTES, 'lines', len(out))
```

```python
import sys, copy
P = dict(XFMT='f24', TS=0, RA=6, RW=4, PF=0, LPRIO=2, COOP=1, SLP=0, NOMF=0, NORD=0, ORD='AAWW', PH=0, Q=8, Q0=12, FG=2, IDXL=1, PFPOS=0, CPF=0, DBG=0, DELAY=0, SL0=0, SL1=0, LEAK=0, POLL='atom', PSL=0, FAT=0, SL2=0, PACE=0, SFL='sc1', LFL='sc1', RDY1=1, ROT=1, L1ST=1, NPOLL=1, MNOP=-1, MORD=0, EST=1, OTOUCH=0, OFL='sc1', M32=0, MRG=0, STG=1, MID=3, TRK=0, NODMA=0, WSOFF=0)
for a in sys.argv[2:]:
    k, v = a.split('=')
    P[k] = int(v) if v.lstrip('-').isdigit() else v
BF = P['XFMT'] == 'bf16'
TS = P['TS']
RA, RW = P['RA'], P['RW']
NSTEP = 25
WBASE = 0
ABASE = RW * 16384
LDS_BYTES = (RA + RW) * 16384
F24 = P['XFMT'] == 'f24'
NST = 1 if BF else 2
PIECE = 6144 if F24 else NST * 4096
TB = 768 if F24 else 1024
TSOFF = 56 << 20
WS_BYTES = 64 << 20
out = []
INC = [False]
INC2 = [False]
def E(s=''):
    if P['NOMF'] and s.startswith('v_mfma'): return
    if P['NORD'] and INC[0] and s.startswith('ds_read'): return
    if P['NODMA'] and s.endswith('offen lds') and ('s[28:31]' in s or 's[32:35]' in s) and len(out) > 420: return
    out.append('    ' + s)
def L(s): out.append(s + ':')
def vr(b, n=4): return 'v[%d:%d]' % (b, b + n - 1)
def sr(b, n=4): return 's[%d:%d]' % (b, b + n - 1)
R_TAB, R_W1, R_IDX, R_WS, R_T0, R_T1, R_T2 = 28, 32, 36, 40, 44, 48, 96
sW, sMT, sME, sQ, sLOFF, sWp, sWm, sT0, sT1, sT2, sT3, sSELF, sPREV, sMASK, sGRP, sSPIN, sNH, sFB, sKQ, sFLG = range(52, 72)
sTS = 72
sW0 = 94
def ts(i):
    if P['LEAK'] and not INC2[0] and i == P['LEAK']:
        E('s_memrealtime s[74:75]')
    if TS:
        E('s_memrealtime s[%d:%d]' % (sTS + 2 * i, sTS + 2 * i + 1))
        if i == 2: E('s_memtime s[88:89]')
        if i == 3: E('s_memtime s[90:91]')
def srd(r, p, nbytes):
    E('s_mov_b32 s%d, s%d' % (r, p))
    E('s_and_b32 s%d, s%d, 0xffff' % (r + 1, p + 1))
    E('s_mov_b32 s%d, 0x%x' % (r + 2, nbytes))
    E('s_mov_b32 s%d, 0x00020000' % (r + 3))
def srd_ws():
    if P['WSOFF']:
        E('s_add_u32 s26, s26, 0x%x' % (P['WSOFF'] << 20))
        E('s_addc_u32 s27, s27, 0')
    srd(R_WS, 26, WS_BYTES if not P['WSOFF'] else (16 << 20))
def ts_store(role):
    if P['DBG']:
        E('s_waitcnt lgkmcnt(0)')
        E('s_mov_b64 exec, 1')
        E('v_mov_b32 v2, 0')
        if role == 0:
            E('s_not_b32 s%d, s%d' % (sT2, sTS))
            E('v_mov_b32 v4, s%d' % sT2)
            E('buffer_atomic_umax v4, v2, %s, 0 offen offset:28 sc1' % sr(R_T0))
            E('v_mov_b32 v5, s%d' % (sTS + 12))
            E('buffer_atomic_umax v5, v2, %s, 0 offen offset:60 sc1' % sr(R_T0))
        E('s_cmp_lg_u32 s2, %d' % P['DBG'])
        E('s_cbranch_scc1 L_end')
        for i in range(7):
            if i == 0: E('s_mov_b32 s%d, s%d' % (sT2, sTS))
            else: E('s_sub_u32 s%d, s%d, s%d' % (sT2, sTS + 2 * i, sTS))
            E('v_mov_b32 v%d, s%d' % (6 + i, sT2))
            E('buffer_store_dword v%d, v2, %s, 0 offen offset:%d sc1' % (6 + i, sr(R_T0), role * 32 + 4 * i))
        return
    E('s_waitcnt lgkmcnt(0)')
    E('s_mov_b64 exec, 1')
    E('s_lshl_b32 s%d, s2, 7' % sT2)
    E('s_add_u32 s%d, s%d, 0x%x' % (sT2, sT2, TSOFF + role * 64))
    E('v_mov_b32 v2, 0')
    E('s_sub_u32 s86, s90, s88')
    E('s_subb_u32 s87, s91, s89')
    for i in range(8):
        E('v_mov_b32 v4, s%d' % (sTS + 2 * i))
        E('v_mov_b32 v5, s%d' % (sTS + 2 * i + 1))
        E('buffer_store_dwordx2 v[4:5], v2, %s, s%d offen offset:%d' % (sr(R_WS), sT2, 8 * i))
        E('s_nop 1')
hdr = open('standalone__deep_cross_wide_deep__recsys.s.ref').read().split('\n')
for line in hdr:
    if line.startswith('; @launch'):
        out.append('; @launch grid=(256,1,1) block=(512,1,1) lds=%d' % LDS_BYTES)
    elif line.startswith(';'):
        out.append(line)
    else:
        break
out.append('; generated v2-style v4: ' + ' '.join('%s=%s' % kv for kv in sorted(P.items())))
out.append('.amdgcn_target "amdgcn-amd-amdhsa--gfx950"')
out.append('.text')
KN = 'standalone__deep_cross_wide_deep__recsys_kernel'
out += ['.globl ' + KN, '.p2align 8', '.type %s,@function' % KN]
L(KN)
E('s_cmp_ge_u32 s2, 256')
E('s_cbranch_scc1 L_end')
E('s_load_dwordx16 s[4:19], s[0:1], 0')
E('s_load_dwordx8 s[20:27], s[0:1], 64')
if TS:
    for i in range(1, 8): E('s_mov_b64 s[%d:%d], 0' % (sTS + 2 * i, sTS + 2 * i + 1))
    E('s_mov_b64 s[88:89], 0'); E('s_mov_b64 s[90:91], 0')
ts(0)
vL = 1
if P['DELAY']:
    E('s_memrealtime s[92:93]')
    E('s_waitcnt lgkmcnt(0)')
    E('s_add_u32 s94, s92, %d' % P['DELAY'])
    L('L_dly')
    E('s_memrealtime s[92:93]')
    E('s_waitcnt lgkmcnt(0)')
    E('s_sub_u32 s95, s92, s94')
    E('s_cmp_lt_i32 s95, 0')
    E('s_cbranch_scc1 L_dly')
for _ in range(P['SL0']): E('s_sleep 127')
E('v_lshrrev_b32 v2, 6, v0')
E('v_and_b32 v%d, 63, v0' % vL)
E('v_readfirstlane_b32 s%d, v2' % sW)
E('s_lshr_b32 s%d, s2, 3' % sT0)
E('s_and_b32 s%d, s%d, 1' % (sNH, sT0))
E('s_lshr_b32 s%d, s%d, 1' % (sMT, sT0))
E('s_bfe_u32 s%d, s2, 0x10002' % sT1)
E('s_lshl_b32 s%d, s%d, 4' % (sT1, sT1))
E('s_add_u32 s%d, s%d, s%d' % (sMT, sMT, sT1))
E('s_and_b32 s%d, s2, 3' % sKQ)
E('s_lshl_b32 s%d, s%d, 2' % (sME, sNH))
E('s_add_u32 s%d, s%d, s%d' % (sME, sME, sKQ))
E('s_lshl_b32 s%d, s%d, 3' % (sGRP, sMT))
E('s_add_u32 s%d, s%d, s%d' % (sSELF, sGRP, sME))
E('s_and_b32 s%d, s%d, 3' % (sQ, sW))
if P['CPF']: E('s_getpc_b64 s[92:93]')
E('s_cmp_lt_u32 s%d, 4' % sW)
E('s_cbranch_scc1 L_compute')
def wslot(u): return WBASE + (u % RW) * 16384
def aslot(c): return ABASE + (c % RA) * 16384
OWNOFF, SCROFF = 0, 16384
def need_at(b):
    u = b + 1
    return [('W', u), ('A', u)] if u < NSTEP else []

vT0, vT1, vT2, vT3 = 2, 3, 4, 5
vWd = [6, 7, 8, 9]
vIDX = [12 + 28 * i for i in range(4)]
vB1v, vW2v, vXW, vWW, vSC, vFo, vXc, vONE = 124, 132, 140, 144, 148, 150, 151, 152
vS = 156
vRX = 176
vBf, vWf = 12, 28
vmq = []
def vm(t): vmq.append(t)
def wait_for(tags, cnt):
    last = -1
    for t in tags:
        if isinstance(t, tuple): assert vmq.count(t) == cnt, ('needed DMA not issued', t, vmq.count(t))
    for i, t in enumerate(vmq):
        if t in tags: last = i
    return min(len(vmq) - 1 - last, 63)
if P['LPRIO']: E('s_setprio %d' % P['LPRIO'])
if P['LEAK']: E('s_memrealtime s[72:73]')
E('s_mul_i32 s%d, s%d, 25' % (sFB, sKQ))
E('s_lshl_b32 s%d, s%d, 15' % (sW0, sFB))
E('s_lshl_b32 s%d, s%d, 16' % (sT0, sNH))
if not P['COOP']: E('s_mov_b32 s%d, 0' % sT0)
E('s_add_u32 s%d, s%d, s%d' % (sWp, sW0, sT0))
E('s_sub_u32 s%d, s%d, s%d' % (sWm, sW0, sT0))
E('s_lshl_b32 s%d, s%d, 2' % (sFB, sFB))
E('s_lshl_b32 s%d, s%d, 12' % (sLOFF, sQ))
if P['ROT']:
    E('s_mul_i32 s100, s%d, 43' % sMT)
    E('s_lshr_b32 s100, s100, 8')
    E('s_mul_i32 s100, s100, 6')
    E('s_sub_u32 s100, s%d, s100' % sMT)
    E('s_lshl_b32 s100, s100, 17')
E('v_lshrrev_b32 v%d, 3, v%d' % (vT2, vL))
for j in range(2):
    E('s_lshl_b32 s%d, s%d, 1' % (sT0, sQ))
    E('s_add_u32 s%d, s%d, s%d' % (sT0, sT0, sME))
    E('s_add_u32 s%d, s%d, %d' % (sT0, sT0, 1 + j))
    E('s_and_b32 s%d, s%d, 7' % (sT0, sT0))
    E('s_add_u32 s%d, s%d, s%d' % (sT0, sT0, sGRP))
    E('s_lshl_b32 s%d, s%d, 4' % (sT0, sT0))
    E('v_add_u32 v%d, s%d, v%d' % (vT0 + j, sT0, vT2))
    E('v_mul_u32_u24 v%d, 400, v%d' % (vT0 + j, vT0 + j))
if P['IDXL']:
    E('v_and_b32 v10, 7, v%d' % vL)
    for j in range(2): E('v_lshl_add_u32 v%d, v10, 4, v%d' % (vT0 + j, vT0 + j))
    E('v_add_u32 v%d, 3200, v%d' % (vS, vT0))
    E('v_add_u32 v%d, 3200, v%d' % (vS + 1, vT1))
E('v_lshrrev_b32 v%d, 4, v%d' % (vT2, vL))
E('v_lshlrev_b32 v%d, 1, v%d' % (vT3, vT2))
E('v_and_b32 v10, 15, v%d' % vL)
E('v_xor_b32 v%d, v%d, v10' % (vT3, vT3))
E('v_lshlrev_b32 v%d, 9, v%d' % (vT2, vT2))
E('s_lshl_b32 s%d, s%d, 13' % (sT0, sQ))
E('s_lshl_b32 s%d, s%d, 8' % (sT1, sNH))
E('s_add_u32 s%d, s%d, s%d' % (sT0, sT0, sT1))
E('v_add_u32 v%d, s%d, v%d' % (vT2, sT0, vT2))
E('v_lshl_add_u32 v%d, v%d, 4, v%d' % (vWd[0], vT3, vT2))
E('v_add_u32 v%d, 2048, v%d' % (vWd[1], vWd[0]))
E('v_xor_b32 v%d, 8, v%d' % (vT3, vT3))
E('v_lshl_add_u32 v%d, v%d, 4, v%d' % (vWd[2], vT3, vT2))
E('v_add_u32 v%d, 4096, v%d' % (vWd[2], vWd[2]))
E('v_add_u32 v%d, 2048, v%d' % (vWd[3], vWd[2]))
E('s_waitcnt lgkmcnt(0)')
srd(R_IDX, 4, 4096 * 400)
srd(R_W1, 14, 6400 * 512)
IDXL_OFF = aslot(RA - 1)
if P['IDXL']:
    for i in range(4):
        E('s_add_u32 m0, s%d, 0x%x' % (sLOFF, IDXL_OFF + i * 1024))
        E('s_nop 0')
        E('buffer_load_dwordx4 v%d, %s, s%d offen lds' % ([vT0, vS, vT1, vS + 1][i], sr(R_IDX), sFB)); vm('idx0')
else:
    for c in range(7):
        for i in range(4):
            if c < 6:
                E('buffer_load_dwordx4 %s, v%d, %s, s%d offen offset:%d' % (vr(vIDX[i] + 4 * c), vT0 + (i >> 1), sr(R_IDX), sFB, (i & 1) * 3200 + c * 16))
            else:
                E('buffer_load_dword v%d, v%d, %s, s%d offen offset:%d' % (vIDX[i] + 24, vT0 + (i >> 1), sr(R_IDX), sFB, (i & 1) * 3200 + 96))
            vm('idx0' if c == 0 else 'idx')
CUR = dict(seq=None)
def mkseq(v, nh):
    rounds = [2] * 6 if (v & 1) == 0 else [1] + [2] * 5 + [1]
    at = 0 if (v & 2) == 0 else P['MID']
    seq = []; grp = []
    p = 0
    for ri, g in enumerate(rounds):
        if ri == at:
            grp.append([len(seq)]); seq.append(24)
        a = list(range(p, p + g)); b = list(range(p + g, p + 2 * g)); p += 2 * g
        own, oth = (a, b) if nh == 0 else (b, a)
        for part in (own, oth):
            grp.append(list(range(len(seq), len(seq) + g))); seq += part
    return seq, grp
def pos(t):
    if P['STG']: return CUR['seq'][t]
    if not P['L1ST']: return t
    return 24 if t == 0 else t - 1
def dmaW(t, i):
    u = pos(t)
    if i == 0:
        base = sW0 if (u == 24 or P['STG']) else (sWp if ((u >> 1) & 1) == 0 else sWm)
        if P['ROT'] and u < 24:
            r = u >> 2
            E('s_add_u32 s%d, s100, 0x%x' % (sT3, r * 131072))
            E('s_sub_u32 s101, s%d, 0x%x' % (sT3, 6 * 131072))
            E('s_cselect_b32 s%d, s%d, s101' % (sT3, sT3))
            E('s_add_u32 s%d, s%d, s%d' % (sT3, sT3, base))
            if u & 3: E('s_add_u32 s%d, s%d, 0x%x' % (sT3, sT3, (u & 3) * 32768))
        else:
            E('s_add_u32 s%d, s%d, 0x%x' % (sT3, base, u * 32768))
    E('s_add_u32 m0, s%d, 0x%x' % (sLOFF, wslot(t) + i * 1024))
    E('s_nop 0')
    E('buffer_load_dwordx4 v%d, %s, s%d offen lds' % (vWd[i], sr(R_W1), sT3)); vm(('W', t))
def dmaA(c, i):
    E('s_add_u32 m0, s%d, 0x%x' % (sLOFF, aslot(c) + i * 1024))
    E('s_nop 0')
    E('buffer_load_dwordx4 v%d, %s, 0 offen lds' % (vIDX[i] + pos(c), sr(R_TAB))); vm(('A', c))
def chunk(k, c):
    for i in range(4): (dmaW if k == 'W' else dmaA)(c, i)
if P['STG']: CUR['seq'] = [24]
if P['STG'] == 3:
    E('s_bitcmp1_b32 s%d, 0' % sMT)
    E('s_cselect_b32 s%d, 15, 16' % sT0)
    E('s_lshl_b32 s%d, s%d, s%d' % (sT0, sNH, sT0))
    E('s_add_u32 s%d, s%d, s100' % (sT0, sT0))
    E('s_bitcmp1_b32 s%d, 1' % sMT)
    E('s_cselect_b32 s%d, s%d, 0x%x' % (sT3, sT0, 24 * 32768))
    E('s_add_u32 s%d, s%d, s%d' % (sT3, sT3, sW0))
    for i in range(4):
        E('s_add_u32 m0, s%d, 0x%x' % (sLOFF, wslot(0) + i * 1024))
        E('s_nop 0')
        E('buffer_load_dwordx4 v%d, %s, s%d offen lds' % (vWd[i], sr(R_W1), sT3)); vm(('W', 0))
else:
    chunk('W', 0)
def wpf():
    if not P['PF']: return
    if P['PF'] == 2:
        E('v_lshlrev_b32 v%d, 4, v%d' % (vT2, vL))
        E('s_lshr_b32 s%d, s2, 3' % sT0)
        E('s_lshl_b32 s%d, s%d, 10' % (sT0, sT0))
        E('s_lshl_b32 s%d, s%d, 8' % (sT1, sQ))
        E('s_add_u32 s%d, s%d, s%d' % (sT0, sT0, sT1))
        E('s_add_u32 s%d, s%d, s%d' % (sT0, sT0, sW0))
        E('s_add_u32 s%d, s%d, 0x%x' % (sT0, sT0, 24 * 32768))
        E('s_mov_b64 exec, 0xffff')
        E('buffer_load_dwordx4 %s, v%d, %s, s%d offen' % (vr(vRX), vT2, sr(R_W1), sT0)); vm('pf')
        E('s_mov_b64 exec, -1')
        return
    E('v_lshlrev_b32 v%d, 4, v%d' % (vT2, vL))
    E('s_lshl_b32 s%d, s%d, 10' % (sT0, sQ))
    E('v_add_u32 v%d, s%d, v%d' % (vT2, sT0, vT2))
    E('s_lshr_b32 s%d, s2, 3' % sT0)
    E('s_mul_i32 s%d, s%d, 25600' % (sT0, sT0))
    E('s_add_u32 s%d, s%d, s%d' % (sT0, sT0, sW0))
    for j in range(7):
        if j == 6:
            E('v_cmp_gt_u32 vcc, 1024, v%d' % vT2)
            E('v_mov_b32 v%d, 0x40000000' % (vS + 2))
            E('s_nop 0')
            E('v_cndmask_b32 v%d, v%d, v%d, vcc' % (vT2, vS + 2, vT2))
        E('buffer_load_dwordx4 %s, v%d, %s, s%d offen' % (vr(vRX + 4 * j), vT2, sr(R_W1), sT0)); vm('pf')
        if j < 6: E('s_add_u32 s%d, s%d, 4096' % (sT0, sT0))
if P['PFPOS'] == 0: wpf()
srd(R_TAB, 6, 100000 * 128)
srd_ws()
srd(R_T0, 24, 512)
srd(R_T1, 22, 16384)
E('s_lshl_b32 s%d, s%d, 3' % (sFLG, sSELF))
E('s_add_u32 s%d, s%d, s%d' % (sFLG, sFLG, sME))
E('s_mul_i32 s%d, s%d, %d' % (sFLG, sFLG, PIECE))
E('s_lshl_b32 s%d, s%d, 8' % (sT0, sQ))
E('s_add_u32 s%d, s%d, s%d' % (sT0, sT0, sFLG))
E('v_mov_b32 v%d, 0' % vT2)
E('v_lshlrev_b32 v%d, 7, v%d' % (vT3, vL))
E('s_mov_b64 exec, 3')
E('buffer_store_dword v%d, v%d, %s, s%d offen sc1' % (vT2, vT3, sr(R_WS), sT0)); vm('clr')
E('s_mov_b64 exec, -1')
E('v_and_b32 v%d, 7, v%d' % (vFo, vL))
E('v_lshlrev_b32 v%d, 7, v%d' % (vFo, vFo))
E('v_add_u32 v%d, s%d, v%d' % (vFo, sFLG, vFo))
E(('v_mul_u32_u24 v%d, 12, v%d' if F24 else 'v_lshlrev_b32 v%d, 4, v%d') % (vXc, vL))
E('s_mul_i32 s%d, s%d, %d' % (sT0, sQ, PIECE // 4))
E('v_add_u32 v%d, s%d, v%d' % (vXc, sT0, vXc))
E('v_mov_b32 v%d, 1' % vONE)
E('v_lshrrev_b32 v10, 4, v%d' % vL)
E('v_and_b32 v11, 7, v%d' % vL)
E('v_xor_b32 v10, v10, v11')
E('v_lshlrev_b32 v10, 4, v10')
E('v_xor_b32 v11, 64, v10')
def conv(cs, tag):
    if P['COOP'] and not P['STG']:
        E('s_cmp_eq_u32 s%d, 0' % sNH)
        E('s_cbranch_scc1 L_nosw%s' % tag)
        for i in range(4):
            for c in cs:
                if c % 4 < 2 and c < 24:
                    E('v_swap_b32 v%d, v%d' % (vIDX[i] + c, vIDX[i] + c + 2))
        L('L_nosw%s' % tag)
    for c in cs:
        for i in range(4):
            E('v_lshl_or_b32 v%d, v%d, 7, v%d' % (vIDX[i] + c, vIDX[i] + c, 10 + (i & 1)))
E('s_waitcnt vmcnt(%d)' % wait_for(['idx0'], 0))
ts(1)
if P['IDXL']:
    E('v_lshrrev_b32 v%d, 3, v%d' % (vT2, vL))
    E('v_lshlrev_b32 v%d, 7, v%d' % (vT2, vT2))
    E('v_add_u32 v%d, s%d, v%d' % (vT2, sLOFF, vT2))
    E('v_add_u32 v%d, 0x%x, v%d' % (vT2, IDXL_OFF, vT2))
    corder = [6, 0, 1, 2, 3, 4, 5] if P['L1ST'] else list(range(7))
    for ci, c in enumerate(corder):
        if P['ROT'] and c < 6:
            E('s_lshr_b32 s%d, s100, 13' % sT0)
            E('s_add_u32 s%d, s%d, %d' % (sT0, sT0, c * 16))
            E('s_sub_u32 s101, s%d, 96' % sT0)
            E('s_cselect_b32 s%d, s%d, s101' % (sT0, sT0))
            E('v_add_u32 v%d, s%d, v%d' % (vT3, sT0, vT2))
        for i in range(4):
            if c < 6 and P['ROT']: E('ds_read_b128 %s, v%d offset:%d' % (vr(vIDX[i] + 4 * c), vT3, i * 1024))
            elif c < 6: E('ds_read_b128 %s, v%d offset:%d' % (vr(vIDX[i] + 4 * c), vT2, i * 1024 + c * 16))
            else: E('ds_read_b32 v%d, v%d offset:%d' % (vIDX[i] + 24, vT2, i * 1024 + 96))
        if c == 0:
            E('s_waitcnt lgkmcnt(0)')
            conv(([24] if P['L1ST'] else []) + list(range(4)), 'a')
            if P['STG'] != 3: chunk('A', 0)
    if not P['STG']:
        chunk('A', 1)
        if P['L1ST']: chunk('A', 2)
    if P['STG'] != 3:
        E('s_waitcnt lgkmcnt(0)')
        conv(range(4, 24 if P['L1ST'] else 25), 'b')
else:
    conv(range(4), 'a')
    chunk('A', 0); chunk('A', 1)
    E('s_waitcnt vmcnt(%d)' % wait_for(['idx'], 0))
    conv(range(4, 25), 'b')
if P['PFPOS'] == 1: wpf()
def earliest(k, ch):
    R = RW if k == 'W' else RA
    return -1 if ch < R else ch - R
order = []
if P['L1ST']:
    order = [('W', 1), ('W', 2)]
    for p in range(1, 12):
        order += [('A', 2 * p + 1), ('A', 2 * p + 2), ('W', 2 * p + 1), ('W', 2 * p + 2)]
elif P['ORD'] == 'AAWW':
    order = [('W', 1)]
    for p in range(1, 13):
        order += [('A', c) for c in (2 * p, 2 * p + 1) if c < 25] + [('W', c) for c in (2 * p, 2 * p + 1) if c < 25]
elif P['ORD'] == 'A2':
    order = [('W', 1), ('A', 2), ('A', 3)]
    for p in range(1, 13):
        order += [('A', c) for c in (2 * p + 2, 2 * p + 3) if c < 25] + [('W', c) for c in (2 * p, 2 * p + 1) if c < 25]
else:
    order = [('W', 1)]
    for c in range(2, 25): order += [('A', c), ('W', c)]
pend = list(order)
def loader_loop(var):
    for b in range(-1, NSTEP):
        nd = need_at(b)
        while any(vmq.count(t) < 4 for t in nd):
            d = pend[0]
            if earliest(*d) > b - 1:
                d = [x for x in pend if x in nd][0]
                assert earliest(*d) <= b - 1
            pend.remove(d); chunk(*d)
        if nd: E('s_waitcnt vmcnt(%d)' % wait_for(nd, 4))
        E('s_barrier')
        if b == -1: ts(2)
        q = (P['Q0'] if b < 4 else P['Q']) // 4
        n = 0
        while pend and n < q:
            d = pend[0]
            if earliest(*d) > b: break
            if P['STG']:
                if d[0] == 'A' and len(pend) > 1 and pend[1][0] == 'A' and earliest(*pend[1]) > b: break
            elif d[0] == 'A' and len(pend) > 1 and pend[1][0] == 'A' and d[1] % 2 == P['L1ST'] and earliest(*pend[1]) > b: break
            pend.pop(0); chunk(*d); n += 1
        if b == 2:
            E('s_cmp_lg_u32 s%d, 0' % sQ)
            E('s_cbranch_scc1 L_nordy%d' % var)
            if P['DBG']:
                E('s_lshl_b32 s%d, s%d, 2' % (sT2, sMT))
                E('s_add_u32 s%d, s%d, 128' % (sT2, sT2))
                E('v_mov_b32 v%d, s%d' % (vT0, sT2))
                E('s_lshl_b32 s%d, 1, s%d' % (sT2, sME))
                E('v_mov_b32 v%d, s%d' % (vT1, sT2))
                E('s_mov_b64 exec, 1')
                E('buffer_atomic_or v%d, v%d, %s, 0 offen sc1' % (vT1, vT0, sr(R_T0)))
            else:
                E('v_mov_b32 v%d, s%d' % (vT0, sSELF))
                E('s_mov_b64 exec, 1')
                E('buffer_store_byte v%d, v%d, %s, 0 offen sc1' % (vONE, vT0, sr(R_T0)))
            E('s_mov_b64 exec, -1')
            L('L_nordy%d' % var)
        if b == NSTEP - 4: small_loads()
def loader_loop_trk(var, grp):
    lst = []
    rounds = [(grp[i], grp[i + 1]) for i in range(1, len(grp), 2)]
    for ri, (own, oth) in enumerate(rounds):
        H = []
        for t in own: H += [('W', t, i) for i in range(4)]
        for t in oth: H += [('A', t, i) for i in range(4)] + [('W', t, i) for i in range(4)]
        M = []
        if ri + 1 < len(rounds):
            for t in rounds[ri + 1][0]: M += [('A', t, i) for i in range(4)]
        step = max(1, len(H) // max(1, len(M))) if M else 0
        mi = 0
        for k, h in enumerate(H):
            lst.append(h)
            if M and (k % step) == step - 1 and mi < len(M):
                lst.append(M[mi]); mi += 1
        lst += M[mi:]
    def iss(d): (dmaW if d[0] == 'W' else dmaA)(d[1], d[2])
    for b in range(-1, NSTEP):
        nd = need_at(b)
        while any(vmq.count(t) < 4 for t in nd):
            c = [x for x in lst if earliest(x[0], x[1]) <= b - 1]
            d = c[0]; lst.remove(d); iss(d)
        if nd: E('s_waitcnt vmcnt(%d)' % wait_for(nd, 4))
        E('s_barrier')
        if b == -1: ts(2)
        q = P['Q0'] if b < 4 else P['Q']
        n = 0; i = 0
        while i < len(lst) and n < q:
            d = lst[i]
            if earliest(d[0], d[1]) <= b:
                lst.pop(i); iss(d); n += 1
            else:
                if d[0] == 'W' or P['TRK'] == 2: break
                i += 1
        if b == 2:
            E('s_cmp_lg_u32 s%d, 0' % sQ)
            E('s_cbranch_scc1 L_nordy%d' % var)
            E('v_mov_b32 v%d, s%d' % (vT0, sSELF))
            E('s_mov_b64 exec, 1')
            E('buffer_store_byte v%d, v%d, %s, 0 offen sc1' % (vONE, vT0, sr(R_T0)))
            E('s_mov_b64 exec, -1')
            L('L_nordy%d' % var)
        if b == NSTEP - 4: small_loads()
    assert not lst, lst
def small_loads():
    srd(R_IDX, 16, 512); srd(R_T2, 18, 512)
    E('s_lshl_b32 s%d, s%d, 6' % (sT0, sQ))
    E('v_lshrrev_b32 v%d, 4, v%d' % (vT0, vL))
    E('v_lshlrev_b32 v%d, 3, v%d' % (vT0, vT0))
    for t in range(4):
        off = 256 * (t >> 1) + 32 * (t & 1)
        E('buffer_load_dwordx2 %s, v%d, %s, s%d offen offset:%d' % (vr(vB1v + 2 * t, 2), vT0, sr(R_IDX), sT0, off)); vm('ep')
        E('buffer_load_dwordx2 %s, v%d, %s, s%d offen offset:%d' % (vr(vW2v + 2 * t, 2), vT0, sr(R_T2), sT0, off)); vm('ep')
    E('s_nop 0')
    srd(R_IDX, 8, 4096 * 26 + 64); srd(R_T2, 10, 64)
    E('v_and_b32 v%d, 15, v%d' % (vT1, vL))
    E('s_lshl_b32 s%d, s%d, 4' % (sT0, sSELF))
    E('v_add_u32 v%d, s%d, v%d' % (vT1, sT0, vT1))
    E('v_mul_u32_u24 v%d, 26, v%d' % (vT1, vT1))
    E('v_lshrrev_b32 v%d, 2, v%d' % (vT0, vT0))
    E('v_add_u32 v%d, v%d, v%d' % (vT1, vT1, vT0))
    for m in range(4):
        if m == 3:
            E('v_mov_b32 v%d, 0' % (vXW + 3)); E('v_mov_b32 v%d, 0' % (vWW + 3))
            E('s_mov_b64 exec, 0xffff')
        E('buffer_load_ushort v%d, v%d, %s, 0 offen offset:%d' % (vXW + m, vT1, sr(R_IDX), 8 * m)); vm('ep')
        E('buffer_load_ushort v%d, v%d, %s, 0 offen offset:%d' % (vWW + m, vT0, sr(R_T2), 8 * m)); vm('ep')
    E('s_mov_b64 exec, -1')
    E('s_nop 0')
    srd(R_IDX, 12, 64); srd(R_T2, 20, 64)
    E('v_mov_b32 v%d, 0' % vT2)
    E('buffer_load_ushort v%d, v%d, %s, 0 offen' % (vSC, vT2, sr(R_IDX))); vm('ep')
    E('buffer_load_ushort v%d, v%d, %s, 0 offen' % (vSC + 1, vT2, sr(R_T2))); vm('ep')
    if P['OTOUCH']:
        E('s_lshl_b32 s%d, s%d, 5' % (sT0, sSELF))
        E('s_mov_b64 exec, 1')
        E('buffer_load_ushort v%d, v%d, %s, s%d offen sc1' % (vS + 3, vT2, sr(R_T1), sT0)); vm('ep')
        E('s_mov_b64 exec, -1')
if P['STG']:
    sv = list(vmq)
    NV = 8 if P['STG'] == 3 else 4
    E('s_and_b32 s%d, s%d, %d' % (sT0, sMT, NV // 2 - 1))
    E('s_lshl_b32 s%d, s%d, 1' % (sT0, sT0))
    E('s_or_b32 s%d, s%d, s%d' % (sT0, sT0, sNH))
    for var in range(1, NV):
        E('s_cmp_eq_u32 s%d, %d' % (sT0, var))
        E('s_cbranch_scc1 L_var%d' % var)
    for var in range(NV):
        L('L_var%d' % var)
        seq, grp = mkseq((var >> 1) if P['STG'] != 2 else 0, var & 1)
        CUR['seq'] = seq; CUR['grp'] = grp
        vmq[:] = sv
        pend[:] = []
        for gi, g in enumerate(grp):
            pend.extend([('A', t) for t in g]); pend.extend([('W', t) for t in g])
        pend.remove(('W', 0))
        first = grp[0] + (grp[1] if seq[0] == 24 else [])
        for t in first:
            pend.remove(('A', t))
            if t > 0 or P['STG'] == 3: chunk('A', t)
        if P['STG'] == 3:
            E('s_waitcnt lgkmcnt(0)')
            conv(range(4, 24), 'b%d' % var)
        if P['TRK']:
            pend[:] = []
            loader_loop_trk(var, grp)
        else:
            loader_loop(var)
        assert not pend, pend
        if var < NV - 1: E('s_branch L_varj')
    L('L_varj')
else:
    loader_loop(0)
    assert not pend, pend
ts(3)
def lane_reduce(v, tmp):
    E('v_mov_b32 v%d, v%d' % (tmp, v)); E('s_nop 1')
    E('v_permlane32_swap_b32 v%d, v%d' % (v, tmp)); E('s_nop 1')
    E('v_add_f32 v%d, v%d, v%d' % (v, v, tmp))
    E('v_mov_b32 v%d, v%d' % (tmp, v)); E('s_nop 1')
    E('v_permlane16_swap_b32 v%d, v%d' % (v, tmp)); E('s_nop 1')
    E('v_add_f32 v%d, v%d, v%d' % (v, v, tmp))
def rbf(v):
    E('v_cvt_pk_bf16_f32 v%d, v%d, v%d' % (v, v, v))
    E('v_lshlrev_b32 v%d, 16, v%d' % (v, v))
E('s_waitcnt vmcnt(0)')
for m in range(4):
    E('v_lshlrev_b32 v%d, 16, v%d' % (vXW + m, vXW + m))
    E('v_lshlrev_b32 v%d, 16, v%d' % (vWW + m, vWW + m))
E('v_mul_f32 v%d, v%d, v%d' % (vT0, vXW, vWW))
for m in range(1, 4): E('v_fmac_f32 v%d, v%d, v%d' % (vT0, vXW + m, vWW + m))
lane_reduce(vT0, vT1)
rbf(vT0)
E('v_lshlrev_b32 v%d, 16, v%d' % (vSC, vSC))
E('v_lshlrev_b32 v%d, 16, v%d' % (vSC + 1, vSC + 1))
E('v_add_f32 v%d, v%d, v%d' % (vT0, vT0, vSC))
rbf(vT0)
for t in range(4):
    for d in range(2):
        E('v_lshlrev_b32 v%d, 16, v%d' % (vBf + 4 * t + 2 * d, vB1v + 2 * t + d))
        E('v_and_b32 v%d, 0xffff0000, v%d' % (vBf + 4 * t + 2 * d + 1, vB1v + 2 * t + d))
        E('v_lshlrev_b32 v%d, 16, v%d' % (vWf + 4 * t + 2 * d, vW2v + 2 * t + d))
        E('v_and_b32 v%d, 0xffff0000, v%d' % (vWf + 4 * t + 2 * d + 1, vW2v + 2 * t + d))
for r in range(8 * 4 * NST): E('v_mov_b32 v%d, 0' % (vRX + r))
E('s_mov_b32 s%d, 0' % sSPIN)
E('s_lshl_b32 s%d, 1, s%d' % (sMASK, sME))
E('s_lshl_b32 s%d, s%d, 3' % (sT1, sSELF))
FLDS = SCROFF + 1024
E('v_lshlrev_b32 v%d, 2, v%d' % (vT3, vL))
E('v_add_u32 v%d, 0x%x, v%d' % (vT3, FLDS, vT3))
E('v_mov_b32 v%d, 0' % vT2)
E('ds_write_b32 v%d, v%d' % (vT3, vT2))
E('s_mov_b32 m0, 0x%x' % FLDS)
E('s_waitcnt lgkmcnt(0)')
E('s_barrier')
E('v_lshlrev_b32 v%d, 4, v%d' % (vT1, vL))
E('s_lshl_b32 s%d, s%d, 11' % (sT2, sQ))
E('v_add_u32 v%d, s%d, v%d' % (vT1, sT2, vT1))
for r in range(16): E('v_mov_b32 v%d, 0' % (vS + r))
E('s_cmp_eq_u32 s%d, 0' % sNH)
E('s_cbranch_scc0 L_own1')
for t in range(2): E('ds_read_b128 %s, v%d offset:%d' % (vr(vS + 4 * t), vT1, OWNOFF + t * 1024))
E('s_branch L_ownj')
L('L_own1')
for t in range(2): E('ds_read_b128 %s, v%d offset:%d' % (vr(vS + 8 + 4 * t), vT1, OWNOFF + t * 1024))
L('L_ownj')
if F24:
    E('s_mov_b32 s92, 0x0c04000c')
    E('s_mov_b32 s93, 0x0402010c')
L('L_rxloop')
if P['POLL'] == 'dma':
    E('s_cmp_lg_u32 s%d, 0' % sQ)
    E('s_cbranch_scc1 L_nopoll')
    E('s_not_b32 s%d, s%d' % (sT2, sMASK))
    E('s_and_b32 exec_lo, s%d, 0xff' % sT2)
    E('s_mov_b32 exec_hi, 0')
    E('buffer_load_dword v%d, %s, 0 offen sc1 lds' % (vFo, sr(R_WS)))
    E('s_mov_b64 exec, -1')
    L('L_nopoll')
if P['SLP']: E('s_sleep %d' % P['SLP'])
E('ds_read_b32 v%d, v%d' % (vT2, vT3))
E('s_add_u32 s%d, s%d, 1' % (sSPIN, sSPIN))
E('s_cmp_gt_u32 s%d, 0x20000' % sSPIN)
E('s_cbranch_scc1 L_rxdone')
E('s_waitcnt vmcnt(30) lgkmcnt(0)')
E('v_cmp_ne_u32 vcc, 0, v%d' % vT2)
E('s_nop 1')
E('s_andn2_b32 s%d, vcc_lo, s%d' % (sPREV, sMASK))
E('s_cbranch_scc0 L_rxloop')
E('s_or_b32 s%d, s%d, s%d' % (sMASK, sMASK, sPREV))
for s_ in range(8):
    E('s_bitcmp1_b32 s%d, %d' % (sPREV, s_))
    E('s_cbranch_scc0 L_rxs%d' % s_)
    E('s_add_u32 s%d, s%d, %d' % (sT2, sT1, s_))
    E('s_mul_i32 s%d, s%d, %d' % (sT2, sT2, PIECE))
    for j in range(NST):
        if F24:
            E('buffer_load_dwordx3 %s, v%d, %s, s%d offen offset:%d sc1' % (vr(vRX + (s_ * NST + j) * 4, 3), vXc, sr(R_WS), sT2, j * TB))
        else:
            E('buffer_load_dwordx4 %s, v%d, %s, s%d offen offset:%d %s' % (vr(vRX + (s_ * NST + j) * 4), vXc, sr(R_WS), sT2, j * 1024, P['LFL'].replace('+', ' ')))
    L('L_rxs%d' % s_)
E('s_cmp_lg_u32 s%d, 0xff' % sMASK)
E('s_cbranch_scc1 L_rxloop')
L('L_rxdone')
ts(4)
E('s_waitcnt vmcnt(0) lgkmcnt(0)')
ts(5)
for s_ in range(8):
    o = vS + 8 * (s_ >> 2)
    if BF:
        b = vRX + s_ * 4
        for d in range(4):
            E('v_lshlrev_b32 v%d, 16, v%d' % (vT2, b + d))
            E('v_and_b32 v%d, 0xffff0000, v%d' % (vT3, b + d))
            E('v_pk_add_f32 %s, %s, %s' % (vr(o + 2 * d, 2), vr(o + 2 * d, 2), vr(vT2, 2)))
    else:
        b = vRX + s_ * 8
        if F24:
            for t in range(2):
                d = b + 4 * t
                E('v_perm_b32 v%d, v%d, v%d, s92' % (d + 3, d + 1, d))
                E('v_perm_b32 v%d, v%d, v%d, s93' % (d + 3, d + 2, d + 3))
        for r in range(0, 8, 2):
            E('v_pk_add_f32 %s, %s, %s' % (vr(o + r, 2), vr(o + r, 2), vr(b + r, 2)))
E('v_mov_b32 v%d, 0' % vT1)
E('v_mov_b32 v%d, 0' % vT3)
for r in range(0, 16, 2):
    a, b = vS + r, vS + r + 1
    E('v_cvt_pk_bf16_f32 v%d, v%d, v%d' % (vT2, a, b))
    E('v_lshlrev_b32 v%d, 16, v%d' % (a, vT2))
    E('v_and_b32 v%d, 0xffff0000, v%d' % (b, vT2))
    E('v_pk_add_f32 %s, %s, %s' % (vr(a, 2), vr(a, 2), vr(vBf + r, 2)))
    E('v_cvt_pk_bf16_f32 v%d, v%d, v%d' % (vT2, a, b))
    E('v_lshlrev_b32 v%d, 16, v%d' % (a, vT2))
    E('v_and_b32 v%d, 0xffff0000, v%d' % (b, vT2))
    E('v_cmp_lt_f32 vcc, 0, v%d' % a)
    E('v_cmp_lt_f32 s[92:93], 0, v%d' % b)
    E('s_nop 0')
    E('v_cndmask_b32 v10, 0, 1.0, vcc')
    E('v_cndmask_b32 v11, 0, 1.0, s[92:93]')
    E('v_mul_f32 v%d, v%d, v10' % (a, a))
    E('v_mul_f32 v%d, v%d, v11' % (b, b))
    E('v_fmac_f32 v%d, v%d, v%d' % (vT1, a, vWf + r))
    E('v_fmac_f32 v%d, v%d, v%d' % (vT3, b, vWf + r + 1))
E('v_add_f32 v%d, v%d, v%d' % (vT1, vT1, vT3))
lane_reduce(vT1, vT2)
E('v_and_b32 v%d, 15, v%d' % (vT2, vL))
E('v_lshlrev_b32 v%d, 4, v%d' % (vT2, vT2))
E('s_lshl_b32 s%d, s%d, 2' % (sT2, sQ))
E('v_add_u32 v%d, s%d, v%d' % (vT3, sT2, vT2))
E('s_mov_b64 exec, 0xffff')
E('ds_write_b32 v%d, v%d offset:%d' % (vT3, vT1, SCROFF))
E('s_waitcnt lgkmcnt(0)')
E('s_barrier')
E('s_cmp_lg_u32 s%d, 0' % sQ)
E('s_cbranch_scc1 L_end')
E('ds_read_b128 %s, v%d offset:%d' % (vr(vS), vT2, SCROFF))
E('s_waitcnt lgkmcnt(0)')
E('v_add_f32 v%d, v%d, v%d' % (vS, vS, vS + 1))
E('v_add_f32 v%d, v%d, v%d' % (vS + 2, vS + 2, vS + 3))
E('v_add_f32 v%d, v%d, v%d' % (vS, vS, vS + 2))
rbf(vS)
E('v_add_f32 v%d, v%d, v%d' % (vS, vS, vSC + 1))
rbf(vS)
E('v_add_f32 v%d, v%d, v%d' % (vS, vS, vT0))
rbf(vS)
E('v_mul_f32 v%d, 0xbfb8aa3b, v%d' % (vS, vS))
E('v_exp_f32 v%d, v%d' % (vS, vS)); E('s_nop 0')
E('v_add_f32 v%d, 1.0, v%d' % (vS, vS))
E('v_rcp_f32 v%d, v%d' % (vS, vS)); E('s_nop 0')
E('v_cvt_pk_bf16_f32 v%d, v%d, v%d' % (vS, vS, vS))
E('v_lshlrev_b32 v%d, 1, v%d' % (vT2, vL))
E('s_lshl_b32 s%d, s%d, 5' % (sT2, sSELF))
for _ in range(P['SL1']): E('s_sleep 127')
if P['LEAK']:
    if P['LEAK'] == 6: E('s_memrealtime s[74:75]')
    E('s_memrealtime s[76:77]')
    E('s_waitcnt lgkmcnt(0)')
    E('s_sub_u32 s78, s74, s72')
    if P['LEAK'] == 9: E('s_mov_b32 s78, 0')
    E('s_add_u32 s78, s78, s76')
    L('L_leak')
    E('s_sleep 4')
    E('s_memrealtime s[76:77]')
    E('s_waitcnt lgkmcnt(0)')
    E('s_sub_u32 s79, s76, s78')
    E('s_cmp_lt_i32 s79, 0')
    E('s_cbranch_scc1 L_leak')
E('buffer_store_short v%d, v%d, %s, s%d offen %s' % (vS, vT2, sr(R_T1), sT2, P['OFL']))
if TS:
    ts(6); ts_store(0)
E('s_endpgm')

L('L_compute')
INC[0] = True
INC2[0] = True
if P['CPF']:
    E('v_lshlrev_b32 v2, 6, v0')
    for rnd in range(2):
        E('v_cmp_gt_u32 vcc, 0x%x, v2' % (P['CPF'] * 1024 - rnd * 16384))
        E('s_and_saveexec_b64 s[94:95], vcc')
        E('s_cbranch_execz L_nocpf%d' % rnd)
        if rnd: E('v_add_u32 v2, 0x4000, v2')
        E('global_load_dword v%d, v2, s[92:93]' % (20 + rnd))
        L('L_nocpf%d' % rnd)
        E('s_mov_b64 exec, s[94:95]')
cXo, cT0, cT1, cT2, cONE = 2, 3, 4, 5, 6
cB = [[8, 9], [10, 11]]
cW = [12, 13]
cRDY = 14
cFO = 16
cFR = 20
cACC = 180
def acc(X, nt): return cACC + (X * 2 + nt) * 4
def frB(p, X, kk): return cFR + p * 80 + (kk * 8 + X) * 4
def frW(p, nt, kk): return cFR + p * 80 + 64 + (kk * 2 + nt) * 4
E('v_and_b32 v%d, 15, v%d' % (cT0, vL))
E('v_lshrrev_b32 v%d, 4, v%d' % (cT1, vL))
E('v_lshrrev_b32 v%d, 1, v%d' % (cT2, cT0))
E('v_xor_b32 v%d, v%d, v%d' % (cT2, cT2, cT1))
E('v_lshlrev_b32 v%d, 4, v%d' % (cT2, cT2))
E('v_lshl_add_u32 v%d, v%d, 7, v%d' % (cB[0][0], cT0, cT2))
E('v_add_u32 v%d, 0x%x, v%d' % (cB[0][0], ABASE, cB[0][0]))
E('v_xor_b32 v%d, 64, v%d' % (cB[0][1], cB[0][0]))
E('v_add_u32 v%d, 0x10000, v%d' % (cB[1][0], cB[0][0]))
E('v_add_u32 v%d, 0x10000, v%d' % (cB[1][1], cB[0][1]))
E('v_bfe_u32 v%d, v%d, 2, 2' % (cT0, vL))
E('v_and_b32 v%d, 1, v%d' % (cT2, cT1))
E('v_lshl_or_b32 v%d, v%d, 2, v%d' % (cT2, cT2, cT0))
E('v_lshl_add_u32 v%d, v%d, 3, v%d' % (cT0, cT1, cT0))
E('v_lshlrev_b32 v%d, 8, v%d' % (cT0, cT0))
E('v_and_b32 v%d, 3, v%d' % (cT1, vL))
E('v_lshl_add_u32 v%d, v%d, 3, v%d' % (cT0, cT1, cT0))
E('s_lshl_b32 s%d, s%d, 1' % (sT0, sQ))
for nt in range(2):
    E('s_add_u32 s%d, s%d, %d' % (sT1, sT0, nt))
    E('v_xor_b32 v%d, s%d, v%d' % (cT1, sT1, cT2))
    E('v_lshl_add_u32 v%d, v%d, 5, v%d' % (cW[nt], cT1, cT0))
E(('v_mul_u32_u24 v%d, 12, v%d' if F24 else 'v_lshlrev_b32 v%d, 4, v%d') % (cXo, vL))
E('s_mul_i32 s%d, s%d, %d' % (sT0, sQ, PIECE // 4))
E('v_add_u32 v%d, s%d, v%d' % (cXo, sT0, cXo))
E('v_mov_b32 v%d, 1' % cONE)
E('s_add_u32 s%d, s%d, 1' % (sT0, sME))
E('v_add_u32 v%d, s%d, v%d' % (cT0, sT0, vL))
E('v_and_b32 v%d, 7, v%d' % (cT0, cT0))
E('v_mul_u32_u24 v%d, %d, v%d' % (cT0, 9 * PIECE, cT0))
E('s_mul_i32 s%d, s%d, %d' % (sT0, sGRP, 8 * PIECE))
E('s_lshl_b32 s%d, s%d, 7' % (sT1, sME))
E('s_add_u32 s%d, s%d, s%d' % (sT0, sT0, sT1))
E('v_add_u32 v%d, s%d, v%d' % (cFO, sT0, cT0))
for r in range(64): E('v_mov_b32 v%d, 0' % (cACC + r))
E('s_waitcnt lgkmcnt(0)')
srd_ws()
srd(R_T0, 24, 512)
assert RW <= 4
def reads(u):
    p = u & 1
    l = []
    for kk in range(2):
        for nt in range(2):
            for h in range(2):
                l.append('ds_read_b64_tr_b16 %s, v%d offset:%d' % (vr(frW(p, nt, kk) + 2 * h, 2), cW[nt], (u % RW) * 16384 + kk * 8192 + h * 1024))
        s = u % RA
        for X in range(8):
            l.append('ds_read_b128 %s, v%d offset:%d' % (vr(frB(p, X, kk)), cB[s // 4][kk], (s % 4) * 16384 + X * 2048))
    return l
def stores(X):
    E('s_add_u32 s%d, s%d, %d' % (sT3, sME, X + 1))
    E('s_and_b32 s%d, s%d, 7' % (sT3, sT3))
    E('s_add_u32 s%d, s%d, s%d' % (sT2, sT3, sGRP))
    E('s_lshl_b32 s%d, s%d, 3' % (sT2, sT2))
    E('s_add_u32 s%d, s%d, s%d' % (sT2, sT2, sME))
    E('s_mul_i32 s%d, s%d, %d' % (sT2, sT2, PIECE))
    if BF:
        a0, a1 = acc(X, 0), acc(X, 1)
        E('v_cvt_pk_bf16_f32 v%d, v%d, v%d' % (a0, a0, a0 + 1))
        E('v_cvt_pk_bf16_f32 v%d, v%d, v%d' % (a0 + 1, a0 + 2, a0 + 3))
        E('v_cvt_pk_bf16_f32 v%d, v%d, v%d' % (a0 + 2, a1, a1 + 1))
        E('v_cvt_pk_bf16_f32 v%d, v%d, v%d' % (a0 + 3, a1 + 2, a1 + 3))
        E('buffer_store_dwordx4 %s, v%d, %s, s%d offen %s' % (vr(a0), cXo, sr(R_WS), sT2, P['SFL'].replace('+', ' ')))
    elif F24:
        for nt in range(2):
            a = acc(X, nt)
            E('v_add_u32 v%d, 0x80, v%d' % (a + 3, a + 3))
            for r in range(3):
                E('v_perm_b32 v%d, v%d, v%d, s%d' % (a + r, a + r, a + 3, 92 + r))
            E('buffer_store_dwordx3 %s, v%d, %s, s%d offen offset:%d sc1' % (vr(a, 3), cXo, sr(R_WS), sT2, nt * TB))
    else:
        for nt in range(2):
            E('buffer_store_dwordx4 %s, v%d, %s, s%d offen offset:%d %s' % (vr(acc(X, nt)), cXo, sr(R_WS), sT2, nt * 1024, P['SFL'].replace('+', ' ')))
if F24:
    for r in range(3): E('s_mov_b32 s%d, 0x%08x' % (92 + r, 0x07060500 + r + 1))
est_done = [0]
if P['CPF']: E('s_waitcnt vmcnt(0)')
E('s_barrier')
ts(2)
for x in reads(0): E(x)
for u in range(NSTEP - 2 if P['MRG'] else NSTEP):
    p = u & 1
    E('; ---- step %d' % u)
    E('s_waitcnt lgkmcnt(0)')
    E('s_barrier')
    if u < NSTEP - 1:
        mf = ['v_mfma_f32_16x16x32_bf16 %s, %s, %s, %s' % (vr(acc(X, nt)), vr(frW(p, nt, kk)), vr(frB(p, X, kk)), vr(acc(X, nt)))
              for kk in range(2) for X in range(8) for nt in range(2)]
        if P['MORD']:
            mf = ['v_mfma_f32_16x16x32_bf16 %s, %s, %s, %s' % (vr(acc(X, nt)), vr(frW(p, nt, kk)), vr(frB(p, X, kk)), vr(acc(X, nt)))
                  for kk in range(2) for nt in range(2) for X in range(8)]
    else:
        mf = ['v_mfma_f32_16x16x32_bf16 %s, %s, %s, %s' % (vr(acc(X, nt)), vr(frW(p, nt, kk)), vr(frB(p, X, kk)), vr(acc(X, nt)))
              for X in range(8) for kk in range(2) for nt in range(2)]
    rd = reads(u + 1) if u + 1 < NSTEP else []
    if P['M32'] and u < NSTEP - 1:
        mf2 = []
        for kk in range(2):
            for X in range(8):
                a = cACC + (X % 4) * 16
                mf2.append('v_mfma_f32_32x32x16_bf16 %s, %s, %s, %s' % (vr(a, 16), vr(frW(p, X & 1, kk)), vr(frB(p, X, kk)), vr(a, 16)))
        for m, x in enumerate(mf2):
            E(x)
            for r in rd[2 * m:2 * m + 2]: E(r)
        mf = []
    for m, x in enumerate(mf):
        E(x)
        if m < len(rd): E(rd[m])
        if P['MNOP'] >= 0 and u < NSTEP - 1: E('s_nop %d' % P['MNOP'])
        if P['EST'] and u == NSTEP - 1 and m % 4 == 3 and m // 4 >= 2:
            stores(m // 4 - 2); est_done[0] += 1
    if u == NSTEP - 5:
        if P['DBG']:
            E('s_lshl_b32 s%d, s%d, 2' % (sT2, sMT))
            E('s_add_u32 s%d, s%d, 128' % (sT2, sT2))
            E('v_mov_b32 v%d, s%d' % (cT0, sT2))
        else:
            E('v_mov_b32 v%d, s%d' % (cT0, sGRP))
        if P['RDY1']:
            E('s_cmp_lg_u32 s%d, 0' % sQ)
            E('s_cbranch_scc1 L_nord1')
            E('s_mov_b64 exec, 1')
        E('buffer_load_dwordx2 %s, v%d, %s, 0 offen sc1' % (vr(cRDY, 2), cT0, sr(R_T0)))
        if P['RDY1']:
            E('s_mov_b64 exec, -1')
            L('L_nord1')
if P['MRG']:
    u = NSTEP - 2; p = u & 1; q_ = 1 - p; v = u + 1
    E('; ---- steps %d+%d merged' % (u, v))
    E('s_waitcnt lgkmcnt(0)')
    E('s_barrier')
    rdl = []
    for kk in range(2):
        for nt in range(2):
            for h in range(2):
                rdl.append(('W', 'ds_read_b64_tr_b16 %s, v%d offset:%d' % (vr(frW(q_, nt, kk) + 2 * h, 2), cW[nt], (v % RW) * 16384 + kk * 8192 + h * 1024)))
    sl = v % RA
    for X in range(8):
        for kk in range(2):
            rdl.append((X, 'ds_read_b128 %s, v%d offset:%d' % (vr(frB(q_, X, kk)), cB[sl // 4][kk], (sl % 4) * 16384 + X * 2048)))
    issued = []
    def mm(pp, X):
        return ['v_mfma_f32_16x16x32_bf16 %s, %s, %s, %s' % (vr(acc(X, nt)), vr(frW(pp, nt, kk)), vr(frB(pp, X, kk)), vr(acc(X, nt))) for kk in range(2) for nt in range(2)]
    def put(x, n=2):
        E(x)
        for _ in range(n):
            if len(issued) < len(rdl):
                t, ins = rdl[len(issued)]; issued.append(t); E(ins)
    for X in (0, 1):
        for x in mm(p, X): put(x)
    for X in range(8):
        while X not in issued or issued.count(X) < 2:
            t, ins = rdl[len(issued)]; issued.append(t); E(ins)
        last = max(i for i, t in enumerate(issued) if t == X)
        if X < 2:
            E('s_waitcnt lgkmcnt(%d)' % min(len(issued) - 1 - last, 15))
        elif X == 2:
            assert len(issued) == len(rdl)
            E('s_waitcnt lgkmcnt(0)')
            E('s_barrier')
        for x in mm(q_, X): put(x)
        if X + 2 < 8:
            for x in mm(p, X + 2): put(x)
        if X >= 1:
            stores(X - 1); est_done[0] += 1
ts(3)
INC[0] = False
E('s_mov_b32 s%d, 0' % sSPIN)
if F24:
    for r in range(3): E('s_mov_b32 s%d, 0x%08x' % (92 + r, 0x07060500 + r + 1))
if P['SL2']: E('s_sleep %d' % P['SL2'])
for X in range(est_done[0], 7):
    stores(X)
    if P['PACE'] and X < 6: E('s_sleep %d' % P['PACE'])
ts(4)
E('v_lshlrev_b32 v%d, 4, v%d' % (cT1, vL))
E('s_lshl_b32 s%d, s%d, 11' % (sT2, sQ))
E('v_add_u32 v%d, s%d, v%d' % (cT1, sT2, cT1))
for nt in range(2): E('ds_write_b128 v%d, %s offset:%d' % (cT1, vr(acc(7, nt)), OWNOFF + nt * 1024))
if P['RDY1']:
    E('s_cmp_lg_u32 s%d, 0' % sQ)
    E('s_cbranch_scc1 L_rdyok')
E('s_waitcnt vmcnt(%d)' % (7 * NST))
L('L_rdychk')
E('v_and_b32 v%d, v%d, v%d' % (cT1, cRDY, cRDY + (0 if P['DBG'] else 1)))
E('s_nop 0')
E('v_readfirstlane_b32 s%d, v%d' % (sT2, cT1))
E('s_cmp_eq_u32 s%d, %s' % (sT2, '0xff' if P['DBG'] else '0x01010101'))
E('s_cbranch_scc1 L_rdyok')
E('s_add_u32 s%d, s%d, 1' % (sSPIN, sSPIN))
E('s_cmp_gt_u32 s%d, 0x8000' % sSPIN)
E('s_cbranch_scc1 L_rdyok')
E('s_sleep 2')
E('buffer_load_dwordx2 %s, v%d, %s, 0 offen sc1' % (vr(cRDY, 2), cT0, sr(R_T0)))
E('s_waitcnt vmcnt(0)')
E('s_branch L_rdychk')
L('L_rdyok')
E('s_waitcnt vmcnt(0) lgkmcnt(0)')
ts(5)
E('s_barrier')
if P['POLL'] != 'dma':
    E('s_sub_u32 s%d, s%d, 1' % (sT0, sQ))
    E('s_cmp_ge_u32 s%d, %d' % (sT0, P['NPOLL']))
    E('s_cbranch_scc1 L_notpoller')
    if P['NPOLL'] > 1:
        E('s_cmp_eq_u32 s%d, 0' % sT0)
        E('s_cbranch_scc1 L_pst')
        E('s_sleep %d' % (20 // P['NPOLL']))
        E('s_cmp_eq_u32 s%d, 1' % sT0)
        E('s_cbranch_scc1 L_pst')
        E('s_sleep %d' % (20 // P['NPOLL']))
        L('L_pst')
    E('s_lshl_b32 s%d, s%d, 3' % (sT0, sSELF))
    E('s_add_u32 s%d, s%d, s%d' % (sT0, sT0, sME))
    E('s_mul_i32 s%d, s%d, %d' % (sT0, sT0, PIECE))
    E('v_lshlrev_b32 v%d, 7, v%d' % (cT0, vL))
    E('v_add_u32 v%d, s%d, v%d' % (cT0, sT0, cT0))
    E('v_lshlrev_b32 v%d, 2, v%d' % (cT1, vL))
    E('v_add_u32 v%d, 0x%x, v%d' % (cT1, SCROFF + 1024, cT1))
    E('s_lshl_b32 s%d, 1, s%d' % (sMASK, sME))
    E('s_mov_b32 exec_hi, 0')
    L('L_cpoll')
    E('s_andn2_b32 exec_lo, 0xff, s%d' % sMASK)
    if P['POLL'] == 'atom':
        E('v_mov_b32 v%d, 0' % cT2)
        E('buffer_atomic_or v%d, v%d, %s, 0 offen sc0 sc1' % (cT2, cT0, sr(R_WS)))
    else:
        E('buffer_load_dword v%d, v%d, %s, 0 offen sc1' % (cT2, cT0, sr(R_WS)))
    E('s_add_u32 s%d, s%d, 1' % (sSPIN, sSPIN))
    E('s_cmp_gt_u32 s%d, 0x20000' % sSPIN)
    E('s_cbranch_scc1 L_end')
    E('s_waitcnt vmcnt(0)')
    E('v_cmp_ne_u32 vcc, 0, v%d' % cT2)
    E('s_nop 1')
    E('s_mov_b32 exec_lo, vcc_lo')
    E('ds_write_b32 v%d, v%d' % (cT1, cT2))
    E('s_or_b32 s%d, s%d, vcc_lo' % (sMASK, sMASK))
    if P['PSL']: E('s_sleep %d' % P['PSL'])
    E('s_cmp_lg_u32 s%d, 0xff' % sMASK)
    E('s_cbranch_scc1 L_cpoll')
    E('s_endpgm')
    L('L_notpoller')
E('s_cmp_lg_u32 s%d, 0' % sQ)
E('s_cbranch_scc1 L_end')
E('s_mov_b64 exec, 0x7f')
E(('buffer_atomic_or v%d, v%d, %s, 0 offen sc1' if P['FAT'] else 'buffer_store_dword v%d, v%d, %s, 0 offen sc1') % (cONE, cFO, sr(R_WS)))
E('s_mov_b64 exec, -1')
if TS:
    ts(6)
    E('s_cmp_lg_u32 s%d, 0' % sQ)
    E('s_cbranch_scc1 L_end')
    ts_store(1)
L('L_end')
E('s_endpgm')
out += ['.section .rodata,"a"', '.p2align 6', '.amdhsa_kernel ' + KN, '  .amdhsa_next_free_vgpr 248', '  .amdhsa_next_free_sgpr 102',
        '  .amdhsa_accum_offset 248', '  .amdhsa_group_segment_fixed_size 0', '  .amdhsa_kernarg_size 96', '  .amdhsa_user_sgpr_count 2',
        '  .amdhsa_user_sgpr_kernarg_segment_ptr 1', '  .amdhsa_system_sgpr_workgroup_id_x 1', '  .amdhsa_float_denorm_mode_32 3', '.end_amdhsa_kernel']
open(sys.argv[1], 'w').write('\n'.join(out) + '\n')
print('lds', LDS_BYTES, 'lines', len(out))
```
